```python
import torch

def _softmax(x, axis=-1):
    return torch.softmax(x, dim=axis)
def _gelu(x):
    return torch.nn.functional.gelu(x, approximate="tanh")
def _silu(x):
    return torch.nn.functional.silu(x)
def _sigmoid(x):
    return torch.sigmoid(x)
def _layernorm(x, axis=-1, eps=1e-5):
    m = x.mean(dim=axis, keepdim=True)
    v = x.var(dim=axis, keepdim=True, unbiased=False)
    return (x - m) / torch.sqrt(v + eps)
def _scatter_add(tgt, idx, src, axis=0):
    return tgt.clone().index_add_(axis, idx, src)
def _segment_sum(src, seg, n):
    out = torch.zeros((n,) + src.shape[1:], dtype=src.dtype)
    return out.index_add_(0, seg, src)
def _pad(x, pw):
    flat = tuple(v for pair in reversed(pw) for v in pair)
    return torch.nn.functional.pad(x, flat)

kernel_name = 'parallel_sum__sliding_block__glu_gated_geglu__prompt'

def setup_inputs():

    _w = (lambda a: (lambda t: t.to(torch.bfloat16) if t.is_floating_point() else t)(torch.as_tensor(a)))
    def _A_setup():
        B, S, D = 1, 2048, 1024
        return {
            "x": _w((lambda *s: torch.randn(*s, dtype=torch.bfloat16) * 0.05)(B, S, D)),
            "wqkv": _w((lambda *s: torch.randn(*s, dtype=torch.bfloat16) * 0.05)(D, 3 * D)),
            "wo": _w((lambda *s: torch.randn(*s, dtype=torch.bfloat16) * 0.05)(D, D)),
        }
    _A_in = _A_setup()

    def _B_setup():
        B, S, Dm, Df = 1, 2048, 1024, 3584
        return {
            "x": _w((lambda *s: torch.randn(*s, dtype=torch.bfloat16) * 0.05)(B, S, Dm)),
            "w_gate": _w((lambda *s: torch.randn(*s, dtype=torch.bfloat16) * 0.8)(Dm, Df) * (Dm ** -0.5)),
            "w_up": _w((lambda *s: torch.randn(*s, dtype=torch.bfloat16) * 0.8)(Dm, Df) * (Dm ** -0.5)),
            "w_down": _w((lambda *s: torch.randn(*s, dtype=torch.bfloat16) * 0.8)(Df, Dm) * (Df ** -0.5)),
        }
    _B_in = _B_setup()

    return {
        "A_x": _A_in["x"],
        "A_wqkv": _A_in["wqkv"],
        "A_wo": _A_in["wo"],
        "B_x": _B_in["x"],
        "B_w_gate": _B_in["w_gate"],
        "B_w_up": _B_in["w_up"],
        "B_w_down": _B_in["w_down"],
    }

def reference(A_x, A_wqkv, A_wo, B_x, B_w_gate, B_w_up, B_w_down):
    def _A_ref(x, wqkv, wo):
        B, S, D = x.shape
        H = 32; Dh = D // H; W = 256
        qkv = (lambda x, *d: x.permute(*d))((x @ wqkv).reshape(B, S, 3, H, Dh), 2, 0, 3, 1, 4)
        q, k, v = qkv[0], qkv[1], qkv[2]
        scores = torch.einsum("bhqd,bhkd->bhqk", q, k) * (Dh ** -0.5)
        idx = torch.arange(S)
        mask = (idx[:, None] - idx[None, :] >= 0) & (idx[:, None] - idx[None, :] < W)
        scores = torch.where(mask[None, None], scores, -1e9)
        p = _softmax(scores, axis=-1)
        o = torch.einsum("bhqk,bhkd->bhqd", p, v)
        return (lambda x, *d: x.permute(*d))(o, 0, 2, 1, 3).reshape(B, S, D) @ wo

    def _B_ref(x, w_gate, w_up, w_down):
        g = torch.einsum("bsd,df->bsf", x, w_gate)
        u = torch.einsum("bsd,df->bsf", x, w_up)
        h = _gelu(g) * u
        return torch.einsum("bsf,fd->bsd", h, w_down)

    x = A_x
    xn = _layernorm(x, axis=-1)
    return x + _A_ref(xn, A_wqkv, A_wo) + _B_ref(xn, B_w_gate, B_w_up, B_w_down)
```

```python
class Kern:
    def __init__(self, name):
        self.name = name
        self.L = []
        self.lgkm = []
        self.vm = []
    def e(self, s):
        for ln in s.split("\n"):
            ln = ln.strip()
            if ln: self.L.append(ln)
    def label(self, s): self.L.append(s + ":")
    def comment(self, s): self.L.append("; " + s)
    def ds(self, text, tag):
        self.L.append(text); self.lgkm.append(tag)
    def vmem(self, text, tag):
        self.L.append(text); self.vm.append(tag)
    def need_lgkm(self, tags):
        idx = -1
        for i, t in enumerate(self.lgkm):
            if t in tags: idx = i
        if idx < 0: return
        n = len(self.lgkm) - 1 - idx
        n = min(n, 15)
        self.L.append(f"s_waitcnt lgkmcnt({n})")
        self.lgkm = self.lgkm[len(self.lgkm) - n:] if n else []
    def need_vm(self, tags, also_lgkm0=False):
        idx = -1
        for i, t in enumerate(self.vm):
            if t in tags: idx = i
        s = ""
        if idx >= 0:
            n = len(self.vm) - 1 - idx
            n = min(n, 63)
            s = f"vmcnt({n})"
            self.vm = self.vm[len(self.vm) - n:] if n else []
        if also_lgkm0 and self.lgkm:
            s = (s + " lgkmcnt(0)").strip()
            self.lgkm = []
        if s: self.L.append("s_waitcnt " + s)
    def wait_all(self):
        self.L.append("s_waitcnt vmcnt(0) lgkmcnt(0)")
        self.vm = []; self.lgkm = []
    def text(self): return "\n".join(self.L)

def header(name):
    return f""".globl {name}
.p2align 8
.type {name},@function
{name}:"""

def descriptor(name, vgpr, sgpr, accum):
    return f""".amdhsa_kernel {name}
  .amdhsa_next_free_vgpr {vgpr}
  .amdhsa_next_free_sgpr {sgpr}
  .amdhsa_accum_offset {accum}
  .amdhsa_group_segment_fixed_size 0
  .amdhsa_kernarg_size 80
  .amdhsa_user_sgpr_count 2
  .amdhsa_user_sgpr_kernarg_segment_ptr 1
  .amdhsa_system_sgpr_workgroup_id_x 1
  .amdhsa_float_denorm_mode_32 3
.end_amdhsa_kernel"""

def vr(a, n=1):
    return f"v{a}" if n == 1 else f"v[{a}:{a+n-1}]"
def sr(a, n=1):
    return f"s{a}" if n == 1 else f"s[{a}:{a+n-1}]"

def srd(k, d, b, nbytes):
    k.e(f"s_mov_b32 s{d}, s{b}")
    k.e(f"s_mov_b32 s{d+1}, s{b+1}")
    k.e(f"s_mov_b32 s{d+2}, {hex(nbytes)}")
    k.e(f"s_mov_b32 s{d+3}, 0x20000")

import struct
def f32hex(x):
    return hex(struct.unpack("<I", struct.pack("<f", x))[0])

WS_H = 0
WS_Q = 0x1200000
WS_K = 0x1600000
WS_V = 0x1A00000
WS_XN = 0x1E00000
WS_BYTES = 0x10000000
```

```python
import sys
from asmlib import *
import hazard
import k0_ln, k1_gemm, k_attn, k2_gemm

def assemble(parts, path):
    launches = [p[2] for p in parts]
    out = ["; generated by gen/build.py"] + launches
    out.append('.amdgcn_target "amdgcn-amd-amdhsa--gfx950"')
    out.append(".text")
    for p in parts:
        out += hazard.fix(p[0].split("\n"))
    out.append('.section .rodata,"a"')
    for p in parts:
        out.append(".p2align 6")
        out.append(p[1])
    open(path, "w").write("\n".join(out) + "\n")

if __name__ == "__main__":
    O1 = k1_gemm.Opt
    O1.timing = True
    O1.pf64 = 1; O1.pfreg = 1
    W, X, D = (0, 1, 2), (3, 4), (5, 6)
    O1.src_ws = True
    O1.PD, O1.pfonly, O1.pffirst, O1.early, O1.rot, O1.bfirst = 3, W, 0, 1, 1, 1
    assemble([k0_ln.gen_ln(), k1_gemm.gen_k1()], f"k1_chk.s")
    O1.src_ws = False
    for nm, PD, only, first, early, rot, bf in (("a", 0, None, 0, 1, 0, 0), ("b", 0, None, 0, 1, 1, 0), ("c", 0, None, 0, 1, 1, 1), ("d", 3, W, 0, 1, 1, 1), ("e", 3, W + X, 0, 1, 1, 1), ("f", 3, W + D, 0, 1, 1, 1), ("g", 4, W, 0, 1, 1, 1), ("h", 3, W, 0, 0, 1, 1)):
        O1.PD, O1.pfonly, O1.pffirst, O1.early, O1.rot, O1.bfirst = PD, only, first, early, rot, bf
        assemble([k1_gemm.gen_k1()], f"k1_{nm}.s")
```

```python
from asmlib import *
import math

class Opt:
    timing = False
    nB1 = 3
    rot = True
    hsc = " sc1"
    NS = 5
    pbf16 = False
    kvbar = 2
    kvpoll = 5
    hhook = 1

WS_H, WS_K, WS_V = 0, 0x1600000, 0x1A00000
WS_P = 0x2200000
WS_ST = 0x2B00000
WS_CS = 0x2B10000
WS_F = 0x2C00000
F_ST, F_CS, F_KV, F_H, F_O, F_P = 0, 0x1000, 0x2000, 0x3000, 0x4000, 0x8000
WS_T = 0x3000000
LDS_B, BSLOT = 65536, 40960
L_K, L_V, L_Q, L_CO, L_CT = 65536, 98304, 131072, 147456, 150016
LDS_BYTES = 163840
sX, sWa, sWb, sWc, sWS = 8, 12, 16, 20, 24
sKA, sKB, sKQ, sStep = 28, 29, 30, 31
sO = [None, 32, 33, 34]
sM = [35, 36, 37, 38, 39]
sMA, sT, sStage, sW, sMb, sH, sWr, sWc_ = 40, 41, 42, 43, 44, 45, 46, 47
pX, pQKV, pG, pU, pD, pOut, pDbg, pWS, pWo = 4, 6, 48, 50, 52, 54, 56, 58, 84
sNon, sCs, sFl1, sFl2, sNbG, sNbS, sOne, sU, sV, sRow = 86, 87, 88, 89, 90, 91, 92, 93, 94, 95
ACC0, BF0, AF0 = 96, 56, 24
vA0, vA1, vGU, vQe, vQo, vDA, vDB0, vDB1, vNon = 1, 2, 3, 4, 5, 6, 7, 8, 9
RAW, TMP = 10, 18
def acc(i, j): return ACC0 + (i * 5 + j) * 4
def bfr(j, kk): return BF0 + (j * 2 + kk) * 4
def afr(st, b, kk): return AF0 + ((st * 2 + b) * 2 + kk) * 4
NST = 16
uid = [0]
def lab(k, s):
    uid[0] += 1
    return f"L_{s}_{uid[0]}"

def csel(d, a, b): return f"s_mov_b32 s{d}, {b}\ns_cmov_b32 s{d}, {a}"
def stamp(k, n):
    if Opt.timing: k.e(f"s_memtime s[{60+2*n}:{61+2*n}]")

def a_read(k, stage, pair, b, kk):
    i = 2 * pair + b
    k.ds(f"ds_read_b128 {vr(afr(pair&1,b,kk),4)}, v{vA0 if kk == 0 else vA1} offset:{(stage&1)*32768 + i*2048}", ("A", stage, pair, b, kk))

def b_read(k, var, stage, j, kk, rd):
    sl = (stage & 1) * BSLOT
    ng = 4 if var == 0 else 2
    if j < ng: base, off = vGU, sl + (j & 1) * 14336 + (j >> 1) * 32 + (32 * kk + 8 * rd) * 224
    elif var == 0: base, off = vQe, sl + (32 * kk + 8 * rd) * 192
    else: base, off = (vQe if j % 2 == 0 else vQo), sl + (j - 2) * 32 + (32 * kk + 8 * rd) * 192
    assert off < 65536
    k.ds(f"ds_read_b64_tr_b16 {vr(bfr(j,kk)+2*rd,2)}, v{base} offset:{off}", ("B", stage, j, kk, rd))

def dma_a(stage, which):
    t0 = [0, 16, 8, 24][which]
    r = []
    if t0: r.append(("s", f"s_add_u32 s{sT}, s{sKA}, {t0*16384}", None))
    r.append(("s", f"s_add_u32 m0, s{sMA}, {(stage&1)*32768 + t0*1024}", None))
    r.append(("v", f"buffer_load_dwordx4 v{vDA}, {sr(sX,4)}, s{sT if t0 else sKA} offen lds", ("Alo" if which < 2 else "Ahi", stage)))
    return r

def dma_b(stage, d):
    r = []
    sl = (stage & 1) * BSLOT
    if d in (1, 2, 3): r.append(("s", f"s_add_u32 s{sT}, s{sKB}, s{sO[d]}", None))
    r.append(("s", f"s_add_u32 m0, s{sM[d]}, {sl}" if sl else f"s_mov_b32 m0, s{sM[d]}", None))
    so = {0: sKB, 4: sKQ}.get(d, sT)
    r.append(("v", f"buffer_load_dwordx4 v{vDB1 if d == 4 else vDB0}, {sr([sWa,sWa,sWb,sWb,sWc][d],4)}, s{so} offen lds", ("B", stage)))
    return r

def advance():
    return [("s", f"s_add_u32 s{sKA}, s{sKA}, 128", None),
            ("s", f"s_add_u32 s{sKB}, s{sKB}, s{sStep}", None),
            ("s", f"s_add_u32 s{sKQ}, s{sKQ}, {64*6144}", None)]

def emit_items(k, items):
    for kind, text, tag in items:
        if kind == "s": k.e(text)
        elif kind == "v": k.vmem(text, tag)
        elif kind == "f": text(k)

def pair_order():
    seq = []
    for j in range(5):
        bs = (0, 1) if j % 2 == 0 else (1, 0)
        seq += [(bs[0], j, 0), (bs[0], j, 1), (bs[1], j, 1), (bs[1], j, 0)]
    return seq

def reduce_list(op, v, t):
    L = []
    for mod in ("quad_perm:[1,0,3,2]", "quad_perm:[2,3,0,1]", "row_half_mirror", "row_mirror"):
        L.append(f"{op}_dpp v{v}, v{v}, v{v} {mod} row_mask:0xf bank_mask:0xf")
    for p in ("v_permlane16_swap_b32", "v_permlane32_swap_b32"):
        L += [f"v_mov_b32 v{t}, v{v}", f"{p} v{v}, v{t}", f"{op} v{v}, v{v}, v{t}"]
    return L

def stats_list():
    mu, sq, a, b = TMP, TMP + 1, TMP + 2, TMP + 3
    L = [f"v_mov_b32 v{mu}, 0"]
    for i in range(8): L.append(f"v_dot2_f32_bf16 v{mu}, v{RAW+i}, s{sOne}, v{mu}")
    L += reduce_list("v_add_f32", mu, a)
    L.append(f"v_mul_f32 v{mu}, {f32hex(1/1024)}, v{mu}")
    L.append(f"v_mov_b32 v{sq}, 0")
    for i in range(8):
        L += [f"v_lshlrev_b32 v{a}, 16, v{RAW+i}", f"v_and_b32 v{b}, 0xffff0000, v{RAW+i}",
              f"v_sub_f32 v{a}, v{a}, v{mu}", f"v_sub_f32 v{b}, v{b}, v{mu}",
              f"v_fmac_f32 v{sq}, v{a}, v{a}", f"v_fmac_f32 v{sq}, v{b}, v{b}"]
    L += reduce_list("v_add_f32", sq, a)
    L.append(f"v_mul_f32 v{sq}, {f32hex(1/1024)}, v{sq}")
    rnd = lambda r: [f"v_cvt_pk_bf16_f32 v{r}, v{r}, v{r}", f"v_lshlrev_b32 v{r}, 16, v{r}"]
    L += rnd(mu) + rnd(sq) + [f"v_add_f32 v{sq}, {f32hex(1e-5)}, v{sq}"] + rnd(sq) + [f"v_sqrt_f32 v{sq}, v{sq}"] + rnd(sq)
    return L

def colsum_block(k, stage, var, tail):
    cs, t = TMP, TMP + 5
    skip = lab(k, "cs")
    if tail: k.e(f"s_cmp_lg_u32 s{sWr}, {stage & 1}")
    elif stage < 2: k.e(f"s_cmp_lg_u32 s{sCs}, {stage}")
    else: k.e(f"s_cmp_lg_u32 s{sCs}, s{sStage}")
    k.e(f"s_cbranch_scc1 {skip}")
    for j in range(5): k.e(f"v_dot2_f32_bf16 v{cs+j}, v{bfr(j,0)}, s{sOne}, 0")
    for r in range(1, 8):
        for j in range(5): k.e(f"v_dot2_f32_bf16 v{cs+j}, v{bfr(j,0)+r}, s{sOne}, v{cs+j}")
    for p in ("v_permlane16_swap_b32", "v_permlane32_swap_b32"):
        for j in range(5): k.e(f"v_mov_b32 v{t}, v{cs+j}\n{p} v{cs+j}, v{t}\nv_add_f32 v{cs+j}, v{cs+j}, v{t}")
    k.e(f"v_and_b32 v{t}, 15, v0\nv_lshlrev_b32 v{t}, 2, v{t}")
    offs = [(sNbG, 0), (sNbG, 448), (sNbG, 64), (sNbG, 512), (sNbS, 0)] if var == 0 else [(sNbG, 0), (sNbG, 448), (None, 0), (None, 64), (None, 128)]
    if tail:
        k.e(f"v_add_u32 v{t}, {L_CO + (stage & 1) * 1280}, v{t}")
        cur = None
        for j, (s_, o) in enumerate(offs):
            if s_ != cur:
                if cur is not None: k.e(f"v_subrev_u32 v{t}, s{cur}, v{t}")
                if s_ is not None: k.e(f"v_add_u32 v{t}, s{s_}, v{t}")
                cur = s_
            k.e(f"ds_write_b32 v{t}, v{cs+j} offset:{o}")
    else:
        k.e(f"s_lshl_b32 s{sU}, s{sH}, 4\ns_add_u32 s{sU}, s{sU}, s{sCs}\ns_mul_i32 s{sU}, s{sU}, 1280\ns_add_u32 s{sU}, s{sU}, {hex(WS_CS)}")
        for j, (s_, o) in enumerate(offs):
            if s_ is not None: k.e(f"s_add_u32 s{sV}, s{sU}, s{s_}")
            k.e(f"buffer_store_dword v{cs+j}, v{t}, {sr(sWS,4)}, s{sV if s_ is not None else sU} offen offset:{o} sc1")
    k.label(skip)

def flag_store(k, vtmp, soff):
    k.e(f"v_mov_b32 v{vtmp}, s{sNon}")
    k.e(f"buffer_store_dword v{vtmp}, off, {sr(sWS,4)}, s{soff} sc1")

def flag_block(k, stage):
    for which, sfl in ((0, sFl1), (1, sFl2)):
        if which == 0 and stage != 2: continue
        skip = lab(k, "fl")
        k.e(f"s_cmp_lg_u32 s{sfl}, s{sStage}\ns_cbranch_scc1 {skip}")
        if which == 0: k.e(f"s_lshl_b32 s{sU}, s{sMb}, 7\ns_lshl_b32 s{sV}, s{sH}, 2\ns_add_u32 s{sU}, s{sU}, s{sV}\ns_add_u32 s{sU}, s{sU}, {hex(WS_F+F_ST)}")
        else: k.e(f"s_lshl_b32 s{sU}, s{sH}, 7\ns_lshl_b32 s{sV}, s{sMb}, 2\ns_add_u32 s{sU}, s{sU}, s{sV}\ns_add_u32 s{sU}, s{sU}, {hex(WS_F+F_CS)}")
        flag_store(k, TMP + 5, sU)
        k.label(skip)

def spread(n, first, last): return [first + ((last - first) * i) // max(n - 1, 1) for i in range(n)]

def gen_pair(k, var, stage, pair, carry, mfma=True, valu=None):
    fill = {g: [] for g in range(24)}
    for g, it in carry.items(): fill[g] += it
    nst, npair = (stage, pair + 1) if pair < 3 else (stage + 1, 0)
    if nst < NST:
        g0 = 3 if pair == 0 else 0
        for n, (b, kk) in enumerate([(0, 0), (0, 1), (1, 1), (1, 0)]):
            fill[g0 + n].append(("f", (lambda kk_, b_: (lambda kn: a_read(kn, nst, npair, b_, kk_)))(kk, b), None))
    if pair == 3 and stage + 1 < NST:
        for j in range(5):
            for n, (kk, rd) in enumerate([(1, 0), (1, 1), (0, 0), (0, 1)]):
                fill[4 * j + 3 + n].append(("f", (lambda j_, kk_, rd_: (lambda kn: b_read(kn, var, stage + 1, j_, kk_, rd_)))(j, kk, rd), None))
    def place(items, g):
        sc = [x for x in items if x[0] == "s"]
        for n, x in enumerate(sc): fill[g - len(sc) + n].append(x)
        fill[g] += [x for x in items if x[0] == "v"]
    n1 = Opt.nB1
    ylist = [("a", 0), ("a", 1)] + [("b", d) for d in range(n1)]
    xlist = [("b", d) for d in range(n1, 5)] + [("a", 2), ("a", 3)]
    def mk(x, tgt): return dma_a(tgt, x[1]) if x[0] == "a" else dma_b(tgt, x[1])
    if stage == -1:
        pass
    elif stage == 0 and pair == 0:
        lst = [("a", 0), ("a", 1)] + [("b", d) for d in range(5)]
        fill[0] += advance()
        for x, p in zip(lst, spread(len(lst), 2, 19)): place(mk(x, 1), p)
    elif stage == 0 and pair in (1, 2):
        lst = [("a", 2, 1), ("a", 3, 1), ("raw",), ("adv",)] + [(x[0], x[1], 2) for x in ylist]
        for x, p in zip(lst, spread(len(lst), 4, 38)):
            if (p < 20) != (pair == 1): continue
            g = p % 20
            if x[0] == "adv": fill[g] += advance()
            elif x[0] == "raw":
                fill[g - 1].append(("s", f"v_lshlrev_b32 v{RAW+4}, 4, v0", None))
                fill[g].append(("v", f"buffer_load_dwordx4 {vr(RAW,4)}, v{RAW+4}, {sr(sX,4)}, s{sRow} offen", ("RAW", 0)))
                fill[g].append(("v", f"buffer_load_dwordx4 {vr(RAW+4,4)}, v{RAW+4}, {sr(sX,4)}, s{sRow} offen offset:1024", ("RAW", 0)))
                fill[g + 1].append(("v", f"global_load_dword v{vNon}, v{vNon}, {sr(pDbg,2)} sc1", ("RAW", 0)))
            else: place(mk(x, x[2]), max(g, 2))
    elif pair in (1, 2):
        tgt = stage + 2
        if tgt < NST:
            if pair == 1:
                for n, it in enumerate(advance()): fill[n].append(it)
            for x, p in zip(ylist, spread(len(ylist), 7, 37)):
                if pair == 1 and p < 20: place(mk(x, tgt), max(p, 2))
                if pair == 2 and p >= 20: place(mk(x, tgt), max(p - 20, 6))
    else:
        tgt = stage + 2 if pair == 3 else stage + 1
        if tgt < NST:
            n3 = 1 if len(xlist) > 2 else 0
            if pair == 3:
                for x in xlist[:n3]: place(mk(x, tgt), 10)
            else:
                for x, p in zip(xlist[n3:], spread(len(xlist) - n3, 8, 18)): place(mk(x, tgt), p)
    if valu:
        for n, it in enumerate(valu): fill[(n * 20) // len(valu)].append(it)
    for g, (b, j, kk) in enumerate(pair_order()):
        if mfma:
            k.need_lgkm({("A", stage, pair, b, kk), ("B", stage, j, kk, 0), ("B", stage, j, kk, 1)})
            a = acc(2 * pair + b, j)
            k.e(f"v_mfma_f32_16x16x32_bf16 {vr(a,4)}, {vr(bfr(j,kk),4)}, {vr(afr(pair&1,b,kk),4)}, {vr(a,4)}")
        emit_items(k, fill[g])
    return {g - 20: fill[g] for g in range(20, 24) if fill[g]}

def barrier(k, tags):
    k.need_vm(tags, also_lgkm0=True)
    k.e("s_barrier")

def nonce_check(k):
    ok, lp = lab(k, "nok"), lab(k, "nlp")
    k.e(f"v_readfirstlane_b32 s{sNon}, v{vNon}\ns_mov_b32 s{sV}, 0")
    k.label(lp)
    k.e(f"s_cmp_lg_u32 s{sNon}, 0\ns_cbranch_scc1 {ok}")
    k.e(f"v_mov_b32 v{vNon}, 0\nglobal_load_dword v{vNon}, v{vNon}, {sr(pDbg,2)} sc1\ns_waitcnt vmcnt(0)\nv_readfirstlane_b32 s{sNon}, v{vNon}")
    k.e(f"s_add_u32 s{sV}, s{sV}, 1\ns_cmp_lt_u32 s{sV}, 0x100000\ns_cbranch_scc1 {lp}")
    k.label(ok)

def gen_stage(k, var, stage, carry):
    carry = gen_pair(k, var, stage, 0, carry)
    barrier(k, {("Ahi", stage), ("RAW", 0)} if stage == 1 else {("Ahi", stage)})
    if stage == 0:
        pass
    colsum_block(k, stage, var, stage >= 14)
    v1 = v2 = None
    if stage == 1:
        nonce_check(k)
        L = [("s", x, None) for x in stats_list()]
        L.append(("s", f"s_lshr_b32 s{sRow}, s{sRow}, 8\ns_add_u32 s{sRow}, s{sRow}, {hex(WS_ST)}", None))
        L.append(("v", f"buffer_store_dwordx2 {vr(TMP,2)}, off, {sr(sWS,4)}, s{sRow} sc1", ("ST", 0)))
        h = len(L) // 2
        v1, v2 = L[:h], L[h:]
    carry = gen_pair(k, var, stage, 1, carry, valu=v1)
    carry = gen_pair(k, var, stage, 2, carry, valu=v2)
    if stage + 1 < NST:
        barrier(k, {("Alo", stage + 1), ("B", stage + 1)})
    if stage >= 2 and stage % 2 == 0: flag_block(k, stage)
    if stage >= 1: k.e(f"s_add_u32 s{sStage}, s{sStage}, 1")
    carry = gen_pair(k, var, stage, 3, carry)
    return carry

def gen_main(k, var):
    barrier(k, {("Alo", 0), ("B", 0)})
    stamp(k, 1)
    carry = gen_pair(k, var, -1, 3, {}, mfma=False)
    carry = gen_stage(k, var, 0, carry)
    carry = gen_stage(k, var, 1, carry)
    def norm(base):
        f = lambda t: tuple((x - base) if n == 1 else x for n, x in enumerate(t))
        return [f(t) for t in k.lgkm], [f(t) for t in k.vm if t[0] != "ST"]
    k.vm = [t for t in k.vm if t[0] != "ST"]
    loop = lab(k, "loop")
    k.e(".p2align 6")
    k.label(loop)
    st0 = norm(2)
    c = gen_stage(k, var, 2, carry)
    c = gen_stage(k, var, 3, c)
    assert st0 == norm(4), (st0, norm(4))
    k.e(f"s_cmp_lg_u32 s{sStage}, 14\ns_cbranch_scc1 {loop}")
    sh = lambda t: tuple((x + 10) if n == 1 else x for n, x in enumerate(t))
    k.lgkm = [sh(t) for t in k.lgkm]; k.vm = [sh(t) for t in k.vm]
    c = gen_pair(Kern("tmp"), var, 13, 3, {}, mfma=False)
    c = gen_stage(k, var, 14, c)
    c = gen_stage(k, var, 15, c)
    assert not c

def poll(k, vaddr, vdst, soff, name):
    lp, ok = lab(k, name), lab(k, name + "ok")
    k.e(f"s_mov_b32 s{sV}, 0")
    k.label(lp)
    k.e(f"buffer_load_dword v{vdst}, v{vaddr}, {sr(sWS,4)}, s{soff} offen sc1\ns_waitcnt vmcnt(0)")
    k.e(f"v_cmp_ne_u32 vcc, s{sNon}, v{vdst}\ns_nop 1\ns_cbranch_vccz {ok}")
    k.e(f"s_sleep 1\ns_add_u32 s{sV}, s{sV}, 1\ns_cmp_lt_u32 s{sV}, 0x80000\ns_cbranch_scc1 {lp}")
    k.label(ok)
    k.vm = []

STA, CSR, KC = 24, 40, 60
vL8, vS8, OUT, GT = 66, 67, 68, 80

def g2_b_dma(step_slot, tag):
    it = []
    for i in range(4):
        it.append((f"s_add_u32 m0, s{g2MB}, {step_slot*32768}" if i == 0 else "s_add_u32 m0, m0, 4096", None))
        it.append((f"buffer_load_dwordx4 v{g2DB+i}, {sr(g2Bs,4)}, s{g2KB} offen lds", tag))
    return it

def ln_gather(k, var):
    t = OUT
    k.e(f"v_cmp_gt_u32 vcc, 32, v0\nv_lshlrev_b32 v{t}, 2, v0\ns_lshl_b32 s{sU}, s{sMb}, 7\nv_add_u32 v{t+1}, s{sU}, v{t}")
    k.e(f"s_lshl_b32 s{sU}, s{sH}, 7\ns_add_u32 s{sU}, s{sU}, {F_CS - F_ST - 128}\nv_min_u32 v{t}, {38*4}, v{t}\nv_add_u32 v{t}, s{sU}, v{t}")
    k.e(f"v_cndmask_b32 v{t}, v{t}, v{t+1}, vcc\ns_mov_b32 s{sU}, {hex(WS_F+F_ST)}")
    poll(k, t, t + 1, sU, "pln")
    k.e(f"v_and_b32 v{t}, 15, v0\nv_lshlrev_b32 v{t}, 3, v{t}")
    k.e(f"s_lshl_b32 s{sU}, s{sMb}, 11\ns_lshl_b32 s{sV}, s{sWr}, 10\ns_add_u32 s{sU}, s{sU}, s{sV}\ns_add_u32 s{sU}, s{sU}, {hex(WS_ST)}")
    for i in range(8): k.vmem(f"buffer_load_dwordx2 {vr(STA+2*i,2)}, v{t}, {sr(sWS,4)}, s{sU} offen offset:{i*128} sc1", "STA")
    skip, skip2 = lab(k, "cg"), lab(k, "cg2")
    k.e(f"s_lshl_b32 s{sU}, s{sW}, 8\nv_lshlrev_b32 v{t}, 2, v0\nv_add_u32 v{t}, s{sU}, v{t}")
    k.e(f"s_cmp_ge_u32 s{sW}, 5\ns_cbranch_scc1 {skip}")
    k.e(f"s_mul_i32 s{sU}, s{sH}, {16*1280}\ns_add_u32 s{sU}, s{sU}, {hex(WS_CS)}")
    for n in range(14):
        if n and n % 3 == 0: k.e(f"s_add_u32 s{sU}, s{sU}, {3*1280}")
        k.e(f"buffer_load_dword v{CSR+n}, v{t}, {sr(sWS,4)}, s{sU} offen offset:{(n%3)*1280} sc1")
    k.label(skip)
    k.e("s_waitcnt lgkmcnt(0)\ns_barrier"); k.lgkm = []
    stamp(k, 3)
    k.e(f"s_cmp_ge_u32 s{sW}, 5\ns_cbranch_scc1 {skip2}")
    k.e(f"v_add_u32 v{t}, {L_CO}, v{t}\nds_read_b32 v{CSR+14}, v{t}\nds_read_b32 v{CSR+15}, v{t} offset:1280\ns_waitcnt vmcnt(0) lgkmcnt(0)")
    for n in range(8): k.e(f"v_add_f32 v{CSR+n}, v{CSR+n}, v{CSR+8+n}")
    for n in range(4): k.e(f"v_add_f32 v{CSR+n}, v{CSR+n}, v{CSR+4+n}")
    k.e(f"v_add_f32 v{CSR}, v{CSR}, v{CSR+2}\nv_add_f32 v{CSR+1}, v{CSR+1}, v{CSR+3}\nv_add_f32 v{CSR}, v{CSR}, v{CSR+1}")
    k.e(f"ds_write_b32 v{t}, v{CSR} offset:{L_CT - L_CO}\ns_waitcnt lgkmcnt(0)")
    k.label(skip2)
    skip3 = lab(k, "w2")
    k.e(f"s_cmp_lt_u32 s{sW}, 4\ns_cbranch_scc1 {skip3}")
    g2_loader_setup(k)
    for st in range(2):
        for text, tag in g2_b_dma(st, None): k.e(text)
        k.e(f"s_add_u32 s{g2KB}, s{g2KB}, {64*2048}")
    k.label(skip3)
    k.e("s_barrier")
    k.e(f"v_lshrrev_b32 v{t}, 4, v0\nv_lshlrev_b32 v{t}, 4, v{t}\nv_add_u32 v{t}, {L_CT}, v{t}")
    k.e(f"v_add_u32 v{t+1}, s{sNbG}, v{t}")
    if var == 0:
        k.e(f"v_add_u32 v{t}, s{sNbS}, v{t}")
        rd = [(t + 1, 0), (t + 1, 448), (t + 1, 64), (t + 1, 512), (t, 0)]
    else:
        rd = [(t + 1, 0), (t + 1, 448), (t, 0), (t, 64), (t, 128)]
    for j, (a, o) in enumerate(rd): k.ds(f"ds_read_b128 {vr(CSR+4*j,4)}, v{a} offset:{o}", "CS")
    k.need_vm({"STA"})
    for i in range(8): k.e(f"v_sub_f32 v{STA+2*i}, 0, v{STA+2*i}")
    k.need_lgkm({"CS"})

def center(k, i, j):
    a = acc(i, j)
    for hf in (0, 2):
        k.e(f"v_pk_fma_f32 {vr(a+hf,2)}, {vr(CSR+4*j+hf,2)}, {vr(STA+2*i,2)}, {vr(a+hf,2)} op_sel_hi:[1,0,1]")

def geglu(k, i, pairs, outs):
    c0 = -2.0 * math.log2(math.e) * math.sqrt(2.0 / math.pi)
    R, C0, C1, S2 = KC, KC + 2, KC + 4, KC + 1
    k.e(f"v_rcp_f32 v{R}, v{STA+2*i+1}")
    k.e(f"v_mul_f32 v{S2+0}, v{STA+2*i+1}, v{STA+2*i+1}")
    for jg, ju in pairs: center(k, i, jg); center(k, i, ju)
    k.e(f"v_mul_f32 v{C0}, {f32hex(c0)}, v{R}\nv_mul_f32 v{C1}, v{R}, v{R}\nv_mul_f32 v{C1}, {f32hex(0.044715)}, v{C1}\nv_mul_f32 v{C1}, v{C1}, v{C0}")
    P = []
    for x, (jg, ju) in enumerate(pairs):
        for hf in range(2): P.append((acc(i, jg) + 2 * hf, acc(i, ju) + 2 * hf, GT + ((i & 1) * 4 + x * 2 + hf) * 2, outs[x] + hf))
    for g, u, t, o in P: k.e(f"v_pk_mul_f32 {vr(t,2)}, {vr(g,2)}, {vr(g,2)}")
    for g, u, t, o in P: k.e(f"v_pk_fma_f32 {vr(t,2)}, {vr(t,2)}, {vr(C1,2)}, {vr(C0,2)} op_sel_hi:[1,0,0]")
    for g, u, t, o in P: k.e(f"v_pk_mul_f32 {vr(t,2)}, {vr(t,2)}, {vr(g,2)}")
    for g, u, t, o in P:
        k.e(f"v_exp_f32 v{t}, v{t}\nv_exp_f32 v{t+1}, v{t+1}\nv_pk_mul_f32 {vr(g,2)}, {vr(g,2)}, {vr(u,2)}")
    for g, u, t, o in P: k.e(f"v_pk_fma_f32 {vr(t,2)}, {vr(t,2)}, {vr(R,2)}, {vr(R,2)} op_sel:[0,1,1] op_sel_hi:[1,1,1]")
    for g, u, t, o in P: k.e(f"v_rcp_f32 v{t}, v{t}\nv_rcp_f32 v{t+1}, v{t+1}")
    for g, u, t, o in P: k.e(f"v_pk_mul_f32 {vr(g,2)}, {vr(g,2)}, {vr(t,2)}")
    for g, u, t, o in P: k.e(f"v_cvt_pk_bf16_f32 v{o}, v{g}, v{g+1}")

def single(k, i, j, o):
    a = acc(i, j)
    center(k, i, j)
    for hf in (0, 2): k.e(f"v_pk_mul_f32 {vr(a+hf,2)}, {vr(a+hf,2)}, {vr(KC,2)} op_sel_hi:[1,0]")
    k.e(f"v_cvt_pk_bf16_f32 v{o}, v{a}, v{a+1}\nv_cvt_pk_bf16_f32 v{o+1}, v{a+2}, v{a+3}")

sHo, sSo, sSs, sZ = 28, 29, 30, 12
def phase_b(k, var):
    ln_gather(k, var)
    stamp(k, 4)
    vLd = 14
    k.e(f"v_lshlrev_b32 v{vL8}, 3, v0")
    k.e(f"s_lshl_b32 s31, s{sMb}, 4\ns_lshl_b32 s32, s{sWr}, 3\ns_add_u32 s31, s31, s32")
    k.e(f"s_lshr_b32 s33, s{sH}, 1\ns_mul_i32 s33, s33, 7\ns_and_b32 s34, s{sH}, 1")
    if var == 0: k.e(f"s_lshl_b32 s35, s34, 2\ns_add_u32 s33, s33, s35\ns_add_u32 s33, s33, s{sWc_}")
    else: k.e("s_add_u32 s33, s33, 3")
    k.e(f"s_mul_i32 s{sHo}, s31, 144\ns_add_u32 s{sHo}, s{sHo}, s33\ns_lshl_b32 s{sHo}, s{sHo}, 10")
    if var == 1: k.e(f"s_lshl_b32 s34, s34, 9\ns_add_u32 s{sHo}, s{sHo}, s34")
    k.e(f"s_mov_b32 s{sZ}, s{pWS}\ns_mov_b32 s{sZ+1}, s{pWS+1}\ns_mov_b32 s{sZ+3}, 0x20000\ns_cmp_eq_u32 s{sMb}, 7\ns_cselect_b32 s{sZ+2}, 0, s{sWS+2}")
    k.e(f"s_lshl_b32 s35, s{sH}, 7\ns_add_u32 s35, s35, s31\ns_lshl_b32 s35, s35, 10")
    if var == 0:
        k.e(f"s_add_u32 s36, s35, {hex(WS_K + 512)}")
        k.e(f"s_lshl_b32 s37, s{sH}, 1\ns_add_u32 s37, s37, s{sWc_}\ns_sub_u32 s37, s37, 1\ns_lshl_b32 s37, s37, 16\ns_lshl_b32 s38, s31, 9\ns_add_u32 s37, s37, s38\ns_add_u32 s37, s37, {hex(WS_V)}")
        k.e(f"s_lshl_b32 s38, s32, 10\ns_add_u32 s38, s38, {L_K + 16*1024 + 512}")
        k.e(f"s_lshl_b32 s39, s{sWc_}, 14\ns_lshl_b32 s40, s32, 9\ns_add_u32 s39, s39, s40\ns_add_u32 s39, s39, {L_V - 16384 + 8192}")
        k.e(f"v_and_b32 v{vS8}, 15, v0\nv_lshlrev_b32 v{vS8}, 5, v{vS8}\nv_lshrrev_b32 v{vLd}, 4, v0\nv_lshl_add_u32 v{vS8}, v{vLd}, 3, v{vS8}")
        k.e(f"s_cmp_eq_u32 s{sWc_}, 0\ns_cselect_b32 s{sSo}, s36, s37\ns_cselect_b32 s38, s38, s39")
        k.e(csel(sSs, 1024, 512))
        k.e(f"s_cselect_b64 vcc, -1, 0\nv_cndmask_b32 v{vS8}, v{vS8}, v{vL8}, vcc\nv_add_u32 v{vLd}, s38, v{vS8}")
    else:
        k.e(f"s_add_u32 s{sSo}, s35, {hex(WS_K)}")
        k.e(f"s_lshl_b32 s38, s32, 10\ns_add_u32 s39, s38, {L_K + 16*1024}\nv_add_u32 v{vLd}, s39, v{vL8}")
        k.e(f"s_add_u32 s39, s38, {L_Q}\nv_lshlrev_b32 v{vLd+1}, 4, v0\nv_add_u32 v{vLd+1}, s39, v{vLd+1}")
    for i in range(8):
        o = OUT + (i & 1) * 6
        k.e(f"v_rcp_f32 v{KC}, v{STA+2*i+1}")
        if var == 0:
            single(k, i, 4, o)
            k.ds(f"ds_write_b64 v{vLd}, {vr(o,2)}", "W")
            k.vmem(f"buffer_store_dwordx2 {vr(o,2)}, v{vS8}, {sr(sZ,4)}, s{sSo} offen sc1", "KV")
            k.e(f"s_add_u32 s{sSo}, s{sSo}, s{sSs}\nv_add_u32 v{vLd}, s{sSs}, v{vLd}")
        else:
            single(k, i, 4, o + 4)
            k.ds(f"ds_write_b64 v{vLd}, {vr(o+4,2)} offset:{i*1024}", "W")
            k.vmem(f"buffer_store_dwordx2 {vr(o+4,2)}, v{vL8}, {sr(sZ,4)}, s{sSo} offen sc1", "KV")
            k.e(f"s_add_u32 s{sSo}, s{sSo}, 1024")
            single(k, i, 2, o); single(k, i, 3, o + 2)
            k.ds(f"ds_write_b128 v{vLd+1}, {vr(o,4)} offset:{i*1024}", "W")
    for i in range(8):
        o = OUT + (i & 1) * 6
        if var == 0:
            geglu(k, i, [(0, 1), (2, 3)], [o, o + 2])
            k.vmem(f"buffer_store_dwordx2 {vr(o,2)}, v{vL8}, {sr(sWS,4)}, s{sHo} offen sc1", "H")
            k.vmem(f"buffer_store_dwordx2 {vr(o+2,2)}, v{vL8}, {sr(sWS,4)}, s{sHo} offen offset:512 sc1", "H")
        else:
            geglu(k, i, [(0, 1)], [o])
            k.vmem(f"buffer_store_dwordx2 {vr(o,2)}, v{vL8}, {sr(sWS,4)}, s{sHo} offen sc1", "H")
        k.e(f"s_add_u32 s{sHo}, s{sHo}, {144*1024}")
        if i == Opt.kvbar:
            barrier(k, {"KV"})
            sk = lab(k, "kvf")
            k.e(f"s_cmp_lg_u32 s{sW}, 0\ns_cbranch_scc1 {sk}")
            k.e(f"s_lshl_b32 s{sU}, s{sMb}, 7\ns_lshl_b32 s{sV}, s{sH}, 2\ns_add_u32 s{sU}, s{sU}, s{sV}\ns_add_u32 s{sU}, s{sU}, {hex(WS_F+F_KV)}")
            flag_store(k, vLd, sU)
            k.label(sk)
        if i == Opt.kvpoll: fetch_kv(k)
    stamp(k, 5)

def fetch_kv(k):
    t = 16
    sk = lab(k, "nokv")
    k.e(f"s_cmp_eq_u32 s{sMb}, 0\ns_cselect_b32 s{sZ+2}, 0, s{sWS+2}\ns_cbranch_scc1 {sk}")
    k.e(f"s_lshl_b32 s{sU}, s{sMb}, 7\ns_lshl_b32 s{sV}, s{sH}, 2\ns_add_u32 s{sU}, s{sU}, s{sV}\ns_add_u32 s{sU}, s{sU}, {hex(WS_F+F_KV-128)}\nv_mov_b32 v{t}, 0")
    save = list(k.vm)
    poll(k, t, t + 1, sU, "pkv")
    k.vm = save
    k.label(sk)
    k.e(f"v_lshlrev_b32 v{t}, 4, v0")
    k.e(f"s_lshl_b32 s31, s{sH}, 7\ns_lshl_b32 s32, s{sMb}, 4\ns_add_u32 s31, s31, s32\ns_add_u32 s31, s31, s{sW}\ns_lshl_b32 s31, s31, 10\ns_add_u32 s31, s31, {hex(WS_K - 16*1024)}")
    k.e(f"s_lshl_b32 s32, s{sH}, 17\ns_lshl_b32 s33, s{sMb}, 13\ns_add_u32 s32, s32, s33\ns_lshl_b32 s33, s{sW}, 10\ns_add_u32 s32, s32, s33\ns_add_u32 s32, s32, {hex(WS_V - 8192)}")
    for n, (so, add, m0) in enumerate([(31, 0, L_K), (31, 8192, L_K + 8192), (32, 0, L_V), (32, 65536, L_V + 16384)]):
        k.e(f"s_add_u32 s34, s{so}, {add}\ns_add_u32 m0, s33, {m0}")
        k.vmem(f"buffer_load_dwordx4 v{t}, {sr(sZ,4)}, s34 offen{Opt.hsc} lds", "NKV")

KF, VF0, VF1, S0, P8, QC, O0 = 16, 84, 120, 156, 224, 228, 244
vKa, vVa, vM, vT, vC, vNeg, vSum, vQa, vO8 = 2, 3, 5, 6, 232, 234, 236, 4, 7
sMk, sN, sOo, sAL = 96, 28, 29, 30
MK = [96, 98, 100, 32]
def S(t): return S0 + 4 * t
def k_read(k, t):
    for hf in range(2): k.ds(f"ds_read_b64 {vr(KF+4*t+2*hf,2)}, v{vKa} offset:{t*1024 + hf*512}", ("K", t))
def v_read(k, db, t):
    k.ds(f"ds_read_b64_tr_b16 {vr((VF0,VF1)[db]+2*t,2)}, v{vVa} offset:{db*16384 + t*512}", ("V", db, t))

def attn_block(k, blk, hook):
    k.need_lgkm({"Q"})
    vq = [(db, t) for t in range(17) for db in range(2)]
    for t in range(17):
        k.need_lgkm({("K", t)})
        k.e(f"v_mfma_f32_16x16x32_bf16 {vr(S(t),4)}, {vr(KF+4*t,4)}, {vr(QC,4)}, 0")
        v_read(k, *vq[2*t]); v_read(k, *vq[2*t+1])
    k.e(f"v_add_u32 v{vKa}, 1024, v{vKa}\nv_add_u32 v{vVa}, 512, v{vVa}")
    hook(k, 0)
    nm, md = lab(k, "nomask"), lab(k, "maskd")
    k.e(f"s_cmp_eq_u32 s{sN}, 0\ns_cbranch_scc1 {nm}\ns_nop 7")
    for t in range(16):
        for r in range(4): k.e(f"v_mov_b32 v{S(t)+r}, {f32hex(-1e30)}")
        if t < 15: k.e(f"s_cmp_eq_u32 s{sN}, {t+1}\ns_cbranch_scc1 {md}")
    k.label(md)
    k.e(f"s_sub_u32 s{sN}, s{sN}, 1")
    k.label(nm)
    vals = [S(t) + r for t in range(1, 16) for r in range(4)]
    k.e(f"v_max3_f32 v{vM}, v{vals[0]}, v{vals[1]}, v{vals[2]}\nv_max3_f32 v{vT}, v{vals[3]}, v{vals[4]}, v{vals[5]}")
    rest = vals[6:]
    for n in range(0, len(rest), 2):
        d = vM if (n // 2) % 2 == 0 else vT
        k.e(f"v_max3_f32 v{d}, v{d}, v{rest[n]}, v{rest[n+1]}")
    for r in range(4): k.e(f"v_cndmask_b32 v{S(0)+r}, v{S(0)+r}, v{S(16)+r}, {sr(MK[r],2)}")
    k.e(f"v_max3_f32 v{vM}, v{vM}, v{S(0)}, v{S(0)+1}\nv_max3_f32 v{vT}, v{vT}, v{S(0)+2}, v{S(0)+3}\nv_max_f32 v{vM}, v{vM}, v{vT}")
    for p in ("v_permlane16_swap_b32", "v_permlane32_swap_b32"):
        k.e(f"v_mov_b32 v{vT}, v{vM}\n{p} v{vM}, v{vT}\nv_max_f32 v{vM}, v{vM}, v{vT}")
    k.e(f"v_mul_f32 v{vNeg}, v{vC}, v{vM}\nv_sub_f32 v{vNeg}, 0, v{vNeg}")
    hook(k, 1)
    kq = list(range(17)) if blk == 0 else []
    if blk == 0: k.ds(f"ds_read_b128 {vr(QC,4)}, v{vQa} offset:1024", "Q")
    first = True
    for u in range(8):
        for t in (2*u, 2*u+1):
            s = S(t)
            for hf in (0, 2):
                k.e(f"v_pk_fma_f32 {vr(s+hf,2)}, {vr(s+hf,2)}, {vr(vC,2)}, {vr(vNeg,2)} op_sel_hi:[1,0,0]")
            for r in range(4): k.e(f"v_exp_f32 v{s+r}, v{s+r}")
            if kq: k_read(k, kq.pop(0))
            for hf in (0, 2):
                if first:
                    k.e(f"v_pk_add_f32 {vr(vSum,2)}, {vr(s,2)}, {vr(s+2,2)}"); first = False; break
                k.e(f"v_pk_add_f32 {vr(vSum,2)}, {vr(vSum,2)}, {vr(s+hf,2)}")
            if t == 0:
                e = S(16)
                for r in range(4): k.e(f"v_cndmask_b32 v{e+r}, 0, v{s+r}, {sr(MK[r],2)}")
                for r in range(4): k.e(f"v_cndmask_b32 v{s+r}, v{s+r}, 0, {sr(MK[r],2)}")
                k.e(f"v_cvt_pk_bf16_f32 v{P8}, v{e}, v{e+1}\nv_cvt_pk_bf16_f32 v{P8+1}, v{e+2}, v{e+3}")
        p = S(2*u)
        for x in range(4): k.e(f"v_cvt_pk_bf16_f32 v{p+x}, v{p+2*x}, v{p+2*x+1}")
        for db in range(2):
            if u == 0:
                k.need_lgkm({("V", db, 16)})
                k.e(f"v_mfma_f32_16x16x32_bf16 {vr(O0+4*db,4)}, {vr((VF0,VF1)[db]+32,4)}, {vr(P8,4)}, 0")
            else:
                k.e(f"v_mfma_f32_16x16x32_bf16 {vr(O0+4*db,4)}, {vr((VF0,VF1)[db]+4*(u-1),4)}, {vr(S(2*u-2),4)}, {vr(O0+4*db,4)}")
        if u in (2, 5): hook(k, 2 + (u == 5))
    while kq: k_read(k, kq.pop(0))
    k.e(f"v_add_f32 v{vSum}, v{vSum}, v{vSum+1}")
    for db in range(2):
        k.e(f"v_mfma_f32_16x16x32_bf16 {vr(O0+4*db,4)}, {vr((VF0,VF1)[db]+28,4)}, {vr(S(14),4)}, {vr(O0+4*db,4)}")
    for p in ("v_permlane16_swap_b32", "v_permlane32_swap_b32"):
        k.e(f"v_mov_b32 v{vT}, v{vSum}\n{p} v{vSum}, v{vT}\nv_add_f32 v{vSum}, v{vSum}, v{vT}")
    k.e(f"v_rcp_f32 v{vSum}, v{vSum}")
    for x in range(4): k.e(f"v_pk_mul_f32 {vr(O0+2*x,2)}, {vr(O0+2*x,2)}, {vr(vSum,2)} op_sel_hi:[1,0]")
    for x in range(4): k.e(f"v_cvt_pk_bf16_f32 v{S(16)+x}, v{O0+2*x}, v{O0+2*x+1}")
    for hf in range(2):
        k.vmem(f"buffer_store_dwordx2 {vr(S(16)+2*hf,2)}, v{vO8}, {sr(sWS,4)}, s{sOo} offen offset:{hf*512} sc1", "O")
    k.e(f"s_add_u32 s{sOo}, s{sOo}, {144*1024}")

def wg_flag(k, base, vt):
    sk = lab(k, "wf")
    k.e(f"s_cmp_lg_u32 s{sW}, 0\ns_cbranch_scc1 {sk}")
    k.e(f"s_lshl_b32 s{sU}, s{sMb}, 7\ns_lshl_b32 s{sV}, s{sH}, 2\ns_add_u32 s{sU}, s{sU}, s{sV}\ns_add_u32 s{sU}, s{sU}, {hex(WS_F+base)}")
    flag_store(k, vt, sU)
    k.label(sk)

def phase_c(k):
    k.e(f"v_lshlrev_b32 v{vO8}, 3, v0")
    k.e(f"s_lshl_b32 s31, s{sW}, 1\ns_lshl_b32 s{sOo}, s{sMb}, 4\ns_add_u32 s{sOo}, s{sOo}, s31\ns_mul_i32 s{sOo}, s{sOo}, 144")
    k.e(f"s_add_u32 s{sOo}, s{sOo}, s{sH}\ns_add_u32 s{sOo}, s{sOo}, 112\ns_lshl_b32 s{sOo}, s{sOo}, 10")
    k.e(f"s_sub_u32 s{sN}, 16, s31\ns_cmp_eq_u32 s{sMb}, 0\ns_cselect_b32 s{sN}, s{sN}, 0")
    k.e(f"s_lshl_b32 s31, s{sW}, 11\ns_add_u32 s34, s31, {L_K}\nv_add_u32 v{vKa}, s34, v{vO8}")
    k.e(f"s_add_u32 s34, s31, {L_Q}\nv_lshlrev_b32 v{vQa}, 4, v0\nv_add_u32 v{vQa}, s34, v{vQa}")
    k.e(f"s_lshl_b32 s31, s{sW}, 10\ns_add_u32 s34, s31, {L_V}\nv_add_u32 v{vVa}, s34, v{vO8}")
    k.e(f"v_and_b32 v{vM}, 15, v0\nv_lshrrev_b32 v{vT}, 4, v0\nv_lshlrev_b32 v{vT}, 2, v{vT}")
    for r in range(4):
        k.e(f"v_cmp_le_u32 {sr(MK[r],2)}, v{vT}, v{vM}")
        if r < 3: k.e(f"v_add_u32 v{vT}, 1, v{vT}")
    k.e(f"v_mov_b32 v{vC}, {f32hex(math.log2(math.e) / math.sqrt(32.0))}")
    for r in (VF0 + 34, VF0 + 35, VF1 + 34, VF1 + 35, P8 + 2, P8 + 3): k.e(f"v_mov_b32 v{r}, 0")

def phase_c2(k):
    k.ds(f"ds_read_b128 {vr(QC,4)}, v{vQa}", "Q")
    for t in range(17): k_read(k, t)
    def hook0(k, n):
        if n == Opt.hhook:
            k.e("s_waitcnt vmcnt(0)\ns_barrier"); k.vm = []
            wg_flag(k, F_H, vT)
    attn_block(k, 0, hook0)
    attn_block(k, 1, lambda k, n: None)
    stamp(k, 6)

g2Hs, g2Bs, g2Xs, g2Os = 24, 16, 8, 12
g2KA, g2KB, g2MA, g2MB, g2Mt, g2Nt, g2Half = 87, 88, 89, 92, 20, 21, 22
g2Wr, g2Rd, g2D, g2Loop, g2T2, g2w = 28, 29, 30, 31, 32, 33
g2DB = 8
g2L16, g2A, g2X, g2B = 12, 1, 3, 4
FR0, SETSZ, ACC2, XR = 16, 64, 144, 208
SLOT = 32768
def afr2(p, i, kk): return FR0 + p * SETSZ + (i * 2 + kk) * 4
def bfr2(p, b, kk): return FR0 + p * SETSZ + 32 + (b * 2 + kk) * 4
def acc2(i, b): return ACC2 + (i * 4 + b) * 4

def g2_ids(k):
    k.e(f"s_and_b32 s{sU}, s2, 7\ns_lshr_b32 s{sV}, s2, 3\ns_and_b32 s{g2Half}, s{sU}, 1")
    k.e(f"s_lshr_b32 s{g2Mt}, s{sU}, 1\ns_lshl_b32 s{g2Mt}, s{g2Mt}, 2\ns_and_b32 s{sU}, s{sV}, 3\ns_add_u32 s{g2Mt}, s{g2Mt}, s{sU}\ns_lshr_b32 s{g2Nt}, s{sV}, 2")

def g2_loader_setup(k):
    g2_ids(k)
    k.e(f"s_and_b32 s{sU}, s{sW}, 3")
    k.e(f"s_lshl_b32 s{g2KA}, s{g2Mt}, 3\ns_lshl_b32 s{sV}, s{sU}, 1\ns_add_u32 s{g2KA}, s{g2KA}, s{sV}\ns_mul_i32 s{g2KA}, s{g2KA}, 144")
    k.e(f"s_mul_i32 s{sV}, s{g2Half}, 72\ns_add_u32 s{g2KA}, s{g2KA}, s{sV}\ns_lshl_b32 s{g2KA}, s{g2KA}, 10")
    k.e(f"s_mul_i32 s{g2KB}, s{g2Half}, {36*64*2048}")
    k.e(f"s_lshl_b32 s{g2MA}, s{sU}, 12\ns_lshl_b32 s{g2MB}, s{sU}, 10\ns_add_u32 s{g2MB}, s{g2MB}, 16384")
    k.e(f"v_lshrrev_b32 v{g2DB}, 4, v0\nv_and_b32 v{g2DB+1}, 15, v0\ns_and_b32 s{sV}, s{sU}, 1\ns_lshl_b32 s{sV}, s{sV}, 2")
    k.e(f"v_add_u32 v{g2DB+2}, s{sV}, v{g2DB}\nv_lshlrev_b32 v{g2DB+2}, 1, v{g2DB+2}\nv_xor_b32 v{g2DB+1}, v{g2DB+1}, v{g2DB+2}")
    k.e(f"v_lshlrev_b32 v{g2DB+1}, 4, v{g2DB+1}\nv_lshl_add_u32 v{g2DB}, v{g2DB}, 11, v{g2DB+1}")
    k.e(f"s_lshl_b32 s{sU}, s{sU}, 13\ns_lshl_b32 s{sV}, s{g2Nt}, 8\ns_add_u32 s{sU}, s{sU}, s{sV}\nv_add_u32 v{g2DB}, s{sU}, v{g2DB}")
    for i in range(1, 4): k.e(f"v_add_u32 v{g2DB+i}, {i*16*2048}, v{g2DB}")
    k.e(f"v_lshlrev_b32 v{g2L16}, 4, v0")
    srd(k, g2Bs, pD, 3584 * 2048)

def g2_a_dma(base_sgpr_or_imm, tag):
    h = Opt.hsc
    return [(f"s_add_u32 m0, s{g2MA}, {base_sgpr_or_imm}", None),
            (f"buffer_load_dwordx4 v{g2L16}, {sr(g2Hs,4)}, s{g2KA} offen{h} lds", tag),
            (f"buffer_load_dwordx4 v{g2L16}, {sr(g2Hs,4)}, s{g2KA} offen offset:1024{h} lds", tag),
            (f"s_add_u32 s{sT}, s{g2KA}, {144*1024}\ns_add_u32 m0, m0, 2048", None),
            (f"buffer_load_dwordx4 v{g2L16}, {sr(g2Hs,4)}, s{sT} offen{h} lds", tag),
            (f"buffer_load_dwordx4 v{g2L16}, {sr(g2Hs,4)}, s{sT} offen offset:1024{h} lds", tag),
            (f"s_add_u32 s{g2KA}, s{g2KA}, 2048", None)]

def emit2(k, items):
    for text, tag in items:
        if tag is None: k.e(text)
        elif text.startswith("ds_"): k.ds(text, tag)
        else: k.vmem(text, tag)

def g2_step_dma(k, tag):
    emit2(k, g2_a_dma(f"s{g2Wr}", tag))
    for i in range(4):
        k.e(f"s_add_u32 m0, s{g2MB}, s{g2Wr}" if i == 0 else "s_add_u32 m0, m0, 4096")
        k.vmem(f"buffer_load_dwordx4 v{g2DB+i}, {sr(g2Bs,4)}, s{g2KB} offen lds", tag)
    k.e(f"s_add_u32 s{g2KB}, s{g2KB}, {64*2048}\ns_add_u32 s{g2Wr}, s{g2Wr}, {SLOT}\ns_cmp_eq_u32 s{g2Wr}, {Opt.NS*SLOT}\ns_cselect_b32 s{g2Wr}, 0, s{g2Wr}")

def g2_loader(k):
    NS, N = Opt.NS, 36
    vF, vFd = 13, 14
    k.e(f"v_and_b32 v{vF}, 31, v0\nv_lshlrev_b32 v{vF}, 2, v{vF}\ns_lshr_b32 s{sU}, s{g2Mt}, 1\ns_lshl_b32 s{sU}, s{sU}, 7\nv_add_u32 v{vF}, s{sU}, v{vF}")
    k.e(f"s_mov_b32 s{sU}, {hex(WS_F+F_H)}")
    poll(k, vF, vFd, sU, "ph")
    stamp(k, 7)
    for st in range(2): emit2(k, g2_a_dma(st * SLOT, ("D", st)))
    k.e("s_barrier")
    k.e(f"s_mov_b32 s{g2Wr}, {2*SLOT}")
    for st in range(2, NS): g2_step_dma(k, ("D", st))
    k.need_vm({("D", 0)}); k.e("s_barrier")
    k.need_vm({("D", 1)})
    sw = 56 - 36 - NS
    k.e(f"s_mov_b32 s{g2Loop}, 0\ns_cmp_eq_u32 s{g2Half}, 0")
    k.e(csel(g2D, 1000, sw))
    k.e(f"s_mov_b32 s{sU}, {hex(WS_F+F_O)}")
    lp, ns, nf = lab(k, "ll"), lab(k, "lns"), lab(k, "lnf")
    k.label(lp)
    k.e("s_barrier")
    k.e(f"s_cmp_lg_u32 s{g2Loop}, s{g2D}\ns_cbranch_scc1 {ns}")
    k.e(f"v_cmp_ne_u32 vcc, s{sNon}, v{vFd}\ns_nop 1\ns_cbranch_vccz {nf}")
    save = list(k.vm)
    poll(k, vF, vFd, sU, "po")
    k.vm = save
    k.label(nf)
    k.e(f"s_mov_b32 s{g2Bs}, s{pWo}\ns_mov_b32 s{g2Bs+1}, s{pWo+1}\ns_mov_b32 s{g2Bs+2}, {1024*2048}\ns_mov_b32 s{g2KB}, 0")
    k.label(ns)
    g2_step_dma(k, ("D", NS))
    n2 = lab(k, "lnp")
    k.e(f"s_cmp_lg_u32 s{g2Loop}, {sw - NS}\ns_cbranch_scc1 {n2}")
    k.e(f"buffer_load_dword v{vFd}, v{vF}, {sr(sWS,4)}, s{sU} offen sc1")
    k.label(n2)
    k.need_vm({("D", 2)})
    k.e(f"s_add_u32 s{g2Loop}, s{g2Loop}, 1\ns_cmp_lg_u32 s{g2Loop}, {N - NS}\ns_cbranch_scc1 {lp}")
    for j in range(NS - 1):
        k.e("s_barrier")
        k.need_vm({("D", 3 + j)})

def g2_reads(p, tag):
    it = []
    for x in range(4):
        for kk in range(2):
            for hf in range(2): it.append((f"ds_read_b64 {vr(afr2(p,x,kk)+2*hf,2)}, v{g2A} offset:{(x*2+kk)*1024 + hf*512}", tag))
        for kk in range(2):
            for rd in range(2): it.append((f"ds_read_b64_tr_b16 {vr(bfr2(p,x,kk)+2*rd,2)}, v{g2B+x} offset:{(32*kk+16*rd)*256}", tag))
    return it

def g2_rot():
    NS = Opt.NS
    return [f"s_add_u32 s{g2Rd}, s{g2Rd}, {SLOT}\ns_mov_b32 s{g2D}, {SLOT}",
            f"s_cmp_eq_u32 s{g2Rd}, {NS*SLOT}\ns_cselect_b32 s{g2Rd}, 0, s{g2Rd}\ns_cmov_b32 s{g2D}, {hex((-(NS-1)*SLOT) & 0xffffffff)}",
            f"v_add_u32 v{g2A}, s{g2D}, v{g2A}"] + [f"v_add_u32 v{g2B+b}, s{g2D}, v{g2B+b}" for b in range(4)]

def g2_step(k, p, reads, extra=None):
    k.e("s_waitcnt lgkmcnt(0)"); k.lgkm = []
    if reads: k.e("s_barrier")
    seq = []
    for i in range(4):
        for n, b in enumerate(range(4) if i % 2 == 0 else range(3, -1, -1)):
            kks = (0, 1) if n % 2 == 0 else (1, 0)
            seq += [(i, b, kks[0]), (i, b, kks[1])]
    fill = {g: [] for g in range(32)}
    if reads:
        rd = g2_reads(1 - p, "R")
        for x, it in enumerate(rd): fill[(x * 27) // len(rd)].append(it)
        rot = g2_rot()
        fill[20].append((rot[0], None)); fill[22].append((rot[1], None))
        for x, t in enumerate(rot[2:]): fill[27 + x].append((t, None))
    for x, it in enumerate(extra or []): fill[(x * 32) // len(extra)].append(it)
    for g, (i, b, kk) in enumerate(seq):
        a = acc2(i, b)
        k.e(f"v_mfma_f32_16x16x32_bf16 {vr(a,4)}, {vr(bfr2(p,b,kk),4)}, {vr(afr2(p,i,kk),4)}, {vr(a,4)}")
        emit2(k, fill[g])

def g2_compute(k):
    g2_ids(k)
    k.e(f"s_lshr_b32 s{sU}, s{sW}, 1\ns_lshl_b32 s{sV}, s{sU}, 13\nv_lshlrev_b32 v{g2A}, 3, v0\nv_add_u32 v{g2A}, s{sV}, v{g2A}")
    k.e(f"v_lshlrev_b32 v{g2L16}, 4, v0")
    k.e(f"v_lshrrev_b32 v8, 2, v0\nv_and_b32 v9, 7, v8\nv_lshlrev_b32 v9, 1, v9\nv_bfe_u32 v10, v0, 1, 1\nv_xor_b32 v9, v9, v10")
    k.e(f"v_lshlrev_b32 v8, 8, v8\nv_and_b32 v10, 1, v0\nv_lshl_add_u32 v8, v10, 3, v8\nv_add_u32 v8, 16384, v8")
    k.e(f"s_and_b32 s{sV}, s{sW}, 1\ns_lshl_b32 s{sV}, s{sV}, 3")
    for b in range(4): k.e(f"s_add_u32 s{sT}, s{sV}, {2*b}\nv_xor_b32 v10, s{sT}, v9\nv_lshl_add_u32 v{g2B+b}, v10, 4, v8")
    k.e(f"v_and_b32 v8, 15, v0\nv_lshlrev_b32 v{g2X}, 11, v8\nv_bfe_u32 v8, v0, 4, 1\nv_lshl_add_u32 v{g2X}, v8, 5, v{g2X}\nv_lshrrev_b32 v8, 5, v0\nv_lshl_add_u32 v{g2X}, v8, 4, v{g2X}")
    k.e(f"s_lshl_b32 s{sU}, s{sU}, 6\ns_lshl_b32 s{g2T2}, s{g2Mt}, 7\ns_add_u32 s{g2T2}, s{g2T2}, s{sU}\ns_lshl_b32 s{sU}, s{g2Half}, 5\ns_add_u32 s{g2T2}, s{g2T2}, s{sU}\ns_lshl_b32 s{g2T2}, s{g2T2}, 11")
    k.e(f"s_lshl_b32 s{sU}, s{g2Nt}, 8\ns_lshl_b32 s{sV}, s{sV}, 4\ns_add_u32 s{g2T2}, s{g2T2}, s{sU}\ns_add_u32 s{g2T2}, s{g2T2}, s{sV}")
    srd(k, g2Xs, pX, 0x400000)
    srd(k, g2Os, pOut, 0x400000)
    for r in range(ACC2, ACC2 + 64): k.e(f"v_mov_b32 v{r}, 0")
    k.e(f"s_mov_b32 s{g2Rd}, 0\ns_mov_b32 s{g2Loop}, 0")
    k.e("s_waitcnt vmcnt(0)\ns_barrier"); k.vm = []
    wg_flag(k, F_O, 8)
    k.e("s_barrier")
    stamp(k, 8)
    emit2(k, g2_reads(0, "R"))
    for t in g2_rot(): k.e(t)
    lp = lab(k, "g2l")
    k.e(".p2align 6")
    k.label(lp)
    g2_step(k, 0, True); g2_step(k, 1, True)
    k.e(f"s_add_u32 s{g2Loop}, s{g2Loop}, 2\ns_cmp_lg_u32 s{g2Loop}, 34\ns_cbranch_scc1 {lp}")
    xl = []
    for i in range(2):
        xl.append((f"s_add_u32 s{sT}, s{g2T2}, {i*16*2048}", None))
        for pr in range(2): xl.append((f"buffer_load_dwordx4 {vr(XR+(i*2+pr)*4,4)}, v{g2X}, {sr(g2Xs,4)}, s{sT} offen offset:{pr*64}", "X"))
    g2_step(k, 0, True, extra=xl); g2_step(k, 1, False)
    stamp(k, 9)
    k.e(f"s_lshl_b32 s{sU}, s{g2Mt}, 3\ns_add_u32 s{sU}, s{sU}, s{g2Nt}\ns_lshl_b32 s{sU}, s{sU}, 3\ns_add_u32 s{sU}, s{sU}, s{sW}\ns_lshl_b32 s{sV}, s{g2Half}, 2")
    k.e(f"s_add_u32 s34, s{sU}, s{sV}\ns_xor_b32 s35, s34, 4")
    k.e(f"s_lshl_b32 s36, s34, 13\ns_add_u32 s36, s36, {hex(WS_P)}\ns_lshl_b32 s37, s35, 13\ns_add_u32 s37, s37, {hex(WS_P)}")
    k.e(f"s_lshl_b32 s34, s34, 7\ns_add_u32 s34, s34, {hex(WS_F+F_P)}\ns_lshl_b32 s35, s35, 7\ns_add_u32 s35, s35, {hex(WS_F+F_P)}")
    h1, fin = lab(k, "h1"), lab(k, "fin")
    k.e(f"v_mov_b32 v8, 0\ns_cmp_eq_u32 s{g2Half}, 1\ns_cbranch_scc1 {h1}")
    save = list(k.vm)
    for half in range(2):
        if half == 1:
            k.label(h1); k.vm = list(save)
        own, send = (0, 2) if half == 0 else (2, 0)
        PR = FR0
        if Opt.pbf16:
            for n in range(4):
                a = acc2(send + n // 2, 2 * (n % 2))
                for d in range(4): k.e(f"v_cvt_pk_bf16_f32 v{PR+4*n+d}, v{a+2*d}, v{a+2*d+1}")
                k.e(f"buffer_store_dwordx4 {vr(PR+4*n,4)}, v{g2L16}, {sr(g2Hs,4)}, s36 offen offset:{n*1024} sc1")
        else:
            for n in range(8):
                if n == 4: k.e("s_add_u32 s36, s36, 4096")
                k.e(f"buffer_store_dwordx4 {vr(acc2(send + n // 4, n % 4),4)}, v{g2L16}, {sr(g2Hs,4)}, s36 offen offset:{(n%4)*1024} sc1")
        k.e("s_waitcnt vmcnt(0)")
        flag_store(k, 9, 34)
        poll(k, 8, 9, 35, "pp")
        stamp(k, 10)
        PR = FR0 + 32
        nld = 4 if Opt.pbf16 else 8
        for n in range(nld):
            if n == 4: k.e("s_add_u32 s37, s37, 4096")
            k.vmem(f"buffer_load_dwordx4 {vr(PR+4*n,4)}, v{g2L16}, {sr(g2Hs,4)}, s37 offen offset:{(n%4)*1024} sc1", ("P", n))
        for i in range(2):
            for pr in range(2):
                a, b = acc2(own + i, 2 * pr), acc2(own + i, 2 * pr + 1)
                t = FR0 + ((i * 2 + pr) & 1) * 8
                if Opt.pbf16:
                    k.need_vm({("P", i * 2 + pr)})
                    q = PR + 4 * (i * 2 + pr)
                    for d in range(4): k.e(f"v_lshlrev_b32 v{t+2*d}, 16, v{q+d}\nv_and_b32 v{t+2*d+1}, 0xffff0000, v{q+d}")
                    for d in range(4): k.e(f"v_pk_add_f32 {vr(a+2*d,2)}, {vr(a+2*d,2)}, {vr(t+2*d,2)}")
                else:
                    k.need_vm({("P", i * 4 + 2 * pr + 1)})
                    q = PR + 4 * (i * 4 + 2 * pr)
                    for d in range(4): k.e(f"v_pk_add_f32 {vr(a+2*d,2)}, {vr(a+2*d,2)}, {vr(q+2*d,2)}")
                for r in range(4): k.e(f"v_permlane16_swap_b32 v{a+r}, v{b+r}")
                x = XR + (i * 2 + pr) * 4
                for d in range(4): k.e(f"v_lshlrev_b32 v{t+2*d}, 16, v{x+d}\nv_and_b32 v{t+2*d+1}, 0xffff0000, v{x+d}")
                for d in range(4): k.e(f"v_pk_add_f32 {vr(t+2*d,2)}, {vr(t+2*d,2)}, {vr(a+2*d,2)}")
                for d in range(4): k.e(f"v_cvt_pk_bf16_f32 v{x+d}, v{t+2*d}, v{t+2*d+1}")
                k.e(f"s_add_u32 s{sT}, s{g2T2}, {i*16*2048}")
                k.vmem(f"buffer_store_dwordx4 {vr(x,4)}, v{g2X}, {sr(g2Os,4)}, s{sT} offen offset:{pr*64}", "st")
        if half == 0: k.e(f"s_branch {fin}")
    k.label(fin)

def swap23(k, d, s, t):
    k.e(f"v_lshrrev_b32 v{t}, 1, v{s}\nv_xor_b32 v{t}, v{t}, v{s}\nv_and_b32 v{t}, 4, v{t}\nv_mul_u32_u24 v{t}, 3, v{t}\nv_xor_b32 v{d}, v{s}, v{t}")

def qkv_voff(k, d, vL, t0, t1, t2):
    k.e(f"v_mul_u32_u24 v{t0}, 5462, v{vL}\nv_lshrrev_b32 v{t0}, 16, v{t0}")
    k.e(f"v_mul_u32_u24 v{t1}, 12, v{t0}\nv_sub_u32 v{t1}, v{vL}, v{t1}")
    k.e(f"v_lshrrev_b32 v{t2}, 1, v{t0}\nv_and_b32 v{t2}, 2, v{t2}\nv_xor_b32 v{t1}, v{t1}, v{t2}")
    swap23(k, d, t0, t2)
    k.e(f"v_mul_u32_u24 v{d}, 6144, v{d}")
    k.e(f"v_lshrrev_b32 v{t2}, 2, v{t1}\nv_lshl_add_u32 v{d}, v{t2}, 11, v{d}")
    k.e(f"v_and_b32 v{t1}, 3, v{t1}\nv_lshl_add_u32 v{d}, v{t1}, 4, v{d}\nv_add_u32 v{d}, s{sNbS}, v{d}")

def gen_fused(name):
    uid[0] = 0
    k = Kern(name)
    k.e(header(name))
    end = "L_end"
    k.e(f"s_cmp_ge_u32 s2, 256\ns_cbranch_scc1 {end}")
    if Opt.timing: k.e("s_memtime s[60:61]")
    k.e("s_load_dwordx4 s[4:7], s[0:1], 0\ns_load_dwordx8 s[48:55], s[0:1], 32\ns_load_dwordx4 s[56:59], s[0:1], 64")
    k.e(f"s_load_dwordx2 s[{pWo}:{pWo+1}], s[0:1], 16\ns_memrealtime s[100:101]")
    k.e(f"v_lshrrev_b32 v9, 6, v0\nv_and_b32 v0, 63, v0\nv_readfirstlane_b32 s{sW}, v9")
    k.e(f"s_and_b32 s{sH}, s2, 7\ns_lshl_b32 s{sH}, s{sH}, 2\ns_lshr_b32 s3, s2, 3\ns_and_b32 s3, s3, 3\ns_add_u32 s{sH}, s{sH}, s3")
    k.e(f"s_lshr_b32 s{sMb}, s2, 5\ns_lshr_b32 s{sWr}, s{sW}, 2\ns_and_b32 s{sWc_}, s{sW}, 3")
    sRA, sRB = sFl1, sFl2
    if Opt.rot:
        k.e(f"s_and_b32 s3, s{sH}, 1\ns_lshl_b32 s3, s3, 2\ns_xor_b32 s{sRA}, s{sW}, s3")
        k.e(f"s_and_b32 s3, s{sMb}, 1\ns_lshl_b32 s3, s3, 2\ns_xor_b32 s{sRB}, s{sW}, s3")
    else:
        k.e(f"s_mov_b32 s{sRA}, s{sW}\ns_mov_b32 s{sRB}, s{sW}")
    k.e(f"s_and_b32 s3, s{sW}, 1\ns_lshl_b32 s3, s3, 2")
    k.e(f"v_lshrrev_b32 v11, 4, v0\nv_add_u32 v11, s3, v11\nv_and_b32 v12, 7, v0\nv_xor_b32 v11, v11, v12\nv_lshlrev_b32 v11, 4, v11")
    k.e(f"v_lshrrev_b32 v12, 3, v0\nv_lshl_add_u32 v{vDA}, v12, 11, v11")
    k.e(f"s_lshl_b32 s{sKA}, s{sMb}, 19\ns_lshl_b32 s3, s{sRA}, 14\ns_add_u32 s{sKA}, s{sKA}, s3\ns_lshl_b32 s{sMA}, s{sRA}, 10")
    k.e(f"s_mov_b32 s{sX+2}, 0x400000\ns_mov_b32 s{sX+3}, 0x20000")
    k.e("s_waitcnt lgkmcnt(0)")
    k.e(f"s_mov_b32 s{sX}, s{pX}\ns_mov_b32 s{sX+1}, s{pX+1}")
    emit_items(k, dma_a(0, 0)); emit_items(k, dma_a(0, 1))
    k.e(f"s_lshl_b32 s{sNbS}, s{sH}, 6\ns_mul_i32 s{sNbG}, s{sH}, 224")
    k.e(f"s_lshl_b32 s3, s{sRB}, 10\ns_add_u32 s3, s3, {LDS_B}\ns_cmp_eq_u32 s{sRB}, 7")
    k.e(f"s_cselect_b32 s{sWa}, s{pQKV}, s{pG}\ns_cselect_b32 s{sWa+1}, s{pQKV+1}, s{pG+1}")
    k.e(f"s_cselect_b32 s{sWb}, s{pQKV}, s{pU}\ns_cselect_b32 s{sWb+1}, s{pQKV+1}, s{pU+1}")
    k.e(csel(sWa+2, 1024*6144, 1024*7168)); k.e(f"s_mov_b32 s{sWb+2}, s{sWa+2}\ns_mov_b32 s{sWa+3}, 0x20000\ns_mov_b32 s{sWb+3}, 0x20000")
    k.e(csel(sStep, 64*6144, 64*7168)); k.e(csel(sO[1], 16*6144, 32*7168))
    k.e(f"s_cselect_b32 s{sO[2]}, {32*6144}, 0"); k.e(csel(sO[3], 48*6144, 32*7168))
    k.e(f"s_cselect_b32 s{sM[0]}, {LDS_B+28672}, s3")
    k.e(csel(sM[1], 3072, 7168)); k.e(csel(sM[2], 6144, 14336)); k.e(csel(sM[3], 9216, 14336+7168))
    k.e(f"s_mov_b32 s{sKB}, 0\ns_mov_b32 s{sKQ}, 0")
    w7, w7d = lab(k, "w7"), lab(k, "w7d")
    k.e(f"s_cbranch_scc1 {w7}")
    k.e(f"s_lshl_b32 s3, s{sRB}, 6\nv_add_u32 v11, s3, v0\nv_mul_u32_u24 v12, 4682, v11\nv_lshrrev_b32 v12, 16, v12")
    k.e(f"v_mul_u32_u24 v13, 14, v12\nv_sub_u32 v13, v11, v13")
    swap23(k, vDB0, 12, 14)
    k.e(f"v_mul_u32_u24 v{vDB0}, 7168, v{vDB0}\nv_lshl_add_u32 v{vDB0}, v13, 4, v{vDB0}\nv_add_u32 v{vDB0}, s{sNbG}, v{vDB0}\ns_branch {w7d}")
    k.label(w7)
    qkv_voff(k, vDB0, 0, 12, 13, 14)
    k.label(w7d)
    for d in (1, 2, 3): k.e(f"s_add_u32 s{sM[d]}, s{sM[0]}, s{sM[d]}")
    for d in range(4): emit_items(k, dma_b(0, d))
    tab = 0
    for w, t in enumerate([2, 4, 5, 7, 8, 10, 11, 1]): tab |= t << (4 * w)
    k.e(f"s_lshl_b32 s3, s{sRB}, 2\ns_lshr_b32 s3, {hex(tab)}, s3\ns_and_b32 s3, s3, 15")
    k.e(f"s_lshl_b32 s{sM[4]}, s3, 10\ns_add_u32 s{sM[4]}, s{sM[4]}, {LDS_B+28672}\ns_lshl_b32 s3, s3, 6\nv_add_u32 v11, s3, v0")
    srd(k, sWc, pQKV, 1024 * 6144)
    qkv_voff(k, vDB1, 11, 12, 13, 14)
    emit_items(k, dma_b(0, 4))
    emit_items(k, dma_a(0, 2)); emit_items(k, dma_a(0, 3))
    srd(k, sWS, pWS, WS_BYTES)
    nn = lab(k, "nn")
    k.e(f"v_mov_b32 v{vNon}, 0\ns_or_b32 s3, s2, s{sW}\ns_cmp_lg_u32 s3, 0\ns_cbranch_scc1 {nn}")
    k.e(f"s_or_b32 s3, s100, 1\nv_mov_b32 v11, s3\nglobal_store_dword v{vNon}, v11, {sr(pDbg,2)} sc1")
    k.label(nn)
    k.e("v_and_b32 v11, 15, v0\nv_lshrrev_b32 v12, 4, v0")
    k.e("v_lshrrev_b32 v13, 1, v11\nv_xor_b32 v13, v13, v12\nv_lshlrev_b32 v13, 4, v13")
    k.e(f"v_lshl_add_u32 v{vA0}, v11, 7, v13\ns_lshl_b32 s3, s{sWr}, 14\nv_add_u32 v{vA0}, s3, v{vA0}\nv_xor_b32 v{vA1}, 64, v{vA0}")
    k.e("v_lshrrev_b32 v13, 1, v12\nv_lshlrev_b32 v13, 4, v13\nv_and_b32 v14, 1, v12\nv_lshl_add_u32 v13, v14, 2, v13")
    k.e("v_bfe_u32 v15, v0, 2, 2\nv_add_u32 v13, v13, v15\nv_and_b32 v15, 3, v0\nv_lshlrev_b32 v15, 3, v15")
    k.e(f"v_mul_u32_u24 v{vGU}, 224, v13\nv_add_u32 v{vGU}, v{vGU}, v15")
    k.e(f"v_mul_u32_u24 v{vQe}, 192, v13\nv_add_u32 v{vQe}, v{vQe}, v15\nv_add_u32 v{vQe}, {LDS_B+28672}, v{vQe}\nv_lshlrev_b32 v14, 5, v14")
    for r in range(ACC0, 256): k.e(f"v_mov_b32 v{r}, 0")
    k.e(f"s_mov_b32 s{sOne}, 0x3f803f80\ns_mov_b32 s{sStage}, 1")
    k.e(f"s_lshl_b32 s{sRow}, s{sMb}, 5\ns_add_u32 s{sRow}, s{sRow}, s{sH}\ns_lshl_b32 s{sRow}, s{sRow}, 3\ns_add_u32 s{sRow}, s{sRow}, s{sW}\ns_lshl_b32 s{sRow}, s{sRow}, 11")
    if Opt.timing:
        k.e(f"s_lshl_b32 s3, s2, 3\ns_add_u32 s3, s3, s{sW}\ns_lshl_b32 s3, s3, 6\ns_add_u32 s3, s3, {hex(WS_T)}\nv_mov_b32 v11, s100")
        k.e(f"buffer_store_dword v11, off, {sr(sWS,4)}, s3 offset:60")
    k.e(f"s_lshl_b32 s{sCs}, s{sMb}, 1\ns_add_u32 s{sFl2}, s{sCs}, 2\ns_add_u32 s{sCs}, s{sCs}, s{sWr}")
    k.e(f"s_cmp_eq_u32 s{sMb}, 7\ns_cmov_b32 s{sCs}, 99\ns_cmov_b32 s{sFl2}, 99")
    k.e(f"s_mov_b32 s{sFl1}, 2\ns_cmp_lg_u32 s{sW}, 0\ns_cmov_b32 s{sFl1}, 99\ns_cmov_b32 s{sFl2}, 99")
    k.e(f"s_and_b32 s3, s{sH}, 1")
    v1, join = lab(k, "v1"), lab(k, "join")
    k.e(f"s_cmp_eq_u32 s{sWc_}, 3\ns_cbranch_scc1 {v1}")
    save = (list(k.lgkm), list(k.vm))
    for var in (0, 1):
        if var == 1:
            k.label(v1)
            k.lgkm, k.vm = list(save[0]), list(save[1])
        if var == 0:
            k.e(f"s_lshl_b32 s{sU}, s{sWc_}, 1\ns_add_u32 s{sU}, s{sU}, s3")
            k.e(f"s_add_u32 s{sV}, s{sWc_}, 3\ns_lshl_b32 s{sNbS}, s{sV}, 6\ns_lshl_b32 s{sV}, s{sV}, 5\nv_xor_b32 v14, s{sV}, v14\nv_add_u32 v{vQe}, v{vQe}, v14")
        else:
            k.e(f"s_cmp_eq_u32 s3, 0\ns_cselect_b32 s{sU}, 6, 0")
            k.e(f"v_sub_u32 v{vQo}, v{vQe}, v14\nv_add_u32 v{vQe}, v{vQe}, v14")
        k.e(f"s_add_u32 s{sNbG}, s{sU}, 6\ns_lshl_b32 s{sNbG}, s{sNbG}, 6\ns_lshl_b32 s{sU}, s{sU}, 5\ns_add_u32 s{sU}, s{sU}, {LDS_B}\nv_add_u32 v{vGU}, s{sU}, v{vGU}")
        gen_main(k, var)
        stamp(k, 2)
        phase_b(k, var)
        phase_c(k)
        if Opt.hhook < 0:
            k.e("s_waitcnt vmcnt(0) lgkmcnt(0)\ns_barrier"); k.vm = []; k.lgkm = []
            wg_flag(k, F_H, vT)
        else:
            barrier(k, {"NKV"})
        if var == 0: k.e(f"s_branch {join}")
    k.label(join)
    k.lgkm, k.vm = [], []
    phase_c2(k)
    ld, done = lab(k, "ld"), lab(k, "done")
    k.e(f"s_cmp_ge_u32 s{sW}, 4\ns_cbranch_scc1 {ld}")
    g2_compute(k)
    k.e(f"s_branch {done}")
    k.label(ld)
    k.vm = []
    g2_loader(k)
    k.label(done)
    if Opt.timing:
        k.e("s_waitcnt vmcnt(0)")
        stamp(k, 11)
        k.e("s_memrealtime s[98:99]\ns_waitcnt lgkmcnt(0)")
        for n in range(1, 12): k.e(f"s_sub_u32 s{60+2*n}, s{60+2*n}, s60\nv_mov_b32 v{24+n}, s{60+2*n}")
        k.e(f"v_mov_b32 v24, 0\nv_mov_b32 v36, s98")
        k.e(f"s_lshl_b32 s3, s2, 3\ns_add_u32 s3, s3, s{sW}\ns_lshl_b32 s3, s3, 6\ns_add_u32 s3, s3, {hex(WS_T)}")
        for q in range(3): k.e(f"buffer_store_dwordx4 v[{24+4*q}:{27+4*q}], off, {sr(sWS,4)}, s3 offset:{16*q}")
        k.e(f"buffer_store_dword v36, off, {sr(sWS,4)}, s3 offset:48")
    k.label(end)
    k.e("s_endpgm")
    return k.text(), descriptor(name, 256, 102, 256), f"; @launch grid=(256,1,1) block=(512,1,1) lds={LDS_BYTES}"
```

```python
import re
TRANS = ("v_exp_f32", "v_log_f32", "v_rcp_f32", "v_rsq_f32", "v_sqrt_f32", "v_sin_f32", "v_cos_f32")
def regs_of(tok):
    tok = tok.strip()
    m = re.fullmatch(r"-?\|?([vsa])(\d+)\|?", tok)
    if m: return {(m.group(1), int(m.group(2)))}
    m = re.fullmatch(r"-?([vsa])\[(\d+):(\d+)\]", tok)
    if m: return {(m.group(1), i) for i in range(int(m.group(2)), int(m.group(3)) + 1)}
    if tok == "vcc_lo": return {("s", 106)}
    if tok == "vcc": return {("s", 106), ("s", 107)}
    if tok == "exec": return {("s", 126), ("s", 127)}
    if tok == "m0": return {("s", 124)}
    return set()

class I:
    def __init__(self, text):
        self.text = text
        t = text.split(";")[0].strip()
        self.op = t.split()[0]
        rest = t[len(self.op):].strip()
        ops = [x.strip() for x in rest.split(",")] if rest else []
        if ops: ops[-1] = ops[-1].split()[0] if ops[-1] else ""
        ops = [o.split()[0] if o else o for o in ops]
        self.ops = ops
        op = self.op
        self.mfma = op.startswith("v_mfma")
        self.valu = op.startswith("v_") and not self.mfma
        self.trans = op.replace("_e32", "").replace("_e64", "") in TRANS
        self.vmem = op.startswith(("buffer_", "global_"))
        self.ds = op.startswith("ds_")
        self.salu = op.startswith("s_")
        self.dpp = "_dpp" in op
        self.perm = op.startswith("v_permlane")
        self.lds_dma = self.vmem and (" lds" in t or "load_lds" in op)
        R = [regs_of(o) for o in ops]
        self.w = set(); self.r = set(); self.srcC = set(); self.srcAB = set(); self.sdata = set()
        if self.mfma:
            self.w = R[0]; self.srcAB = R[1] | R[2]; self.srcC = R[3]; self.r = self.srcAB | self.srcC
            self.passes = 4 if "16x16x32" in op else 8
        elif self.valu:
            if op.startswith("v_cmp"):
                self.w = R[0]; self.r = set().union(*R[1:])
            elif self.perm:
                self.w = R[0] | R[1]; self.r = R[0] | R[1]
            elif op.startswith(("v_add_co", "v_sub_co", "v_addc_co")):
                self.w = R[0] | R[1]; self.r = set().union(*R[2:])
            else:
                self.w = R[0]; self.r = set().union(*R[1:]) if len(R) > 1 else set()
                if op.startswith(("v_fmac", "v_dot2c")) or self.dpp: self.r |= R[0]
                if op.startswith("v_cndmask") and len(ops) == 3: self.r |= regs_of("vcc")
        elif self.vmem:
            if "store" in op or "atomic" in op:
                self.r = set().union(*R); self.sdata = R[0] if op.startswith("buffer") else R[1]
                if "atomic" in op and "sc0" in t: self.w = R[0]
            elif self.lds_dma:
                self.r = set().union(*R) | regs_of("m0")
            else:
                self.w = R[0]; self.r = set().union(*R[1:])
        elif self.ds:
            if "read" in op or "bpermute" in op or "swizzle" in op:
                self.w = R[0]; self.r = set().union(*R[1:])
            else:
                self.r = set().union(*R)
        elif self.salu:
            if op.startswith(("s_cmp", "s_cbranch", "s_branch", "s_waitcnt", "s_barrier", "s_nop", "s_endpgm", "s_setprio", "s_sleep", "s_bitcmp")):
                self.r = set().union(*R) if R else set()
            else:
                self.w = R[0] if R else set(); self.r = set().union(*R[1:]) if len(R) > 1 else set()
                if "saveexec" in op: self.w |= regs_of("exec")
        self.states = 1
        if op == "s_nop": self.states = int(ops[0]) + 1
        self.wide_store = self.vmem and "store" in op and ("x3" in op or "x4" in op)

def required(p, c):
    n = 0
    vw = {x for x in p.w if x[0] in "va"}
    sw = {x for x in p.w if x[0] == "s"}
    if p.mfma:
        t = {4: (6, 8, 8, 3), 8: (10, 12, 12, 7)}[p.passes]
        if c.mfma:
            if vw & c.srcC and not (c.srcC == p.w and c.passes == p.passes): n = max(n, t[0])
            if vw & c.srcAB: n = max(n, t[1])
        elif c.valu or c.vmem or c.ds:
            if vw & (c.r | c.w): n = max(n, t[2])
        if c.valu and (p.srcC & c.w): n = max(n, t[3])
    elif p.valu:
        if p.op.startswith("v_dot"):
            if c.op == p.op:
                ab = set().union(*[regs_of(o) for o in c.ops[1:3]])
                if vw & ab: n = max(n, 3)
            elif (c.valu or c.mfma or c.vmem or c.ds) and (vw & (c.r | c.w)): n = max(n, 3)
        if c.mfma and (vw & c.r): n = max(n, 2)
        if c.perm and (vw & c.r): n = max(n, 2)
        if c.dpp and (vw & c.r): n = max(n, 2)
        if p.trans and c.valu and not c.trans and (vw & c.r): n = max(n, 1)
        if p.trans and c.mfma and (vw & c.r): n = max(n, 2)
        if c.op.startswith(("v_readfirstlane", "v_readlane")) and (vw & c.r): n = max(n, 1)
        if sw and c.valu and (sw & c.r): n = max(n, 2)
        if sw and c.vmem and (sw & c.r): n = max(n, 5)
        if sw and c.salu and (sw & c.r): n = max(n, 1)
        if sw & regs_of("exec"):
            if c.mfma: n = max(n, 4)
            if c.dpp: n = max(n, 5)
    elif p.salu:
        if ("s", 124) in sw and c.lds_dma: n = max(n, 1)
    if p.wide_store and (p.sdata & c.w): n = max(n, 2 if c.valu else 1)
    return n

def is_instr(ln):
    ln = ln.strip()
    return bool(ln) and not ln.startswith((";", ".")) and not ln.endswith(":")

def fix(lines, verbose=False):
    out = []; hist = []
    def dist_need(hist, c):
        need = 0; d = 0
        for p in reversed(hist):
            r = required(p, c)
            if r - d > need: need = r - d
            d += p.states
            if d >= 20: break
        return need
    for ln in lines:
        if not is_instr(ln):
            out.append(ln); continue
        c = I(ln)
        if c.op in ("s_endpgm", "s_branch"):
            out.append(ln); hist = []; continue
        need = dist_need(hist, c)
        while need > 0:
            n = min(need, 16)
            out.append(f"s_nop {n-1}"); hist.append(I(f"s_nop {n-1}")); need -= n
            if verbose: print("nop", n, "before", ln)
        out.append(ln); hist.append(c); hist = hist[-24:]
    labels = {ln.strip()[:-1]: i for i, ln in enumerate(out) if ln.strip().endswith(":") and not ln.strip().startswith(";")}
    for i, ln in enumerate(out):
        if is_instr(ln) and ln.split()[0].startswith(("s_cbranch", "s_branch")):
            tgt = ln.split()[1]
            hist = [I(x) for x in out[max(0, i - 40):i + 1] if is_instr(x)][-24:]
            j = labels[tgt]; cnt = 0
            while j < len(out) and cnt < 24:
                x = out[j]; j += 1
                if not is_instr(x): continue
                c = I(x)
                if c.op in ("s_endpgm", "s_branch"): break
                need = dist_need(hist, c)
                assert need <= 0, f"hazard across branch {ln} -> {x}: short by {need}"
                hist.append(c); cnt += 1
    return out
```

```python
from asmlib import *

def wave_reduce(k, op, v, t):
    for mod in ("quad_perm:[1,0,3,2]", "quad_perm:[2,3,0,1]", "row_half_mirror", "row_mirror"):
        k.e("s_nop 1")
        k.e(f"{op}_dpp v{v}, v{v}, v{v} {mod} row_mask:0xf bank_mask:0xf")
    for p in ("v_permlane16_swap_b32", "v_permlane32_swap_b32"):
        k.e(f"v_mov_b32 v{t}, v{v}")
        k.e("s_nop 1")
        k.e(f"{p} v{v}, v{t}")
        k.e("s_nop 1")
        k.e(f"{op} v{v}, v{v}, v{t}")

def bf16r(k, d, s):
    k.e(f"v_cvt_pk_bf16_f32 v{d}, v{s}, v{s}")
    k.e(f"v_lshlrev_b32 v{d}, 16, v{d}")

def gen_ln(name="ln_kernel"):
    k = Kern(name)
    k.e(header(name))
    k.e("s_cmp_ge_u32 s2, 256")
    k.e(f"s_cbranch_scc1 L_{name}_end")
    k.e("s_load_dwordx2 s[4:5], s[0:1], 0")
    k.e("s_load_dwordx2 s[6:7], s[0:1], 72")
    k.e("v_lshrrev_b32 v1, 6, v0")
    k.e("v_and_b32 v2, 63, v0")
    k.e("s_lshl_b32 s3, s2, 3")
    k.e("v_add_u32 v1, s3, v1")
    k.e("v_lshlrev_b32 v1, 11, v1")
    k.e("v_lshl_add_u32 v1, v2, 4, v1")
    k.e("s_waitcnt lgkmcnt(0)")
    srd(k, 8, 4, 0x400000)
    srd(k, 12, 6, WS_BYTES)
    k.e("buffer_load_dwordx4 v[4:7], v1, s[8:11], 0 offen")
    k.e("buffer_load_dwordx4 v[8:11], v1, s[8:11], 0 offen offset:1024")
    k.e("s_waitcnt vmcnt(0)")
    for i in range(8):
        k.e(f"v_lshlrev_b32 v{16+2*i}, 16, v{4+i}")
        k.e(f"v_and_b32 v{17+2*i}, 0xffff0000, v{4+i}")
    k.e("v_add_f32 v12, v16, v17")
    for i in range(2, 16): k.e(f"v_add_f32 v12, v12, v{16+i}")
    wave_reduce(k, "v_add_f32", 12, 13)
    k.e(f"v_mul_f32 v12, {f32hex(1/1024)}, v12")
    k.e("v_sub_f32 v14, v16, v12")
    k.e("v_mul_f32 v15, v14, v14")
    for i in range(1, 16):
        k.e(f"v_sub_f32 v14, v{16+i}, v12")
        k.e("v_fmac_f32 v15, v14, v14")
    wave_reduce(k, "v_add_f32", 15, 13)
    k.e(f"v_mul_f32 v15, {f32hex(1/1024)}, v15")
    bf16r(k, 12, 12)
    bf16r(k, 15, 15)
    k.e(f"v_add_f32 v15, {f32hex(1e-5)}, v15")
    bf16r(k, 15, 15)
    k.e("v_sqrt_f32 v15, v15")
    k.e("s_nop 0")
    bf16r(k, 15, 15)
    k.e("v_rcp_f32 v15, v15")
    for i in range(16): k.e(f"v_sub_f32 v{16+i}, v{16+i}, v12")
    for i in range(8):
        k.e(f"v_cvt_pk_bf16_f32 v{4+i}, v{16+2*i}, v{17+2*i}")
        k.e(f"v_lshlrev_b32 v{16+2*i}, 16, v{4+i}")
        k.e(f"v_and_b32 v{17+2*i}, 0xffff0000, v{4+i}")
    for i in range(16): k.e(f"v_mul_f32 v{16+i}, v{16+i}, v15")
    for i in range(8):
        k.e(f"v_cvt_pk_bf16_f32 v{4+i}, v{16+2*i}, v{17+2*i}")
    k.e(f"s_mov_b32 s16, {hex(WS_XN)}")
    k.e("buffer_store_dwordx4 v[4:7], v1, s[12:15], s16 offen")
    k.e("buffer_store_dwordx4 v[8:11], v1, s[12:15], s16 offen offset:1024")
    k.e("v_mov_b32 v12, 0\nv_lshlrev_b32 v13, 7, v0\ns_lshl_b32 s17, s2, 8\ns_add_u32 s17, s17, 0x2A00000")
    k.e("v_cmp_gt_u32 vcc, 2, v0\ns_and_saveexec_b64 s[18:19], vcc")
    k.e(f"s_cbranch_execz L_{name}_end")
    k.e("buffer_store_dword v12, v13, s[12:15], s17 offen")
    k.label(f"L_{name}_end")
    k.e("s_endpgm")
    return k.text(), descriptor(name, 32, 24, 32), f"; @launch kernel={name} grid=(256,1,1) block=(512,1,1) lds=0"
```

```python
from asmlib import *
import math

ACC0 = 96
BF0 = 56
AF0 = 24
vA0, vA1, vGU, vQe, vQo, vDA, vDB0, vDB1 = 1, 2, 3, 4, 5, 6, 7, 8
sX, sWa, sWb, sWc, sWS = 8, 12, 16, 20, 24
sKA, sKB, sKQ, sStep = 28, 29, 30, 31
sO = [None, 32, 33, 34]
sM = [35, 36, 37, 38, 39]
sMA, sT, sLoop, sW, sMb, sH, sWr, sWc_ = 40, 41, 42, 43, 44, 45, 46, 47
sPf, sPfO, sPfS = 80, 84, 85
vPf, vPfD = 9, 23
LDS_B = 65536
BSLOT = 40960
LDS_BYTES = 65536 + 2 * BSLOT

def acc(i, j): return ACC0 + (i * 5 + j) * 4
def bfr(j, kk): return BF0 + (j * 2 + kk) * 4
def afr(st, b, kk): return AF0 + ((st * 2 + b) * 2 + kk) * 4

class Opt:
    store_mod = ""
    snake = True
    nB1 = 3
    src_ws = True
    timing = False
    prio = 0
    PD = 0
    pf64 = False
    early = False
    pfmod = ''
    pfreg = False
    pfonly = None
    rot = False
    bfirst = False
    diag = False
    pffirst = 0

def csel(d, a, b):
    return f"s_mov_b32 s{d}, {b}\ns_cmov_b32 s{d}, {a}"

def a_read(k, stage, pair, b, kk):
    i = 2 * pair + b
    st = pair & 1
    off = (stage & 1) * 32768 + i * 2048
    k.ds(f"ds_read_b128 {vr(afr(st,b,kk),4)}, v{vA0 if kk == 0 else vA1} offset:{off}", ("A", stage, pair, b, kk))

def b_read(k, var, stage, j, kk, rd):
    sl = (stage & 1) * BSLOT
    if var == 0:
        if j < 4:
            base, off = vGU, sl + (j & 1) * 14336 + (j >> 1) * 32 + (32 * kk + 8 * rd) * 224
        else:
            base, off = vQe, sl + (32 * kk + 8 * rd) * 192
    else:
        if j < 2:
            base, off = vGU, sl + (j & 1) * 14336 + (32 * kk + 8 * rd) * 224
        else:
            nb = j - 2
            base, off = (vQe if nb % 2 == 0 else vQo), sl + nb * 32 + (32 * kk + 8 * rd) * 192
    assert off < 65536
    k.ds(f"ds_read_b64_tr_b16 {vr(bfr(j,kk)+2*rd,2)}, v{base} offset:{off}", ("B", stage, j, kk, rd))

def dma_a(stage, which):
    t0 = [0, 16, 8, 24][which]
    r = []
    if t0: r.append(("s", f"s_add_u32 s{sT}, s{sKA}, {t0*16384}", None))
    r.append(("s", f"s_add_u32 m0, s{sMA}, {(stage&1)*32768 + t0*1024}", None))
    so = sT if t0 else sKA
    r.append(("v", f"buffer_load_dwordx4 v{vDA}, {sr(sX,4)}, s{so} offen lds", ("Alo" if which < 2 else "Ahi", stage)))
    return r

def dma_b(stage, d):
    r = []
    sl = (stage & 1) * BSLOT
    if d in (1, 2, 3): r.append(("s", f"s_add_u32 s{sT}, s{sKB}, s{sO[d]}", None))
    r.append(("s", f"s_add_u32 m0, s{sM[d]}, {sl}" if sl else f"s_mov_b32 m0, s{sM[d]}", None))
    so = {0: sKB, 4: sKQ}.get(d, sT)
    srd_ = [sWa, sWa, sWb, sWb, sWc][d]
    v = vDB1 if d == 4 else vDB0
    r.append(("v", f"buffer_load_dwordx4 v{v}, {sr(srd_,4)}, s{so} offen lds", ("B", stage)))
    return r

def advance():
    return [("s", f"s_add_u32 s{sKA}, s{sKA}, 128", None),
            ("s", f"s_add_u32 s{sKB}, s{sKB}, s{sStep}", None),
            ("s", f"s_add_u32 s{sKQ}, s{sKQ}, {64*6144}", None)]

def pf_items(n=0):
    m = (" " + Opt.pfmod) if Opt.pfmod else ""
    return [("v", f"buffer_load_dword v{vPfD - (n if Opt.pfreg else 0)}, v{vPf}, {sr(sPf,4)}, s{sPfO} offen{m}", ("PF", 0, 0)),
            ("s", f"s_add_u32 s{sPfO}, s{sPfO}, s{sPfS}", None)]

def pf_setup(k, name):
    lg = 6 if Opt.pf64 else 7
    mul = 2 if Opt.pf64 else 1
    k.e(f"s_lshr_b32 s54, s2, 3\ns_and_b32 s55, s2, 7")
    for w in range(8):
        if Opt.pfonly is not None and w not in Opt.pfonly: continue
        k.e(f"s_cmp_lg_u32 s{sW}, {w}\ns_cbranch_scc1 L_{name}_pf{w}")
        def lanes(n):
            k.e(f"v_cmp_gt_u32 vcc, {n}, v10\nv_cndmask_b32 v11, 0, v10, vcc")
        if w in (0, 1):
            n = 7 * mul
            lanes(2 * n)
            k.e(f"v_cmp_le_u32 vcc, {n}, v11\nv_cndmask_b32 v12, 0, 1, vcc\nv_mul_u32_u24 v13, {n}, v12\nv_sub_u32 v11, v11, v13")
            k.e(f"v_lshlrev_b32 v11, {lg}, v11\nv_mul_u32_u24 v12, 7168, v12\nv_add_u32 v{vPf}, v11, v12")
            k.e(f"s_mul_i32 s{sPfO}, s54, {2*7168}\ns_mul_i32 s56, s55, 896\ns_add_u32 s{sPfO}, s{sPfO}, s56\ns_mov_b32 s{sPfS}, {64*7168}")
            k.e(f"s_mov_b32 s{sPf}, s{48+2*w}\ns_mov_b32 s{sPf+1}, s{49+2*w}\ns_mov_b32 s{sPf+2}, {1024*7168}")
        elif w == 2:
            n = 2 * mul
            lanes(6 * n)
            k.e(f"v_and_b32 v12, {n-1}, v11\nv_lshlrev_b32 v12, {lg}, v12\nv_lshrrev_b32 v11, {n//2 if n == 2 else 2}, v11")
            k.e(f"v_lshl_add_u32 v{vPf}, v11, 11, v12")
            k.e(f"s_mul_i32 s{sPfO}, s54, {2*6144}\ns_lshl_b32 s56, s55, 8\ns_add_u32 s{sPfO}, s{sPfO}, s56\ns_mov_b32 s{sPfS}, {64*6144}")
            k.e(f"s_mov_b32 s{sPf}, s6\ns_mov_b32 s{sPf+1}, s7\ns_mov_b32 s{sPf+2}, {1024*6144}")
        elif w in (3, 4):
            if Opt.pf64: k.e(f"v_lshrrev_b32 v11, 1, v10\nv_and_b32 v12, 1, v10\nv_lshlrev_b32 v12, 6, v12\nv_lshl_add_u32 v{vPf}, v11, 11, v12")
            else:
                lanes(32)
                k.e(f"v_lshlrev_b32 v{vPf}, 11, v11")
            k.e(f"s_lshl_b32 s{sPfO}, s54, 17\ns_add_u32 s{sPfO}, s{sPfO}, {(w-3)*32*2048 + (WS_XN if Opt.src_ws else 0)}\ns_mov_b32 s{sPfS}, 128")
            k.e(f"s_mov_b32 s{sPf}, s{sX}\ns_mov_b32 s{sPf+1}, s{sX+1}\ns_mov_b32 s{sPf+2}, s{sX+2}")
        else:
            n = (16 if w == 5 else 8) * mul
            lanes(n)
            k.e(f"v_lshlrev_b32 v{vPf}, {lg}, v11")
            per = 224 * 128 if w == 5 else 64 * 128
            k.e(f"s_mul_i32 s{sPfO}, s2, {per}\ns_mov_b32 s{sPfS}, {2048 if w == 5 else (1024 if w == 6 else 0)}")
            b = 86 if w == 5 else 88
            k.e(f"s_mov_b32 s{sPf}, s{b}\ns_mov_b32 s{sPf+1}, s{b+1}\ns_mov_b32 s{sPf+2}, {3584*2048 if w == 5 else 1024*2048}")
        if w < 5 and not Opt.pffirst:
            k.e(f"s_lshl_b32 s56, s{sPfS}, 0\ns_add_u32 s{sPfO}, s{sPfO}, s56")
        k.e(f"s_branch L_{name}_pfd")
        k.label(f"L_{name}_pf{w}")
    k.e(f"s_mov_b32 s{sPf}, s6\ns_mov_b32 s{sPf+1}, s7\ns_mov_b32 s{sPf+2}, 0\ns_mov_b32 s{sPfO}, 0\ns_mov_b32 s{sPfS}, 0\nv_mov_b32 v{vPf}, 0")
    k.label(f"L_{name}_pfd")
    k.e(f"s_mov_b32 s{sPf+3}, 0x20000")

def emit_items(k, items):
    for kind, text, tag in items:
        if kind == "s": k.e(text)
        elif kind == "v":
            if " m0," in k.L[-1]: k.e("s_nop 0")
            k.vmem(text, tag)
        elif kind == "f": text(k)

def pair_order(pair):
    seq = []
    for j in range(5):
        if Opt.snake:
            bs = (0, 1) if j % 2 == 0 else (1, 0)
            seq += [(bs[0], j, 0), (bs[0], j, 1), (bs[1], j, 1), (bs[1], j, 0)]
        else:
            seq += [(0, j, 0), (0, j, 1), (1, j, 0), (1, j, 1)]
    return seq

NST = 16
def gen_pair(k, var, stage, pair, carry, mfma=True):
    fill = {g: [] for g in range(24)}
    for g, it in carry.items(): fill[g] += it
    nst, npair = (stage, pair + 1) if pair < 3 else (stage + 1, 0)
    if nst < NST:
        g0 = 3 if pair == 0 else 0
        for n, (b, kk) in enumerate([(0, 0), (0, 1), (1, 1), (1, 0)]):
            fill[g0 + n].append(("f", (lambda kk_, b_: (lambda kn: a_read(kn, nst, npair, b_, kk_)))(kk, b), None))
    if pair == 3 and stage + 1 < NST:
        for j in range(5):
            for n, (kk, rd) in enumerate([(1, 0), (1, 1), (0, 0), (0, 1)]):
                g = 4 * j + 3 + n
                fill[g].append(("f", (lambda j_, kk_, rd_: (lambda kn: b_read(kn, var, stage + 1, j_, kk_, rd_)))(j, kk, rd), None))
    def place(items, g):
        sc = [x for x in items if x[0] == "s"]
        ld = [x for x in items if x[0] == "v"]
        if len(sc) == 2:
            fill[g - 2].append(sc[0]); fill[g - 1].append(sc[1])
        else:
            fill[g - 1].append(sc[0])
        fill[g] += ld
    n1 = Opt.nB1
    ylist = [("a", 0), ("a", 1)] + [("b", d) for d in range(n1)]
    xlist = [("b", d) for d in range(n1, 5)] + [("a", 2), ("a", 3)]
    def mk(x, tgt): return dma_a(tgt, x[1]) if x[0] == "a" else dma_b(tgt, x[1])
    def spread(n, first, last):
        return [first + ((last - first) * i) // max(n - 1, 1) for i in range(n)]
    if Opt.early and stage == -1:
        pass
    elif Opt.early and stage == 0 and pair == 0:
        lst = [("a", 0), ("a", 1)] + [("b", d) for d in range(5)]
        for n, it in enumerate(advance()): fill[0].append(it)
        for x, p in zip(lst, spread(len(lst), 2, 19)): place(mk(x, 1), p)
    elif Opt.early and stage == 0 and pair in (1, 2):
        lst = [("a", 2, 1), ("a", 3, 1), ("adv",)] + [(x[0], x[1], 2) for x in ylist]
        for x, p in zip(lst, spread(len(lst), 4, 38)):
            if (p < 20) != (pair == 1): continue
            g = p % 20
            if x[0] == "adv": fill[g] += advance()
            else: place(mk(x, x[2]), max(g, 2))
    elif pair in (1, 2):
        tgt = stage + 2
        if tgt < NST:
            pos = spread(len(ylist), 7, 37)
            if pair == 1:
                for n, it in enumerate(advance()): fill[n].append(it)
            for x, p in zip(ylist, pos):
                if pair == 1 and p < 20: place(mk(x, tgt), max(p, 2))
                if pair == 2 and p >= 20: place(mk(x, tgt), max(p - 20, 6))
    else:
        tgt = stage + 2 if pair == 3 else stage + 1
        if tgt < NST:
            n3 = 1 if len(xlist) > 2 else 0
            if pair == 3:
                for x in xlist[:n3]: place(mk(x, tgt), 10)
            else:
                rest = xlist[n3:]
                pos = spread(len(rest), 8, 18)
                for x, p in zip(rest, pos): place(mk(x, tgt), p)
    if Opt.PD and pair == 0 and stage < 14: fill[19] += pf_items()
    st = pair & 1
    for g, (b, j, kk) in enumerate(pair_order(pair)):
        if mfma:
            k.need_lgkm({("A", stage, pair, b, kk), ("B", stage, j, kk, 0), ("B", stage, j, kk, 1)})
            a = acc(2 * pair + b, j)
            k.e(f"v_mfma_f32_16x16x32_bf16 {vr(a,4)}, {vr(bfr(j,kk),4)}, {vr(afr(st,b,kk),4)}, {vr(a,4)}")
        emit_items(k, fill[g])
    return {g - 20: fill[g] for g in range(20, 24) if fill[g]}

def barrier(k, tags):
    k.need_vm(tags, also_lgkm0=True)
    k.e("s_barrier")

def gen_stage(k, var, stage, carry):
    carry = gen_pair(k, var, stage, 0, carry)
    barrier(k, {("Ahi", stage)})
    carry = gen_pair(k, var, stage, 1, carry)
    carry = gen_pair(k, var, stage, 2, carry)
    if stage + 1 < NST:
        barrier(k, {("Alo", stage + 1), ("B", stage + 1)})
    carry = gen_pair(k, var, stage, 3, carry)
    return carry

def norm_state(k, base):
    f = lambda t: tuple((x - base) if (n == 1 and isinstance(x, int)) else x for n, x in enumerate(t))
    return [f(t) for t in k.lgkm], [f(t) for t in k.vm]

def gen_main(k, var):
    name = k.name
    barrier(k, {("Alo", 0), ("B", 0)})
    stamp(k, 7)
    carry = gen_pair(k, var, -1, 3, {}, mfma=False)
    f = 0
    if Opt.early:
        carry = gen_stage(k, var, 0, carry)
        carry = gen_stage(k, var, 1, carry)
        f = 2
    k.e(f"s_mov_b32 s{sLoop}, {7 - f // 2}")
    k.e(".p2align 6")
    k.label(f"L_{name}_loop{var}")
    st0 = norm_state(k, f)
    c = gen_stage(k, var, f, carry)
    c = gen_stage(k, var, f + 1, c)
    st1 = norm_state(k, f + 2)
    strip = lambda st: (st[0], st[1][next(i for i, t in enumerate(st[1]) if t[0] != "PF"):])
    nz = lambda st: (st[0], [t if t[0] != "PF" else "PF" for t in st[1]])
    assert nz(strip(st0)) == nz(strip(st1)), (st0, st1)
    k.e(f"s_sub_u32 s{sLoop}, s{sLoop}, 1")
    k.e(f"s_cmp_lg_u32 s{sLoop}, 0")
    k.e(f"s_cbranch_scc1 L_{name}_loop{var}")
    def shift(t): return tuple((x + 12 - f) if (n == 1 and isinstance(x, int)) else x for n, x in enumerate(t))
    k.lgkm = [shift(t) for t in k.lgkm]; k.vm = [shift(t) for t in k.vm]
    kk_ = Kern("tmp")
    c = gen_pair(kk_, var, 13, 3, {}, mfma=False)
    c = gen_stage(k, var, 14, c)
    c = gen_stage(k, var, 15, c)
    assert not c

def geglu_block(k, gs, us, outs, tmp, vC0, vC1):
    n = len(gs)
    P = []
    for x in range(n):
        for hf in range(2):
            P.append((gs[x] + 2 * hf, us[x] + 2 * hf, tmp + (x * 2 + hf) * 2, outs[x] + hf))
    for g, u, t, o in P: k.e(f"v_pk_mul_f32 {vr(t,2)}, {vr(g,2)}, {vr(g,2)}")
    for g, u, t, o in P: k.e(f"v_pk_fma_f32 {vr(t,2)}, {vr(t,2)}, {vr(vC1,2)}, {vr(vC0,2)}")
    for g, u, t, o in P: k.e(f"v_pk_mul_f32 {vr(t,2)}, {vr(t,2)}, {vr(g,2)}")
    for g, u, t, o in P:
        k.e(f"v_exp_f32 v{t}, v{t}")
        k.e(f"v_exp_f32 v{t+1}, v{t+1}")
        k.e(f"v_pk_mul_f32 {vr(g,2)}, {vr(g,2)}, {vr(u,2)}")
    for g, u, t, o in P: k.e(f"v_pk_add_f32 {vr(t,2)}, {vr(t,2)}, 1.0 op_sel_hi:[1,0]")
    for g, u, t, o in P:
        k.e(f"v_rcp_f32 v{t}, v{t}")
        k.e(f"v_rcp_f32 v{t+1}, v{t+1}")
    k.e("s_nop 0")
    for g, u, t, o in P: k.e(f"v_pk_mul_f32 {vr(g,2)}, {vr(g,2)}, {vr(t,2)}")
    for g, u, t, o in P: k.e(f"v_cvt_pk_bf16_f32 v{o}, v{g}, v{g+1}")

def gen_epilogue(k, var):
    sm = (" " + Opt.store_mod) if Opt.store_mod else ""
    vL16, vL, vC0, vC1 = 10, 11, 12, 14
    sHo, sSo = 48, 49
    c0 = -2.0 * math.log2(math.e) * math.sqrt(2.0 / math.pi)
    c1 = c0 * 0.044715
    k.e(f"v_mov_b32 v{vC0}, {f32hex(c0)}\nv_mov_b32 v{vC0+1}, {f32hex(c0)}")
    k.e(f"v_mov_b32 v{vC1}, {f32hex(c1)}\nv_mov_b32 v{vC1+1}, {f32hex(c1)}")
    k.e(f"v_and_b32 v{vL}, 63, v0")
    k.e(f"v_lshlrev_b32 v{vL16}, 4, v{vL}")
    k.e(f"s_lshl_b32 s50, s{sMb}, 4\ns_lshl_b32 s51, s{sWr}, 3\ns_add_u32 s50, s50, s51")
    k.e(f"s_lshr_b32 s51, s{sH}, 1\ns_mul_i32 s51, s51, 7")
    k.e(f"s_and_b32 s52, s{sH}, 1")
    if var == 0:
        k.e(f"s_lshl_b32 s53, s52, 2\ns_add_u32 s51, s51, s53\ns_add_u32 s51, s51, s{sWc_}")
    else:
        k.e("s_add_u32 s51, s51, 3")
    k.e(f"s_mul_i32 s{sHo}, s50, 144\ns_add_u32 s{sHo}, s{sHo}, s51\ns_lshl_b32 s{sHo}, s{sHo}, 10")
    if WS_H: k.e(f"s_add_u32 s{sHo}, s{sHo}, {hex(WS_H)}")
    k.e(f"s_lshl_b32 s53, s{sH}, 7\ns_add_u32 s53, s53, s50\ns_lshl_b32 s53, s53, 10")
    vS = 16
    if var == 0:
        k.e(f"s_add_u32 s54, s53, {hex(WS_K + 8)}")
        k.e(f"s_lshl_b32 s55, s{sH}, 1\ns_add_u32 s55, s55, s{sWc_}\ns_sub_u32 s55, s55, 1")
        k.e(f"s_lshl_b32 s55, s55, 16\ns_lshl_b32 s56, s50, 9\ns_add_u32 s55, s55, s56\ns_add_u32 s55, s55, {hex(WS_V)}")
        k.e(f"s_cmp_eq_u32 s{sWc_}, 0")
        k.e(f"s_cselect_b32 s{sSo}, s54, s55")
        k.e(csel(57, 1024, 512))
        k.e(f"v_and_b32 v{vS}, 15, v{vL}\nv_lshlrev_b32 v{vS}, 5, v{vS}\nv_lshrrev_b32 v17, 4, v{vL}")
        k.e(f"v_lshl_add_u32 v{vS}, v17, 3, v{vS}")
        k.e("s_cselect_b64 vcc, -1, 0")
        k.e("s_nop 0")
        k.e(f"v_cndmask_b32 v{vS}, v{vS}, v{vL16}, vcc")
    else:
        k.e(f"s_lshl_b32 s52, s52, 3\ns_add_u32 s{sHo}, s{sHo}, s52")
        k.e(f"s_add_u32 s54, s53, {hex(WS_Q)}")
        k.e(f"s_add_u32 s55, s53, {hex(WS_K)}")
    k.e("s_nop 7")
    for i in range(8):
        o = 24 + (i & 1) * 8
        tmp = 40 + (i & 1) * 8
        if var == 0:
            geglu_block(k, [acc(i, 0), acc(i, 2)], [acc(i, 1), acc(i, 3)], [o, o + 2], tmp, vC0, vC1)
            k.vmem(f"buffer_store_dwordx4 {vr(o,4)}, v{vL16}, {sr(sWS,4)}, s{sHo} offen{sm}", "st")
            a = acc(i, 4)
            k.e(f"v_cvt_pk_bf16_f32 v{o+4}, v{a}, v{a+1}\nv_cvt_pk_bf16_f32 v{o+5}, v{a+2}, v{a+3}")
            k.vmem(f"buffer_store_dwordx2 {vr(o+4,2)}, v{vS}, {sr(sWS,4)}, s{sSo} offen{sm}", "st")
            k.e(f"s_add_u32 s{sHo}, s{sHo}, {144*1024}\ns_add_u32 s{sSo}, s{sSo}, s57")
        else:
            geglu_block(k, [acc(i, 0)], [acc(i, 1)], [o + 4], tmp, vC0, vC1)
            k.vmem(f"buffer_store_dwordx2 {vr(o+4,2)}, v{vL16}, {sr(sWS,4)}, s{sHo} offen{sm}", "st")
            for x in range(2):
                a = acc(i, 2 + x)
                k.e(f"v_cvt_pk_bf16_f32 v{o+2*x}, v{a}, v{a+1}\nv_cvt_pk_bf16_f32 v{o+2*x+1}, v{a+2}, v{a+3}")
            k.vmem(f"buffer_store_dwordx4 {vr(o,4)}, v{vL16}, {sr(sWS,4)}, s54 offen{sm}", "st")
            a = acc(i, 4)
            k.e(f"v_cvt_pk_bf16_f32 v{o+6}, v{a}, v{a+1}\nv_cvt_pk_bf16_f32 v{o+7}, v{a+2}, v{a+3}")
            k.vmem(f"buffer_store_dwordx2 {vr(o+6,2)}, v{vL16}, {sr(sWS,4)}, s55 offen{sm}", "st")
            k.e(f"s_add_u32 s{sHo}, s{sHo}, {144*1024}\ns_add_u32 s54, s54, 1024\ns_add_u32 s55, s55, 1024")

def stamp(k, slot):
    if Opt.timing:
        k.e(f"s_memtime s[{60+2*slot}:{61+2*slot}]")

def swap23(k, d, s, t):
    k.e(f"v_and_b32 v{t}, 4, v{s}\nv_lshlrev_b32 v{t}, 1, v{t}")
    k.e(f"v_and_b32 v{d}, 0xfffffff3, v{s}\nv_or_b32 v{d}, v{d}, v{t}")
    k.e(f"v_and_b32 v{t}, 8, v{s}\nv_lshrrev_b32 v{t}, 1, v{t}\nv_or_b32 v{d}, v{d}, v{t}")

def qkv_voff(k, d, vL, t0, t1, t2):
    k.e(f"v_mul_u32_u24 v{t0}, 5462, v{vL}\nv_lshrrev_b32 v{t0}, 16, v{t0}")
    k.e(f"v_mul_u32_u24 v{t1}, 12, v{t0}\nv_sub_u32 v{t1}, v{vL}, v{t1}")
    k.e(f"v_lshrrev_b32 v{t2}, 1, v{t0}\nv_and_b32 v{t2}, 2, v{t2}\nv_xor_b32 v{t1}, v{t1}, v{t2}")
    swap23(k, d, t0, t2)
    k.e(f"v_mul_u32_u24 v{d}, 6144, v{d}")
    k.e(f"v_lshrrev_b32 v{t2}, 2, v{t1}\nv_lshlrev_b32 v{t2}, 11, v{t2}\nv_add_u32 v{d}, v{d}, v{t2}")
    k.e(f"v_and_b32 v{t1}, 3, v{t1}\nv_lshlrev_b32 v{t1}, 4, v{t1}\nv_add_u32 v{d}, v{d}, v{t1}")
    k.e(f"v_add_u32 v{d}, s58, v{d}")

def gen_k1(name="g1_kernel"):
    k = Kern(name)
    k.e(header(name))
    k.e("s_cmp_ge_u32 s2, 256")
    k.e(f"s_cbranch_scc1 L_{name}_end")
    if Opt.timing:
        k.e("s_memtime s[60:61]\ns_memrealtime s[76:77]")
    k.e("s_load_dwordx2 s[4:5], s[0:1], 0")
    k.e("s_load_dwordx2 s[6:7], s[0:1], 8")
    k.e("s_load_dwordx4 s[48:51], s[0:1], 32")
    k.e("s_load_dwordx2 s[52:53], s[0:1], 72")
    k.e("s_load_dwordx2 s[86:87], s[0:1], 48\ns_load_dwordx2 s[88:89], s[0:1], 16")
    k.e(f"v_lshrrev_b32 v9, 6, v0\nv_and_b32 v10, 63, v0")
    k.e(f"v_readfirstlane_b32 s{sW}, v9")
    k.e(f"s_and_b32 s{sH}, s2, 7\ns_lshl_b32 s{sH}, s{sH}, 2\ns_lshr_b32 s3, s2, 3\ns_and_b32 s3, s3, 3\ns_add_u32 s{sH}, s{sH}, s3")
    k.e(f"s_lshr_b32 s{sMb}, s2, 5")
    k.e(f"s_lshr_b32 s{sWr}, s{sW}, 2\ns_and_b32 s{sWc_}, s{sW}, 3")
    sRA, sRB = 54, 55
    if Opt.rot:
        k.e(f"s_and_b32 s3, s{sH}, 1\ns_lshl_b32 s3, s3, 2\ns_xor_b32 s{sRA}, s{sW}, s3")
        k.e(f"s_and_b32 s3, s{sMb}, 1\ns_lshl_b32 s3, s3, 2\ns_xor_b32 s{sRB}, s{sW}, s3")
    else:
        k.e(f"s_mov_b32 s{sRA}, s{sW}\ns_mov_b32 s{sRB}, s{sW}")
    k.e(f"s_and_b32 s3, s{sW}, 1\ns_lshl_b32 s3, s3, 2")
    k.e(f"v_lshrrev_b32 v11, 4, v10\nv_add_u32 v11, s3, v11\nv_and_b32 v12, 7, v10\nv_xor_b32 v11, v11, v12\nv_lshlrev_b32 v11, 4, v11")
    k.e(f"v_lshrrev_b32 v12, 3, v10\nv_lshl_add_u32 v{vDA}, v12, 11, v11")
    k.e(f"s_lshl_b32 s{sKA}, s{sMb}, 19\ns_lshl_b32 s3, s{sRA}, 14\ns_add_u32 s{sKA}, s{sKA}, s3")
    if Opt.src_ws: k.e(f"s_add_u32 s{sKA}, s{sKA}, {hex(WS_XN)}")
    k.e(f"s_lshl_b32 s{sMA}, s{sRA}, 10")
    k.e(f"s_lshl_b32 s58, s{sH}, 6")
    k.e(f"s_mul_i32 s59, s{sH}, 224")
    k.e(f"s_lshl_b32 s3, s{sRB}, 10\ns_add_u32 s3, s3, {LDS_B}")
    k.e(f"s_cmp_eq_u32 s{sRB}, 7")
    k.e(csel(sWa+2, 1024*6144, 1024*7168)); k.e(f"s_mov_b32 s{sWb+2}, s{sWa+2}")
    k.e(f"s_mov_b32 s{sWa+3}, 0x20000\ns_mov_b32 s{sWb+3}, 0x20000")
    k.e(csel(sStep, 64*6144, 64*7168))
    k.e(csel(sO[1], 16*6144, 32*7168))
    k.e(f"s_cselect_b32 s{sO[2]}, {32*6144}, 0")
    k.e(csel(sO[3], 48*6144, 32*7168))
    k.e(f"s_cselect_b32 s{sM[0]}, {LDS_B+28672}, s3")
    k.e(csel(sM[1], 3072, 7168)); k.e(csel(sM[2], 6144, 14336)); k.e(csel(sM[3], 9216, 14336+7168))
    for d in (1, 2, 3): k.e(f"s_add_u32 s{sM[d]}, s{sM[0]}, s{sM[d]}")
    tab = 0
    for w, t in enumerate([2, 4, 5, 7, 8, 10, 11, 1]): tab |= t << (4 * w)
    k.e(f"s_lshl_b32 s3, s{sRB}, 2\ns_lshr_b32 s57, {hex(tab)}, s3\ns_and_b32 s57, s57, 15")
    k.e(f"s_lshl_b32 s3, s57, 10\ns_add_u32 s{sM[4]}, s3, {LDS_B+28672}")
    k.e(f"s_mov_b32 s{sKB}, 0\ns_mov_b32 s{sKQ}, 0")
    k.e(f"s_cmp_eq_u32 s{sRB}, 7\ns_cbranch_scc1 L_{name}_w7")
    k.e(f"s_lshl_b32 s3, s{sRB}, 6\nv_add_u32 v11, s3, v10")
    k.e(f"v_mul_u32_u24 v12, 4682, v11\nv_lshrrev_b32 v12, 16, v12")
    k.e(f"v_mul_u32_u24 v13, 14, v12\nv_sub_u32 v13, v11, v13")
    swap23(k, vDB0, 12, 14)
    k.e(f"v_mul_u32_u24 v{vDB0}, 7168, v{vDB0}\nv_lshl_add_u32 v{vDB0}, v13, 4, v{vDB0}\nv_add_u32 v{vDB0}, s59, v{vDB0}")
    k.e(f"s_branch L_{name}_w7d")
    k.label(f"L_{name}_w7")
    qkv_voff(k, vDB0, 10, 12, 13, 14)
    k.label(f"L_{name}_w7d")
    k.e(f"s_lshl_b32 s3, s57, 6\nv_add_u32 v11, s3, v10")
    qkv_voff(k, vDB1, 11, 12, 13, 14)
    k.e(f"s_mov_b32 s{sX+2}, {hex(WS_BYTES if Opt.src_ws else 0x400000)}\ns_mov_b32 s{sX+3}, 0x20000")
    k.e(f"s_mov_b32 s{sWc+2}, {1024*6144}\ns_mov_b32 s{sWc+3}, 0x20000")
    k.e(f"s_cmp_eq_u32 s{sRB}, 7")
    k.e("s_waitcnt lgkmcnt(0)")
    stamp(k, 5)
    xb = 52 if Opt.src_ws else 4
    k.e(f"s_mov_b32 s{sX}, s{xb}\ns_mov_b32 s{sX+1}, s{xb+1}")
    k.e(f"s_cselect_b32 s{sWa}, s6, s48\ns_cselect_b32 s{sWa+1}, s7, s49")
    k.e(f"s_cselect_b32 s{sWb}, s6, s50\ns_cselect_b32 s{sWb+1}, s7, s51")
    k.e(f"s_mov_b32 s{sWc}, s6\ns_mov_b32 s{sWc+1}, s7")
    if Opt.PD and Opt.pffirst:
        pf_setup(k, name)
        for st in range(Opt.pffirst): emit_items(k, pf_items(st))
    if Opt.bfirst:
        for d in range(5): emit_items(k, dma_b(0, d))
    emit_items(k, dma_a(0, 0)); emit_items(k, dma_a(0, 1))
    srd(k, sWS, 52, WS_BYTES)
    if not Opt.bfirst:
        for d in range(5): emit_items(k, dma_b(0, d))
    if Opt.PD:
        if not Opt.pffirst: pf_setup(k, name)
        for st in range(max(1, Opt.pffirst), Opt.PD - (0 if Opt.early else 1)): emit_items(k, pf_items(st))
    emit_items(k, dma_a(0, 2)); emit_items(k, dma_a(0, 3))
    if not Opt.early:
        if Opt.PD: emit_items(k, pf_items())
        emit_items(k, advance())
        emit_items(k, dma_a(1, 0)); emit_items(k, dma_a(1, 1))
        for d in range(Opt.nB1): emit_items(k, dma_b(1, d))
    stamp(k, 6)
    if Opt.diag:
        for n, c in enumerate((8, 7, 5, 2, 0)):
            k.e(f"s_waitcnt vmcnt({c})\ns_memtime s[{90+2*n}:{91+2*n}]")
        k.e("s_waitcnt lgkmcnt(0)")
        for n in range(5): k.e(f"s_sub_u32 s{90+2*n}, s{90+2*n}, s60\nv_mov_b32 v{16+n}, s{90+2*n}")
        k.e(f"s_lshl_b32 s3, s2, 3\ns_add_u32 s3, s3, s{sW}\ns_lshl_b32 s3, s3, 6\ns_add_u32 s3, s3, 0x3200000")
        k.e(f"v_mov_b32 v21, 0\nbuffer_store_dwordx4 v[16:19], v21, {sr(sWS,4)}, s3 offen\nbuffer_store_dword v20, v21, {sr(sWS,4)}, s3 offen offset:16\ns_waitcnt vmcnt(0)")
    k.e("v_and_b32 v11, 15, v10\nv_lshrrev_b32 v12, 4, v10")
    k.e("v_lshrrev_b32 v13, 1, v11\nv_xor_b32 v13, v13, v12\nv_lshlrev_b32 v13, 4, v13")
    k.e(f"v_lshl_add_u32 v{vA0}, v11, 7, v13\ns_lshl_b32 s3, s{sWr}, 14\nv_add_u32 v{vA0}, s3, v{vA0}\nv_xor_b32 v{vA1}, 64, v{vA0}")
    k.e("v_lshrrev_b32 v13, 1, v12\nv_lshlrev_b32 v13, 4, v13\nv_and_b32 v14, 1, v12\nv_lshl_add_u32 v13, v14, 2, v13")
    k.e("v_bfe_u32 v15, v10, 2, 2\nv_add_u32 v13, v13, v15")
    k.e("v_and_b32 v15, 3, v10\nv_lshlrev_b32 v15, 3, v15")
    k.e(f"v_mul_u32_u24 v{vGU}, 224, v13\nv_add_u32 v{vGU}, v{vGU}, v15")
    k.e(f"v_mul_u32_u24 v{vQe}, 192, v13\nv_add_u32 v{vQe}, v{vQe}, v15\nv_add_u32 v{vQe}, {LDS_B+28672}, v{vQe}")
    k.e("v_lshlrev_b32 v14, 5, v14")
    for r in range(ACC0, 256): k.e(f"v_mov_b32 v{r}, 0")
    k.e(f"s_and_b32 s3, s{sH}, 1")
    k.e(f"s_cmp_eq_u32 s{sWc_}, 3\ns_cbranch_scc1 L_{name}_v1")
    for var in (0, 1):
        if var == 1:
            k.label(f"L_{name}_v1")
            k.lgkm, k.vm = list(save[0]), list(save[1])
        else:
            save = (list(k.lgkm), list(k.vm))
        if var == 0:
            k.e(f"s_lshl_b32 s54, s{sWc_}, 1\ns_add_u32 s54, s54, s3\ns_lshl_b32 s54, s54, 5\ns_add_u32 s54, s54, {LDS_B}")
            k.e(f"v_add_u32 v{vGU}, s54, v{vGU}")
            k.e(f"s_add_u32 s54, s{sWc_}, 3\ns_lshl_b32 s54, s54, 5\nv_xor_b32 v14, s54, v14\nv_add_u32 v{vQe}, v{vQe}, v14")
        else:
            k.e("s_cmp_eq_u32 s3, 0"); k.e(csel(54, LDS_B+6*32, LDS_B))
            k.e(f"v_add_u32 v{vGU}, s54, v{vGU}")
            k.e(f"v_sub_u32 v{vQo}, v{vQe}, v14\nv_add_u32 v{vQe}, v{vQe}, v14")
        if Opt.prio:
            k.e(f"s_cmp_ge_u32 s{sW}, 4\ns_cbranch_scc0 L_{name}_np{var}\ns_setprio 1")
            k.label(f"L_{name}_np{var}")
        stamp(k, 1)
        gen_main(k, var)
        stamp(k, 2)
        gen_epilogue(k, var)
        stamp(k, 3)
        if Opt.timing:
            k.e("s_waitcnt vmcnt(0)")
            stamp(k, 4)
            k.e("s_memrealtime s[78:79]\ns_waitcnt lgkmcnt(0)")
            for n in range(1, 8): k.e(f"s_sub_u32 s{60+2*n}, s{60+2*n}, s60")
            k.e("s_sub_u32 s78, s78, s76")
            k.e("v_mov_b32 v24, s62\nv_mov_b32 v25, s64\nv_mov_b32 v26, s66\nv_mov_b32 v27, s68\nv_mov_b32 v28, s78\nv_mov_b32 v29, s76\nv_mov_b32 v30, s70\nv_mov_b32 v31, s72")
            k.e("v_mov_b32 v32, s74\nv_mov_b32 v33, 0\nv_mov_b32 v34, 0\nv_mov_b32 v35, 0")
            k.e(f"s_lshl_b32 s3, s2, 3\ns_add_u32 s3, s3, s{sW}\ns_lshl_b32 s3, s3, 6\ns_add_u32 s3, s3, 0x3000000")
            k.e("v_mov_b32 v36, 0\ns_mov_b64 exec, 1")
            for q in range(3): k.e(f"buffer_store_dwordx4 v[{24+4*q}:{27+4*q}], v36, {sr(sWS,4)}, s3 offen offset:{16*q}")
        k.e("s_endpgm")
    k.label(f"L_{name}_end")
    k.e("s_endpgm")
    return k.text(), descriptor(name, 256, 102, 256), f"; @launch kernel={name} grid=(256,1,1) block=(512,1,1) lds={LDS_BYTES}"
```

```python
from asmlib import *

class Opt:
    NB = 4
    NS = 3
    split = (34, 38)
    timing = False
    chain = True
    loaders = False
    scope = 'sc0 sc1'
    lprio = 0

WS_P = 0x2200000
WS_F = 0x2A00000

sHs, sBs, sXs, sOs = 8, 12, 16, 20
sKA, sKB, sRd, sWrS, sT, sLoop, sW, sMt, sNt, sHalf, sMA, sMB, sD, sPh, sT2 = range(24, 39)
sWo = 40
vA, vL16, vX = 1, 2, 3
vB0 = 4
vDB0 = 8
FR0 = 16
def geo():
    NB = Opt.NB
    C = NB * 4
    BB = 64 * C * 16
    SLOT = 16384 + BB
    setsz = (4 + NB) * 8
    ACC = FR0 + 2 * setsz
    XR = ACC + 16 * NB
    return NB, C, BB, SLOT, setsz, ACC, XR
def afr(p, i, kk): return FR0 + p * geo()[4] + (i * 2 + kk) * 4
def bfr(p, b, kk): return FR0 + p * geo()[4] + 32 + (b * 2 + kk) * 4
def acc(i, b): return geo()[5] + (i * Opt.NB + b) * 4

def dma_items(tag):
    NB, C, BB, SLOT, *_ = geo()
    it = []
    it.append([f"s_add_u32 m0, s{sWrS}, s{sMA}", None])
    it.append([f"buffer_load_dwordx4 v{vL16}, {sr(sHs,4)}, s{sKA} offen lds", tag])
    it.append([f"buffer_load_dwordx4 v{vL16}, {sr(sHs,4)}, s{sKA} offen offset:1024 lds", tag])
    it.append([f"s_add_u32 s{sT}, s{sKA}, {144*1024}", None])
    it.append([f"s_add_u32 m0, m0, 2048", None])
    it.append([f"buffer_load_dwordx4 v{vL16}, {sr(sHs,4)}, s{sT} offen lds", tag])
    it.append([f"buffer_load_dwordx4 v{vL16}, {sr(sHs,4)}, s{sT} offen offset:1024 lds", tag])
    for i in range(NB):
        it.append([f"s_add_u32 m0, s{sWrS}, s{sMB}" if i == 0 else "s_add_u32 m0, m0, 4096", None])
        it.append([f"buffer_load_dwordx4 v{vDB0+i}, {sr(sBs,4)}, s{sKB} offen lds", tag])
    it.append([f"s_add_u32 s{sKA}, s{sKA}, 2048", None])
    it.append([f"s_add_u32 s{sKB}, s{sKB}, {64*2048}", None])
    it.append([f"s_add_u32 s{sWrS}, s{sWrS}, {SLOT}", None])
    it.append([f"s_cmp_eq_u32 s{sWrS}, {Opt.NS*SLOT}\ns_cselect_b32 s{sWrS}, 0, s{sWrS}", None])
    return it

def read_items(p, tag):
    NB, C, *_ = geo()
    it = []
    order = []
    for x in range(4):
        order += [("a", x, 0), ("a", x, 1)]
        if x < NB: order += [("b", x, 0, 0), ("b", x, 0, 1), ("b", x, 1, 0), ("b", x, 1, 1)]
    for o in order:
        if o[0] == "a":
            it.append((f"ds_read_b128 {vr(afr(p,o[1],o[2]),4)}, v{vA} offset:{(o[1]*2+o[2])*1024}", tag))
        else:
            _, b, kk, rd = o
            it.append((f"ds_read_b64_tr_b16 {vr(bfr(p,b,kk)+2*rd,2)}, v{vB0+b} offset:{(32*kk+16*rd)*C*16}", tag))
    return it

def rot_items():
    NB, C, BB, SLOT, *_ = geo()
    it = [f"s_add_u32 s{sRd}, s{sRd}, {SLOT}",
          f"s_mov_b32 s{sD}, {SLOT}",
          f"s_cmp_eq_u32 s{sRd}, {Opt.NS*SLOT}\ns_cselect_b32 s{sRd}, 0, s{sRd}\ns_cmov_b32 s{sD}, {hex((-(Opt.NS-1)*SLOT) & 0xffffffff)}",
          f"v_add_u32 v{vA}, s{sD}, v{vA}"]
    it += [f"v_add_u32 v{vB0+b}, s{sD}, v{vB0+b}" for b in range(NB)]
    return it

def emit_now(k, items):
    for text, tag in items:
        if tag is None: k.e(text)
        elif text.startswith("ds_"): k.ds(text, tag)
        else: k.vmem(text, tag)

def mfma_order():
    NB = Opt.NB
    seq = []
    if Opt.chain:
        for i in range(4):
            bs = range(NB) if i % 2 == 0 else range(NB - 1, -1, -1)
            for n, b in enumerate(bs):
                kks = (0, 1) if (i * NB + n) % 2 == 0 else (1, 0)
                seq += [(i, b, kks[0]), (i, b, kks[1])]
    else:
        for kk in range(2):
            for i in range(4):
                for b in range(NB): seq.append((i, b, kk))
    return seq

def gen_step(k, s, p, reads, dma, extra=None):
    NB = Opt.NB
    if Opt.loaders: dma = False
    k.need_vm({("D", s + 1)} if reads else set(), also_lgkm0=True)
    if reads or dma: k.e("s_barrier")
    seq = mfma_order()
    n = len(seq)
    fill = {g: [] for g in range(n)}
    rd = read_items(1 - p, ("R", s + 1)) if reads else []
    dm = dma_items(("D", s + Opt.NS)) if dma else []
    nr = len(rd)
    lim = n - 6 if NB == 4 else n - 3
    for x, it in enumerate(rd): fill[(x * lim) // nr].append(it)
    for x, it in enumerate(dm): fill[min(n - 1, (x * n) // len(dm))].append(tuple(it))
    if reads:
        for x, t in enumerate(rot_items()): fill[min(n - 1, lim + x * (n - lim) // (4 + NB))].append((t, None))
    for x, it in enumerate(extra or []): fill[(x * n) // len(extra)].append(it)
    for g, (i, b, kk) in enumerate(seq):
        a = acc(i, b)
        k.e(f"v_mfma_f32_16x16x32_bf16 {vr(a,4)}, {vr(bfr(p,b,kk),4)}, {vr(afr(p,i,kk),4)}, {vr(a,4)}")
        emit_now(k, fill[g])

def stamp(k, slot):
    if Opt.timing: k.e(f"s_memtime s[{60+2*slot}:{61+2*slot}]")

def final_epilogue(k, partial):
    NB, C, BB, SLOT, setsz, ACC, XR = geo()
    if partial is not None:
        for i in range(4):
            for b in range(NB):
                k.need_vm({("P", i, b)})
                a = acc(i, b); q = partial + (i * NB + b) * 4
                for hf in (0, 2): k.e(f"v_pk_add_f32 {vr(a+hf,2)}, {vr(a+hf,2)}, {vr(q+hf,2)}")
    T = FR0
    k.need_vm({("X", 0)})
    for i in range(4):
        for pr in range(NB // 2):
            a, b = acc(i, 2 * pr), acc(i, 2 * pr + 1)
            for r in range(4): k.e(f"v_permlane16_swap_b32 v{a+r}, v{b+r}")
            x = XR + (i * (NB // 2) + pr) * 4
            t = T + ((i * (NB // 2) + pr) & 1) * 8
            for d in range(4):
                k.e(f"v_lshlrev_b32 v{t+2*d}, 16, v{x+d}\nv_and_b32 v{t+2*d+1}, 0xffff0000, v{x+d}")
            for d in range(4):
                src = (a, a + 2, b, b + 2)[d]
                k.e(f"v_pk_add_f32 {vr(t+2*d,2)}, {vr(t+2*d,2)}, {vr(src,2)}")
            for d in range(4): k.e(f"v_cvt_pk_bf16_f32 v{x+d}, v{t+2*d}, v{t+2*d+1}")
            k.e(f"s_add_u32 s{sT}, s{sT2}, {i*16*2048}")
            k.vmem(f"buffer_store_dwordx4 {vr(x,4)}, v{vX}, {sr(sOs,4)}, s{sT} offen offset:{pr*64}", "st")

def gen_k2(name="g2_kernel"):
    NB, C, BB, SLOT, setsz, ACC, XR = geo()
    NS = Opt.NS
    k = Kern(name)
    k.e(header(name))
    k.e(f"s_cmp_ge_u32 s2, 256\ns_cbranch_scc1 L_{name}_end")
    if Opt.timing: k.e("s_memtime s[60:61]\ns_memrealtime s[76:77]")
    k.e("s_load_dwordx2 s[4:5], s[0:1], 0")
    k.e(f"s_load_dwordx2 s[{sWo}:{sWo+1}], s[0:1], 16")
    k.e("s_load_dwordx4 s[44:47], s[0:1], 48")
    k.e("s_load_dwordx2 s[6:7], s[0:1], 72")
    k.e(f"v_lshrrev_b32 v{vA}, 6, v0\nv_and_b32 v0, 63, v0\nv_readfirstlane_b32 s{sW}, v{vA}")
    if Opt.loaders: k.e(f"s_nop 0\ns_lshr_b32 s48, s{sW}, 2\ns_and_b32 s{sW}, s{sW}, 3")
    k.e(f"s_and_b32 s3, s2, 7\ns_lshr_b32 s{sT}, s2, 3")
    k.e(f"s_lshr_b32 s{sMt}, s3, 1\ns_lshl_b32 s{sMt}, s{sMt}, 2\ns_and_b32 s{sT2}, s{sT}, 3\ns_add_u32 s{sMt}, s{sMt}, s{sT2}")
    k.e(f"s_lshr_b32 s{sNt}, s{sT}, 2\ns_and_b32 s{sHalf}, s3, 1")
    if Opt.split:
        na, nb_ = Opt.split
        assert na + nb_ == 72 and na % 2 == 0 and na <= 56 - NS
        k.e(f"s_mul_i32 s{sT}, s{sHalf}, {na}")
    else:
        k.e(f"s_lshl_b32 s{sT2}, s{sHalf}, 3\ns_add_u32 s{sNt}, s{sNt}, s{sT2}\ns_mov_b32 s{sT}, 0")
    k.e(f"v_lshlrev_b32 v{vL16}, 4, v0")
    k.e(f"s_lshl_b32 s{sKA}, s{sMt}, 3\ns_lshl_b32 s{sT2}, s{sW}, 1\ns_add_u32 s{sKA}, s{sKA}, s{sT2}\ns_mul_i32 s{sKA}, s{sKA}, 144")
    k.e(f"s_lshl_b32 s{sT2}, s{sT}, 1\ns_add_u32 s{sKA}, s{sKA}, s{sT2}\ns_lshl_b32 s{sKA}, s{sKA}, 10")
    if WS_H: k.e(f"s_add_u32 s{sKA}, s{sKA}, {hex(WS_H)}")
    k.e(f"s_lshl_b32 s{sKB}, s{sT}, 17")
    k.e(f"s_lshl_b32 s{sMA}, s{sW}, 12\ns_lshl_b32 s{sMB}, s{sW}, 10\ns_add_u32 s{sMB}, s{sMB}, 16384")
    rows = 64 // C
    lg = {16: 4, 8: 3}[C]
    k.e(f"v_lshrrev_b32 v12, {lg}, v0\nv_and_b32 v13, {C-1}, v0")
    if C == 16:
        k.e(f"s_and_b32 s3, s{sW}, 1\ns_lshl_b32 s3, s3, 2\nv_add_u32 v14, s3, v12\nv_lshlrev_b32 v14, 1, v14")
    else:
        k.e("v_and_b32 v14, 6, v12")
    k.e("v_xor_b32 v13, v13, v14\nv_lshlrev_b32 v13, 4, v13\nv_lshl_add_u32 v13, v12, 11, v13")
    k.e(f"s_mul_i32 s3, s{sW}, {rows*2048}\ns_mul_i32 s{sT2}, s{sNt}, {C*16}\ns_add_u32 s3, s3, s{sT2}")
    k.e(f"v_add_u32 v{vDB0}, s3, v13")
    for i in range(1, NB): k.e(f"v_add_u32 v{vDB0+i}, {i*4*rows*2048}, v{vDB0}")
    k.e(f"v_and_b32 v12, 15, v0\nv_lshlrev_b32 v{vX}, 11, v12\nv_bfe_u32 v12, v0, 4, 1\nv_lshl_add_u32 v{vX}, v12, 5, v{vX}")
    k.e(f"v_lshrrev_b32 v12, 5, v0\nv_lshl_add_u32 v{vX}, v12, 4, v{vX}")
    k.e(f"s_lshr_b32 s3, s{sW}, 1\ns_lshl_b32 s3, s3, 6\ns_lshl_b32 s{sT2}, s{sMt}, 7\ns_add_u32 s{sT2}, s{sT2}, s3\ns_lshl_b32 s{sT2}, s{sT2}, 11")
    k.e(f"s_and_b32 s3, s{sW}, 1\ns_lshl_b32 s{sT}, s{sNt}, 1\ns_add_u32 s3, s3, s{sT}\ns_mul_i32 s3, s3, {NB*32}\ns_add_u32 s{sT2}, s{sT2}, s3")
    k.e(f"s_mov_b32 s{sRd}, 0\ns_mov_b32 s{sWrS}, 0")
    k.e("s_waitcnt lgkmcnt(0)")
    srd(k, sHs, 6, WS_BYTES)
    srd(k, sBs, 44, 3584 * 2048)
    srd(k, sXs, 4, 0x400000)
    srd(k, sOs, 46, 0x400000)
    if Opt.split:
        na, nb_ = Opt.split
        sw = 56 - na - NS
    else:
        na, nb_ = 72, 72
        sw = 56 - NS
    tail = NS + (NS % 2)
    def switch():
        return [(f"s_mov_b32 s{sBs}, s{sWo}\ns_mov_b32 s{sBs+1}, s{sWo+1}\ns_mov_b32 s{sBs+2}, {1024*2048}\ns_mov_b32 s{sKB}, 0", None)]
    if Opt.loaders:
        k.e(f"s_cmp_eq_u32 s48, 0\ns_cbranch_scc1 L_{name}_comp")
        if Opt.lprio: k.e(f"s_setprio {Opt.lprio}")
        for st in range(NS): emit_now(k, [tuple(x) for x in dma_items(("D", st))])
        k.e(f"s_cmp_eq_u32 s{sHalf}, 0")
        k.e(f"s_mov_b32 s{sPh}, {sw}" + (f"\ns_cmov_b32 s{sPh}, 1000" if Opt.split else ""))
        k.e(f"s_mov_b32 s39, {nb_ - NS}\ns_cmov_b32 s39, {na - NS}")
        k.e(f"s_mov_b32 s{sLoop}, 0")
        k.need_vm({("D", 0)}); k.e("s_barrier")
        k.need_vm({("D", 1)})
        k.label(f"L_{name}_lloop")
        k.e("s_barrier")
        k.e(f"s_cmp_lg_u32 s{sLoop}, s{sPh}\ns_cbranch_scc1 L_{name}_lnosw")
        emit_now(k, switch())
        k.label(f"L_{name}_lnosw")
        emit_now(k, [tuple(x) for x in dma_items(("D", NS))])
        k.need_vm({("D", 2)})
        k.e(f"s_add_u32 s{sLoop}, s{sLoop}, 1\ns_cmp_lg_u32 s{sLoop}, s39\ns_cbranch_scc1 L_{name}_lloop")
        for j in range(NS - 1):
            k.e("s_barrier")
            k.need_vm({("D", 3 + j)})
        k.e("s_endpgm")
        k.label(f"L_{name}_comp")
        k.vm = []
    else:
        for st in range(NS): emit_now(k, [tuple(x) for x in dma_items(("D", st))])
    k.e(f"s_lshr_b32 s3, s{sW}, 1\ns_lshl_b32 s3, s3, 13\nv_add_u32 v{vA}, s3, v{vL16}")
    k.e(f"v_lshrrev_b32 v12, 2, v0\nv_and_b32 v13, 7, v12")
    if C == 16: k.e("v_lshlrev_b32 v13, 1, v13")
    else: k.e("v_and_b32 v13, 6, v13")
    k.e(f"v_bfe_u32 v14, v0, 1, 1\nv_xor_b32 v13, v13, v14")
    k.e(f"v_mul_u32_u24 v12, {C*16}, v12\nv_and_b32 v14, 1, v0\nv_lshl_add_u32 v12, v14, 3, v12\nv_add_u32 v12, 16384, v12")
    k.e(f"s_and_b32 s3, s{sW}, 1\ns_mul_i32 s3, s3, {2*NB}")
    for b in range(NB):
        k.e(f"s_add_u32 s{sT}, s3, {2*b}\nv_xor_b32 v14, s{sT}, v13\nv_lshl_add_u32 v{vB0+b}, v14, 4, v12")
    for r in range(ACC, ACC + 16 * NB): k.e(f"v_mov_b32 v{r}, 0")
    k.need_vm({("D", 0)})
    k.e("s_barrier")
    stamp(k, 1)
    emit_now(k, read_items(0, ("R", 0)))
    for t in rot_items(): k.e(t)
    odd = sw % 2
    k.e(f"s_mov_b32 s{sLoop}, 0")
    if Opt.split:
        k.e(f"s_cmp_eq_u32 s{sHalf}, 0")
        k.e(f"s_mov_b32 s{sPh}, {sw - odd}\ns_cmov_b32 s{sPh}, 1000")
        k.e(f"s_mov_b32 s39, {nb_ - tail}\ns_cmov_b32 s39, {na - tail}")
    else:
        k.e(f"s_mov_b32 s{sPh}, {sw - odd}\ns_mov_b32 s39, {72 - tail}")
    k.e(".p2align 6")
    k.label(f"L_{name}_loop")
    st0 = (list(k.lgkm), list(k.vm))
    def sw_code():
        if Opt.loaders: return
        k.e(f"s_cmp_lg_u32 s{sLoop}, s{sPh}\ns_cbranch_scc1 L_{name}_nosw")
        emit_now(k, switch())
        k.label(f"L_{name}_nosw")
    if not odd: sw_code()
    gen_step(k, 0, 0, True, True)
    if odd: sw_code()
    gen_step(k, 1, 1, True, True)
    sh = lambda L, d: [(t[0], t[1] + d) for t in L]
    assert (sh(k.lgkm, -2), sh(k.vm, -2)) == st0, (k.lgkm, k.vm, st0)
    k.e(f"s_add_u32 s{sLoop}, s{sLoop}, 2\ns_cmp_lg_u32 s{sLoop}, s39\ns_cbranch_scc1 L_{name}_loop")
    N = 2 + tail
    xl = []
    for i in range(4):
        xl.append((f"s_add_u32 s42, s{sT2}, {i*16*2048}", None))
        for pr in range(NB // 2):
            xl.append((f"buffer_load_dwordx4 {vr(XR+(i*(NB//2)+pr)*4,4)}, v{vX}, {sr(sXs,4)}, s42 offen offset:{pr*64}", ("X", 0)))
    for s in range(2, N):
        gen_step(k, s, s & 1, s + 1 < N, s + NS < N, extra=(xl if s == N - 2 else None))
    stamp(k, 2)
    if Opt.split:
        k.e(f"s_lshl_b32 s3, s{sMt}, 3\ns_add_u32 s3, s3, s{sNt}\ns_lshl_b32 s3, s3, 2\ns_add_u32 s3, s3, s{sW}")
        k.e(f"s_lshl_b32 s42, s3, 14\ns_add_u32 s42, s42, {hex(WS_P)}")
        k.e(f"s_lshl_b32 s43, s3, 7\ns_add_u32 s43, s43, {hex(WS_F)}")
        k.e("v_mov_b32 v12, 0")
        k.e(f"s_cmp_eq_u32 s{sHalf}, 0\ns_cbranch_scc0 L_{name}_late")
        k.e("s_nop 7")
        for n in range(16):
            if n % 4 == 0 and n: k.e("s_add_u32 s42, s42, 4096")
            k.e(f"buffer_store_dwordx4 {vr(ACC+4*n,4)}, v{vL16}, {sr(sHs,4)}, s42 offen offset:{(n%4)*1024} {Opt.scope}")
        k.e("s_waitcnt vmcnt(0)")
        k.e(f"v_mov_b32 v13, 1\ns_mov_b64 exec, 1\nbuffer_store_dword v13, v12, {sr(sHs,4)}, s43 offen {Opt.scope}")
        k.e(f"s_branch L_{name}_fin")
        k.label(f"L_{name}_late")
        k.e("s_mov_b32 s3, 0")
        k.label(f"L_{name}_poll")
        k.e(f"buffer_load_dword v13, v12, {sr(sHs,4)}, s43 offen {Opt.scope}\ns_waitcnt vmcnt(0)\nv_readfirstlane_b32 s{sT}, v13")
        k.e(f"s_add_u32 s3, s3, 1\ns_cmp_eq_u32 s{sT}, 1\ns_cbranch_scc1 L_{name}_got\ns_sleep 2\ns_cmp_lt_u32 s3, 0x40000\ns_cbranch_scc1 L_{name}_poll")
        k.label(f"L_{name}_got")
        k.vm = []
        PR = FR0 + setsz
        for n in range(16):
            if n % 4 == 0 and n: k.e("s_add_u32 s42, s42, 4096")
            k.vmem(f"buffer_load_dwordx4 {vr(PR+4*n,4)}, v{vL16}, {sr(sHs,4)}, s42 offen offset:{(n%4)*1024} {Opt.scope}", ("P", n // NB, n % NB))
        final_epilogue(k, PR)
    else:
        k.e("s_nop 7")
        final_epilogue(k, None)
    k.label(f"L_{name}_fin")
    if Opt.timing:
        stamp(k, 3)
        k.e("s_waitcnt vmcnt(0)")
        stamp(k, 4)
        k.e("s_memrealtime s[78:79]\ns_waitcnt lgkmcnt(0)")
        for n in range(1, 5): k.e(f"s_sub_u32 s{60+2*n}, s{60+2*n}, s60")
        k.e("s_sub_u32 s78, s78, s76")
        k.e("v_mov_b32 v24, s62\nv_mov_b32 v25, s64\nv_mov_b32 v26, s66\nv_mov_b32 v27, s68\nv_mov_b32 v28, s78\nv_mov_b32 v29, s76\nv_mov_b32 v30, s77\nv_mov_b32 v31, 0")
        k.e(f"s_lshl_b32 s3, s2, 3\ns_add_u32 s3, s3, s{sW}\ns_lshl_b32 s3, s3, 6\ns_add_u32 s3, s3, 0x3100000")
        k.e("v_mov_b32 v36, 0\ns_mov_b64 exec, 1")
        for q in range(2): k.e(f"buffer_store_dwordx4 v[{24+4*q}:{27+4*q}], v36, {sr(sHs,4)}, s3 offen offset:{16*q}")
    k.label(f"L_{name}_end")
    k.e("s_endpgm")
    nv = XR + 8 * NB
    nv = (nv + 7) // 8 * 8
    return k.text(), descriptor(name, nv, 96, nv), f"; @launch kernel={name} grid=(256,1,1) block=({512 if Opt.loaders else 256},1,1) lds={NS*SLOT}"
```

```python
from asmlib import *
import math
KF, VF0, VF1, S0, P8, QC, QN, O0 = 16, 84, 120, 156, 224, 228, 232, 244
vKa, vVa, vL16, vM, vT, vC, vNeg, vSum = 2, 3, 4, 5, 6, 8, 10, 12
sWS, sZ = 8, 12
sMk = 20
sH, sMb, sW, sN, sQo, sOo, sLoop, sT = 28, 29, 30, 31, 32, 33, 34, 35

def S(t): return S0 + 4 * t

def attn_setup(k, name, lds0, nwave_base=0):
    k.e(f"v_lshlrev_b32 v{vL16}, 4, v1")
    k.e(f"s_mov_b32 s{sZ}, s{sWS}\ns_mov_b32 s{sZ+1}, s{sWS+1}\ns_mov_b32 s{sZ+3}, 0x20000")
    k.e(f"s_cmp_eq_u32 s{sMb}, 0\ns_cselect_b32 s{sZ+2}, 0, s{sWS+2}")
    k.e(f"s_lshl_b32 s36, s{sH}, 7\ns_lshl_b32 s37, s{sMb}, 4\ns_add_u32 s36, s36, s37\ns_add_u32 s36, s36, s{sW}")
    k.e(f"s_lshl_b32 s36, s36, 10\ns_add_u32 s36, s36, {hex(WS_K - 16*1024)}")
    k.e(f"s_lshl_b32 s37, s{sW}, 10")
    if lds0: k.e(f"s_add_u32 s37, s37, {lds0}")
    k.e(f"s_lshl_b32 s38, s{sH}, 17\ns_lshl_b32 s39, s{sMb}, 13\ns_add_u32 s38, s38, s39\ns_lshl_b32 s39, s{sW}, 10\ns_add_u32 s38, s38, s39")
    k.e(f"s_add_u32 s38, s38, {hex(WS_V - 8192)}")
    k.e(f"s_lshl_b32 s{sQo}, s{sH}, 7\ns_lshl_b32 s39, s{sMb}, 4\ns_add_u32 s{sQo}, s{sQo}, s39\ns_lshl_b32 s40, s{sW}, 2\ns_add_u32 s{sQo}, s{sQo}, s40")
    k.e(f"s_lshl_b32 s{sQo}, s{sQo}, 10\ns_add_u32 s{sQo}, s{sQo}, {hex(WS_Q)}")
    k.vmem(f"buffer_load_dwordx4 {vr(QN,4)}, v{vL16}, {sr(sWS,4)}, s{sQo} offen", "Q")
    for i in range(8):
        k.e(f"s_add_u32 s{sT}, s36, {i*4096}\ns_add_u32 m0, s37, {i*4096}")
        k.vmem(f"buffer_load_dwordx4 v{vL16}, {sr(sZ if i < 4 else sWS,4)}, s{sT} offen lds", "KV")
    for db in range(2):
        for i in range(4):
            k.e(f"s_add_u32 s{sT}, s38, {db*65536 + i*4096}\ns_add_u32 m0, s37, {32768 + db*16384 + i*4096}")
            k.vmem(f"buffer_load_dwordx4 v{vL16}, {sr(sZ if i < 2 else sWS,4)}, s{sT} offen lds", "KV")
    k.e(f"s_add_u32 s39, s39, s40\ns_mul_i32 s{sOo}, s39, 144\ns_add_u32 s{sOo}, s{sOo}, s{sH}\ns_add_u32 s{sOo}, s{sOo}, 112\ns_lshl_b32 s{sOo}, s{sOo}, 10")
    if WS_H: k.e(f"s_add_u32 s{sOo}, s{sOo}, {hex(WS_H)}")
    k.e(f"s_sub_u32 s{sN}, 16, s40\ns_cmp_eq_u32 s{sMb}, 0\ns_cselect_b32 s{sN}, s{sN}, 0")
    k.e(f"s_lshl_b32 s39, s{sW}, 12\ns_add_u32 s39, s39, {lds0}\nv_add_u32 v{vKa}, s39, v{vL16}")
    k.e(f"s_lshl_b32 s39, s{sW}, 11\ns_add_u32 s39, s39, {lds0 + 32768}\nv_lshlrev_b32 v{vVa}, 3, v1\nv_add_u32 v{vVa}, s39, v{vVa}")
    k.e(f"v_and_b32 v{vM}, 15, v1\nv_lshrrev_b32 v{vT}, 4, v1\nv_lshlrev_b32 v{vT}, 2, v{vT}")
    for r in range(4):
        k.e(f"v_cmp_le_u32 {sr(sMk+2*r,2)}, v{vT}, v{vM}")
        if r < 3: k.e(f"v_add_u32 v{vT}, 1, v{vT}")
    c = math.log2(math.e) / math.sqrt(32.0)
    k.e(f"v_mov_b32 v{vC}, {f32hex(c)}")
    for r in (VF0 + 34, VF0 + 35, VF1 + 34, VF1 + 35, P8 + 2, P8 + 3): k.e(f"v_mov_b32 v{r}, 0")

def k_read(k, t):
    k.ds(f"ds_read_b128 {vr(KF+4*t,4)}, v{vKa} offset:{t*1024}", ("K", t))
def v_read(k, db, t):
    k.ds(f"ds_read_b64_tr_b16 {vr((VF0,VF1)[db]+2*t,2)}, v{vVa} offset:{db*16384 + t*512}", ("V", db, t))

def attn_block(k, name, sm="", hook=None):
    hook = hook or (lambda k, n: None)
    k.need_vm({"Q"})
    for r in range(4): k.e(f"v_mov_b32 v{QC+r}, v{QN+r}")
    k.e(f"s_add_u32 s{sQo}, s{sQo}, 1024")
    k.vmem(f"buffer_load_dwordx4 {vr(QN,4)}, v{vL16}, {sr(sWS,4)}, s{sQo} offen", "Q")
    vq = [(db, t) for t in range(17) for db in range(2)]
    for t in range(17):
        k.need_lgkm({("K", t)})
        k.e(f"v_mfma_f32_16x16x32_bf16 {vr(S(t),4)}, {vr(KF+4*t,4)}, {vr(QC,4)}, 0")
        v_read(k, *vq[2*t]); v_read(k, *vq[2*t+1])
    k.e(f"v_add_u32 v{vKa}, 1024, v{vKa}\nv_add_u32 v{vVa}, 512, v{vVa}")
    hook(k, 0)
    k.e(f"s_cmp_eq_u32 s{sN}, 0\ns_cbranch_scc1 L_{name}_nomask")
    k.e("s_nop 7")
    for t in range(16):
        for r in range(4): k.e(f"v_mov_b32 v{S(t)+r}, {f32hex(-1e30)}")
        if t < 15: k.e(f"s_cmp_eq_u32 s{sN}, {t+1}\ns_cbranch_scc1 L_{name}_maskd")
    k.label(f"L_{name}_maskd")
    k.e(f"s_sub_u32 s{sN}, s{sN}, 1")
    k.label(f"L_{name}_nomask")
    vals = [S(t) + r for t in range(1, 16) for r in range(4)]
    k.e(f"v_max3_f32 v{vM}, v{vals[0]}, v{vals[1]}, v{vals[2]}")
    k.e(f"v_max3_f32 v{vT}, v{vals[3]}, v{vals[4]}, v{vals[5]}")
    rest = vals[6:]
    for n in range(0, len(rest), 2):
        d = vM if (n // 2) % 2 == 0 else vT
        k.e(f"v_max3_f32 v{d}, v{d}, v{rest[n]}, v{rest[n+1]}")
    for r in range(4): k.e(f"v_cndmask_b32 v{S(0)+r}, v{S(0)+r}, v{S(16)+r}, {sr(sMk+2*r,2)}")
    k.e(f"v_max3_f32 v{vM}, v{vM}, v{S(0)}, v{S(0)+1}")
    k.e(f"v_max3_f32 v{vT}, v{vT}, v{S(0)+2}, v{S(0)+3}")
    k.e(f"v_max_f32 v{vM}, v{vM}, v{vT}")
    for p in ("v_permlane16_swap_b32", "v_permlane32_swap_b32"):
        k.e(f"v_mov_b32 v{vT}, v{vM}\n{p} v{vM}, v{vT}\nv_max_f32 v{vM}, v{vM}, v{vT}")
    k.e(f"v_mul_f32 v{vNeg}, v{vC}, v{vM}")
    k.e(f"v_sub_f32 v{vNeg}, 0, v{vNeg}")
    hook(k, 1)
    kq = list(range(17))
    first = True
    for u in range(8):
        for t in (2*u, 2*u+1):
            s = S(t)
            for hf in (0, 2):
                k.e(f"v_pk_fma_f32 {vr(s+hf,2)}, {vr(s+hf,2)}, {vr(vC,2)}, {vr(vNeg,2)} op_sel_hi:[1,0,0]")
            for r in range(4): k.e(f"v_exp_f32 v{s+r}, v{s+r}")
            if kq: k_read(k, kq.pop(0))
            for hf in (0, 2):
                if first:
                    k.e(f"v_pk_add_f32 {vr(vSum,2)}, {vr(s,2)}, {vr(s+2,2)}"); first = False; break
                k.e(f"v_pk_add_f32 {vr(vSum,2)}, {vr(vSum,2)}, {vr(s+hf,2)}")
            if t == 0:
                e = S(16)
                for r in range(4): k.e(f"v_cndmask_b32 v{e+r}, 0, v{s+r}, {sr(sMk+2*r,2)}")
                for r in range(4): k.e(f"v_cndmask_b32 v{s+r}, v{s+r}, 0, {sr(sMk+2*r,2)}")
                k.e(f"v_cvt_pk_bf16_f32 v{P8}, v{e}, v{e+1}\nv_cvt_pk_bf16_f32 v{P8+1}, v{e+2}, v{e+3}")
        p = S(2*u)
        for x in range(4): k.e(f"v_cvt_pk_bf16_f32 v{p+x}, v{p+2*x}, v{p+2*x+1}")
        if u == 0:
            for db in range(2):
                k.need_lgkm({("V", db, 16)})
                k.e(f"v_mfma_f32_16x16x32_bf16 {vr(O0+4*db,4)}, {vr((VF0,VF1)[db]+32,4)}, {vr(P8,4)}, 0")
        else:
            pp = S(2*u-2)
            for db in range(2):
                k.e(f"v_mfma_f32_16x16x32_bf16 {vr(O0+4*db,4)}, {vr((VF0,VF1)[db]+4*(u-1),4)}, {vr(pp,4)}, {vr(O0+4*db,4)}")
        if u in (2, 5): hook(k, 2 + (u == 5))
    while kq: k_read(k, kq.pop(0))
    k.e(f"v_add_f32 v{vSum}, v{vSum}, v{vSum+1}")
    for db in range(2):
        k.e(f"v_mfma_f32_16x16x32_bf16 {vr(O0+4*db,4)}, {vr((VF0,VF1)[db]+28,4)}, {vr(S(14),4)}, {vr(O0+4*db,4)}")
    for p in ("v_permlane16_swap_b32", "v_permlane32_swap_b32"):
        k.e(f"v_mov_b32 v{vT}, v{vSum}\n{p} v{vSum}, v{vT}\nv_add_f32 v{vSum}, v{vSum}, v{vT}")
    k.e(f"v_rcp_f32 v{vSum}, v{vSum}")
    for x in range(4): k.e(f"v_pk_mul_f32 {vr(O0+2*x,2)}, {vr(O0+2*x,2)}, {vr(vSum,2)} op_sel_hi:[1,0]")
    for x in range(4): k.e(f"v_cvt_pk_bf16_f32 v{S(16)+x}, v{O0+2*x}, v{O0+2*x+1}")
    k.vmem(f"buffer_store_dwordx4 {vr(S(16),4)}, v{vL16}, {sr(sWS,4)}, s{sOo} offen{sm}", "O")
    k.e(f"s_add_u32 s{sOo}, s{sOo}, {144*1024}")

def gen_attn(name="at_kernel"):
    k = Kern(name)
    k.e(header(name))
    k.e(f"s_cmp_ge_u32 s2, 256\ns_cbranch_scc1 L_{name}_end")
    k.e("s_load_dwordx2 s[4:5], s[0:1], 72")
    k.e(f"v_lshrrev_b32 v2, 6, v0\nv_and_b32 v1, 63, v0\nv_readfirstlane_b32 s{sW}, v2")
    k.e(f"s_and_b32 s{sH}, s2, 31\ns_lshr_b32 s{sMb}, s2, 5")
    k.e("s_waitcnt lgkmcnt(0)")
    srd(k, sWS, 4, WS_BYTES)
    attn_setup(k, name, 0)
    k.need_vm({"KV"})
    k.e("s_barrier")
    for t in range(17): k_read(k, t)
    k.e(f"s_mov_b32 s{sLoop}, 4")
    k.vm = ["Q", "O"]
    k.label(f"L_{name}_loop")
    st = (list(k.lgkm), list(k.vm))
    attn_block(k, name)
    assert (k.lgkm, k.vm[-2:]) == st, (k.lgkm, k.vm, st)
    k.e(f"s_sub_u32 s{sLoop}, s{sLoop}, 1\ns_cmp_lg_u32 s{sLoop}, 0\ns_cbranch_scc1 L_{name}_loop")
    k.label(f"L_{name}_end")
    k.e("s_endpgm")
    return k.text(), descriptor(name, 256, 64, 256), f"; @launch kernel={name} grid=(256,1,1) block=(256,1,1) lds=65536"
```

```python
import sys
from build import assemble
import fused
NAME = "parallel_sum__sliding_block__glu_gated_geglu__prompt_kernel"
def make(path, **kw):
    d = {k: getattr(fused.Opt, k) for k in kw}
    for k, v in kw.items(): setattr(fused.Opt, k, v)
    assemble([fused.gen_fused(NAME)], path)
    for k, v in d.items(): setattr(fused.Opt, k, v)
if __name__ == "__main__":
    make("f0.s")
    make("f0t.s", timing=True)
    make("f0d.s", timing=True, dbg=True)
```

```python
from asmlib import *
import math

class Opt:
    timing = False
    dbg = False
    nB1 = 3
    rot = True
    hsc = " sc1"
    NS = 5
    pbf16 = False
    kvbar = 2
    kvpoll = 5
    hhook = 1

WS_H, WS_K, WS_V = 0, 0x1600000, 0x1A00000
WS_P = 0x2200000
WS_ST = 0x2B00000
WS_CS = 0x2B10000
WS_F = 0x2C00000
F_ST, F_CS, F_KV, F_H, F_O, F_P = 0, 0x1000, 0x2000, 0x3000, 0x4000, 0x8000
WS_T = 0x3000000
LDS_B, BSLOT = 65536, 40960
L_K, L_V, L_Q, L_CO, L_CT = 65536, 98304, 131072, 147456, 150016
LDS_BYTES = 163840
sX, sWa, sWb, sWc, sWS = 8, 12, 16, 20, 24
sKA, sKB, sKQ, sStep = 28, 29, 30, 31
sO = [None, 32, 33, 34]
sM = [35, 36, 37, 38, 39]
sMA, sT, sStage, sW, sMb, sH, sWr, sWc_ = 40, 41, 42, 43, 44, 45, 46, 47
pX, pQKV, pG, pU, pD, pOut, pDbg, pWS, pWo = 4, 6, 48, 50, 52, 54, 56, 58, 84
sNon, sCs, sFl1, sFl2, sNbG, sNbS, sOne, sU, sV, sRow = 86, 87, 88, 89, 90, 91, 92, 93, 94, 95
ACC0, BF0, AF0 = 96, 56, 24
vA0, vA1, vGU, vQe, vQo, vDA, vDB0, vDB1, vNon = 1, 2, 3, 4, 5, 6, 7, 8, 9
RAW, TMP = 10, 18
def acc(i, j): return ACC0 + (i * 5 + j) * 4
def bfr(j, kk): return BF0 + (j * 2 + kk) * 4
def afr(st, b, kk): return AF0 + ((st * 2 + b) * 2 + kk) * 4
NST = 16
uid = [0]
def lab(k, s):
    uid[0] += 1
    return f"L_{s}_{uid[0]}"

def csel(d, a, b): return f"s_mov_b32 s{d}, {b}\ns_cmov_b32 s{d}, {a}"
def stamp(k, n):
    if Opt.timing: k.e(f"s_memtime s[{60+2*n}:{61+2*n}]")

def a_read(k, stage, pair, b, kk):
    i = 2 * pair + b
    k.ds(f"ds_read_b128 {vr(afr(pair&1,b,kk),4)}, v{vA0 if kk == 0 else vA1} offset:{(stage&1)*32768 + i*2048}", ("A", stage, pair, b, kk))

def b_read(k, var, stage, j, kk, rd):
    sl = (stage & 1) * BSLOT
    ng = 4 if var == 0 else 2
    if j < ng: base, off = vGU, sl + (j & 1) * 14336 + (j >> 1) * 32 + (32 * kk + 8 * rd) * 224
    elif var == 0: base, off = vQe, sl + (32 * kk + 8 * rd) * 192
    else: base, off = (vQe if j % 2 == 0 else vQo), sl + (j - 2) * 32 + (32 * kk + 8 * rd) * 192
    assert off < 65536
    k.ds(f"ds_read_b64_tr_b16 {vr(bfr(j,kk)+2*rd,2)}, v{base} offset:{off}", ("B", stage, j, kk, rd))

def dma_a(stage, which):
    t0 = [0, 16, 8, 24][which]
    r = []
    if t0: r.append(("s", f"s_add_u32 s{sT}, s{sKA}, {t0*16384}", None))
    r.append(("s", f"s_add_u32 m0, s{sMA}, {(stage&1)*32768 + t0*1024}", None))
    r.append(("v", f"buffer_load_dwordx4 v{vDA}, {sr(sX,4)}, s{sT if t0 else sKA} offen lds", ("Alo" if which < 2 else "Ahi", stage)))
    return r

def dma_b(stage, d):
    r = []
    sl = (stage & 1) * BSLOT
    if d in (1, 2, 3): r.append(("s", f"s_add_u32 s{sT}, s{sKB}, s{sO[d]}", None))
    r.append(("s", f"s_add_u32 m0, s{sM[d]}, {sl}" if sl else f"s_mov_b32 m0, s{sM[d]}", None))
    so = {0: sKB, 4: sKQ}.get(d, sT)
    r.append(("v", f"buffer_load_dwordx4 v{vDB1 if d == 4 else vDB0}, {sr([sWa,sWa,sWb,sWb,sWc][d],4)}, s{so} offen lds", ("B", stage)))
    return r

def advance():
    return [("s", f"s_add_u32 s{sKA}, s{sKA}, 128", None),
            ("s", f"s_add_u32 s{sKB}, s{sKB}, s{sStep}", None),
            ("s", f"s_add_u32 s{sKQ}, s{sKQ}, {64*6144}", None)]

def emit_items(k, items):
    for kind, text, tag in items:
        if kind == "s": k.e(text)
        elif kind == "v": k.vmem(text, tag)
        elif kind == "f": text(k)

def pair_order():
    seq = []
    for j in range(5):
        bs = (0, 1) if j % 2 == 0 else (1, 0)
        seq += [(bs[0], j, 0), (bs[0], j, 1), (bs[1], j, 1), (bs[1], j, 0)]
    return seq

def reduce_list(op, v, t):
    L = []
    for mod in ("quad_perm:[1,0,3,2]", "quad_perm:[2,3,0,1]", "row_half_mirror", "row_mirror"):
        L.append(f"{op}_dpp v{v}, v{v}, v{v} {mod} row_mask:0xf bank_mask:0xf")
    for p in ("v_permlane16_swap_b32", "v_permlane32_swap_b32"):
        L += [f"v_mov_b32 v{t}, v{v}", f"{p} v{v}, v{t}", f"{op} v{v}, v{v}, v{t}"]
    return L

def stats_list():
    mu, sq, a, b = TMP, TMP + 1, TMP + 2, TMP + 3
    L = [f"v_mov_b32 v{mu}, 0"]
    for i in range(8): L.append(f"v_dot2_f32_bf16 v{mu}, v{RAW+i}, s{sOne}, v{mu}")
    L += reduce_list("v_add_f32", mu, a)
    L.append(f"v_mul_f32 v{mu}, {f32hex(1/1024)}, v{mu}")
    L.append(f"v_mov_b32 v{sq}, 0")
    for i in range(8):
        L += [f"v_lshlrev_b32 v{a}, 16, v{RAW+i}", f"v_and_b32 v{b}, 0xffff0000, v{RAW+i}",
              f"v_sub_f32 v{a}, v{a}, v{mu}", f"v_sub_f32 v{b}, v{b}, v{mu}",
              f"v_fmac_f32 v{sq}, v{a}, v{a}", f"v_fmac_f32 v{sq}, v{b}, v{b}"]
    L += reduce_list("v_add_f32", sq, a)
    L.append(f"v_mul_f32 v{sq}, {f32hex(1/1024)}, v{sq}")
    rnd = lambda r: [f"v_cvt_pk_bf16_f32 v{r}, v{r}, v{r}", f"v_lshlrev_b32 v{r}, 16, v{r}"]
    L += rnd(mu) + rnd(sq) + [f"v_add_f32 v{sq}, {f32hex(1e-5)}, v{sq}"] + rnd(sq) + [f"v_sqrt_f32 v{sq}, v{sq}"] + rnd(sq)
    return L

def colsum_block(k, stage, var, tail):
    cs, t = TMP, TMP + 5
    skip = lab(k, "cs")
    if tail: k.e(f"s_cmp_lg_u32 s{sWr}, {stage & 1}")
    elif stage < 2: k.e(f"s_cmp_lg_u32 s{sCs}, {stage}")
    else: k.e(f"s_cmp_lg_u32 s{sCs}, s{sStage}")
    k.e(f"s_cbranch_scc1 {skip}")
    for j in range(5): k.e(f"v_dot2_f32_bf16 v{cs+j}, v{bfr(j,0)}, s{sOne}, 0")
    for r in range(1, 8):
        for j in range(5): k.e(f"v_dot2_f32_bf16 v{cs+j}, v{bfr(j,0)+r}, s{sOne}, v{cs+j}")
    for p in ("v_permlane16_swap_b32", "v_permlane32_swap_b32"):
        for j in range(5): k.e(f"v_mov_b32 v{t}, v{cs+j}\n{p} v{cs+j}, v{t}\nv_add_f32 v{cs+j}, v{cs+j}, v{t}")
    k.e(f"v_and_b32 v{t}, 15, v0\nv_lshlrev_b32 v{t}, 2, v{t}")
    offs = [(sNbG, 0), (sNbG, 448), (sNbG, 64), (sNbG, 512), (sNbS, 0)] if var == 0 else [(sNbG, 0), (sNbG, 448), (None, 0), (None, 64), (None, 128)]
    if tail:
        k.e(f"v_add_u32 v{t}, {L_CO + (stage & 1) * 1280}, v{t}")
        cur = None
        for j, (s_, o) in enumerate(offs):
            if s_ != cur:
                if cur is not None: k.e(f"v_subrev_u32 v{t}, s{cur}, v{t}")
                if s_ is not None: k.e(f"v_add_u32 v{t}, s{s_}, v{t}")
                cur = s_
            k.e(f"ds_write_b32 v{t}, v{cs+j} offset:{o}")
    else:
        k.e(f"s_lshl_b32 s{sU}, s{sH}, 4\ns_add_u32 s{sU}, s{sU}, s{sCs}\ns_mul_i32 s{sU}, s{sU}, 1280\ns_add_u32 s{sU}, s{sU}, {hex(WS_CS)}")
        for j, (s_, o) in enumerate(offs):
            if s_ is not None: k.e(f"s_add_u32 s{sV}, s{sU}, s{s_}")
            k.e(f"buffer_store_dword v{cs+j}, v{t}, {sr(sWS,4)}, s{sV if s_ is not None else sU} offen offset:{o} sc1")
    k.label(skip)

def flag_store(k, vtmp, soff):
    k.e(f"v_mov_b32 v{vtmp}, s{sNon}")
    k.e(f"buffer_store_dword v{vtmp}, off, {sr(sWS,4)}, s{soff} sc1")

def flag_block(k, stage):
    for which, sfl in ((0, sFl1), (1, sFl2)):
        if which == 0 and stage != 2: continue
        skip = lab(k, "fl")
        k.e(f"s_cmp_lg_u32 s{sfl}, s{sStage}\ns_cbranch_scc1 {skip}")
        if which == 0: k.e(f"s_lshl_b32 s{sU}, s{sMb}, 7\ns_lshl_b32 s{sV}, s{sH}, 2\ns_add_u32 s{sU}, s{sU}, s{sV}\ns_add_u32 s{sU}, s{sU}, {hex(WS_F+F_ST)}")
        else: k.e(f"s_lshl_b32 s{sU}, s{sH}, 7\ns_lshl_b32 s{sV}, s{sMb}, 2\ns_add_u32 s{sU}, s{sU}, s{sV}\ns_add_u32 s{sU}, s{sU}, {hex(WS_F+F_CS)}")
        flag_store(k, TMP + 5, sU)
        k.label(skip)

def spread(n, first, last): return [first + ((last - first) * i) // max(n - 1, 1) for i in range(n)]

def gen_pair(k, var, stage, pair, carry, mfma=True, valu=None):
    fill = {g: [] for g in range(24)}
    for g, it in carry.items(): fill[g] += it
    nst, npair = (stage, pair + 1) if pair < 3 else (stage + 1, 0)
    if nst < NST:
        g0 = 3 if pair == 0 else 0
        for n, (b, kk) in enumerate([(0, 0), (0, 1), (1, 1), (1, 0)]):
            fill[g0 + n].append(("f", (lambda kk_, b_: (lambda kn: a_read(kn, nst, npair, b_, kk_)))(kk, b), None))
    if pair == 3 and stage + 1 < NST:
        for j in range(5):
            for n, (kk, rd) in enumerate([(1, 0), (1, 1), (0, 0), (0, 1)]):
                fill[4 * j + 3 + n].append(("f", (lambda j_, kk_, rd_: (lambda kn: b_read(kn, var, stage + 1, j_, kk_, rd_)))(j, kk, rd), None))
    def place(items, g):
        sc = [x for x in items if x[0] == "s"]
        for n, x in enumerate(sc): fill[g - len(sc) + n].append(x)
        fill[g] += [x for x in items if x[0] == "v"]
    n1 = Opt.nB1
    ylist = [("a", 0), ("a", 1)] + [("b", d) for d in range(n1)]
    xlist = [("b", d) for d in range(n1, 5)] + [("a", 2), ("a", 3)]
    def mk(x, tgt): return dma_a(tgt, x[1]) if x[0] == "a" else dma_b(tgt, x[1])
    if stage == -1:
        pass
    elif stage == 0 and pair == 0:
        lst = [("a", 0), ("a", 1)] + [("b", d) for d in range(5)]
        fill[0] += advance()
        for x, p in zip(lst, spread(len(lst), 2, 19)): place(mk(x, 1), p)
    elif stage == 0 and pair in (1, 2):
        lst = [("a", 2, 1), ("a", 3, 1), ("raw",), ("adv",)] + [(x[0], x[1], 2) for x in ylist]
        for x, p in zip(lst, spread(len(lst), 4, 38)):
            if (p < 20) != (pair == 1): continue
            g = p % 20
            if x[0] == "adv": fill[g] += advance()
            elif x[0] == "raw":
                fill[g - 1].append(("s", f"v_lshlrev_b32 v{RAW+4}, 4, v0", None))
                fill[g].append(("v", f"buffer_load_dwordx4 {vr(RAW,4)}, v{RAW+4}, {sr(sX,4)}, s{sRow} offen", ("RAW", 0)))
                fill[g].append(("v", f"buffer_load_dwordx4 {vr(RAW+4,4)}, v{RAW+4}, {sr(sX,4)}, s{sRow} offen offset:1024", ("RAW", 0)))
                fill[g + 1].append(("v", f"global_load_dword v{vNon}, v{vNon}, {sr(pDbg,2)} sc1", ("RAW", 0)))
            else: place(mk(x, x[2]), max(g, 2))
    elif pair in (1, 2):
        tgt = stage + 2
        if tgt < NST:
            if pair == 1:
                for n, it in enumerate(advance()): fill[n].append(it)
            for x, p in zip(ylist, spread(len(ylist), 7, 37)):
                if pair == 1 and p < 20: place(mk(x, tgt), max(p, 2))
                if pair == 2 and p >= 20: place(mk(x, tgt), max(p - 20, 6))
    else:
        tgt = stage + 2 if pair == 3 else stage + 1
        if tgt < NST:
            n3 = 1 if len(xlist) > 2 else 0
            if pair == 3:
                for x in xlist[:n3]: place(mk(x, tgt), 10)
            else:
                for x, p in zip(xlist[n3:], spread(len(xlist) - n3, 8, 18)): place(mk(x, tgt), p)
    if valu:
        for n, it in enumerate(valu): fill[(n * 20) // len(valu)].append(it)
    for g, (b, j, kk) in enumerate(pair_order()):
        if mfma:
            k.need_lgkm({("A", stage, pair, b, kk), ("B", stage, j, kk, 0), ("B", stage, j, kk, 1)})
            a = acc(2 * pair + b, j)
            k.e(f"v_mfma_f32_16x16x32_bf16 {vr(a,4)}, {vr(bfr(j,kk),4)}, {vr(afr(pair&1,b,kk),4)}, {vr(a,4)}")
        emit_items(k, fill[g])
    return {g - 20: fill[g] for g in range(20, 24) if fill[g]}

def barrier(k, tags):
    k.need_vm(tags, also_lgkm0=True)
    k.e("s_barrier")

def nonce_check(k):
    ok, lp = lab(k, "nok"), lab(k, "nlp")
    k.e(f"v_readfirstlane_b32 s{sNon}, v{vNon}\ns_mov_b32 s{sV}, 0")
    k.label(lp)
    k.e(f"s_cmp_lg_u32 s{sNon}, 0\ns_cbranch_scc1 {ok}")
    k.e(f"v_mov_b32 v{vNon}, 0\nglobal_load_dword v{vNon}, v{vNon}, {sr(pDbg,2)} sc1\ns_waitcnt vmcnt(0)\nv_readfirstlane_b32 s{sNon}, v{vNon}")
    k.e(f"s_add_u32 s{sV}, s{sV}, 1\ns_cmp_lt_u32 s{sV}, 0x100000\ns_cbranch_scc1 {lp}")
    k.label(ok)

def gen_stage(k, var, stage, carry):
    carry = gen_pair(k, var, stage, 0, carry)
    barrier(k, {("Ahi", stage), ("RAW", 0)} if stage == 1 else {("Ahi", stage)})
    if stage == 0:
        pass
    colsum_block(k, stage, var, stage >= 14)
    v1 = v2 = None
    if stage == 1:
        nonce_check(k)
        L = [("s", x, None) for x in stats_list()]
        L.append(("s", f"s_lshr_b32 s{sRow}, s{sRow}, 8\ns_add_u32 s{sRow}, s{sRow}, {hex(WS_ST)}", None))
        L.append(("v", f"buffer_store_dwordx2 {vr(TMP,2)}, off, {sr(sWS,4)}, s{sRow} sc1", ("ST", 0)))
        h = len(L) // 2
        v1, v2 = L[:h], L[h:]
    carry = gen_pair(k, var, stage, 1, carry, valu=v1)
    carry = gen_pair(k, var, stage, 2, carry, valu=v2)
    if stage + 1 < NST:
        barrier(k, {("Alo", stage + 1), ("B", stage + 1)})
    if stage >= 2 and stage % 2 == 0: flag_block(k, stage)
    if stage >= 1: k.e(f"s_add_u32 s{sStage}, s{sStage}, 1")
    carry = gen_pair(k, var, stage, 3, carry)
    return carry

def gen_main(k, var):
    barrier(k, {("Alo", 0), ("B", 0)})
    stamp(k, 1)
    carry = gen_pair(k, var, -1, 3, {}, mfma=False)
    carry = gen_stage(k, var, 0, carry)
    carry = gen_stage(k, var, 1, carry)
    def norm(base):
        f = lambda t: tuple((x - base) if n == 1 else x for n, x in enumerate(t))
        return [f(t) for t in k.lgkm], [f(t) for t in k.vm if t[0] != "ST"]
    k.vm = [t for t in k.vm if t[0] != "ST"]
    loop = lab(k, "loop")
    k.e(".p2align 6")
    k.label(loop)
    st0 = norm(2)
    c = gen_stage(k, var, 2, carry)
    c = gen_stage(k, var, 3, c)
    assert st0 == norm(4), (st0, norm(4))
    k.e(f"s_cmp_lg_u32 s{sStage}, 14\ns_cbranch_scc1 {loop}")
    sh = lambda t: tuple((x + 10) if n == 1 else x for n, x in enumerate(t))
    k.lgkm = [sh(t) for t in k.lgkm]; k.vm = [sh(t) for t in k.vm]
    c = gen_pair(Kern("tmp"), var, 13, 3, {}, mfma=False)
    c = gen_stage(k, var, 14, c)
    c = gen_stage(k, var, 15, c)
    assert not c

def poll(k, vaddr, vdst, soff, name):
    lp, ok = lab(k, name), lab(k, name + "ok")
    k.e(f"s_mov_b32 s{sV}, 0")
    k.label(lp)
    k.e(f"buffer_load_dword v{vdst}, v{vaddr}, {sr(sWS,4)}, s{soff} offen sc1\ns_waitcnt vmcnt(0)")
    k.e(f"v_cmp_ne_u32 vcc, s{sNon}, v{vdst}\ns_nop 1\ns_cbranch_vccz {ok}")
    k.e(f"s_sleep 1\ns_add_u32 s{sV}, s{sV}, 1\ns_cmp_lt_u32 s{sV}, 0x80000\ns_cbranch_scc1 {lp}")
    k.label(ok)
    k.vm = []

STA, CSR, KC = 24, 40, 60
vL8, vS8, OUT, GT = 66, 67, 68, 80

def g2_b_dma(step_slot, tag):
    it = []
    for i in range(4):
        it.append((f"s_add_u32 m0, s{g2MB}, {step_slot*32768}" if i == 0 else "s_add_u32 m0, m0, 4096", None))
        it.append((f"buffer_load_dwordx4 v{g2DB+i}, {sr(g2Bs,4)}, s{g2KB} offen lds", tag))
    return it

def ln_gather(k, var):
    t = OUT
    k.e(f"v_cmp_gt_u32 vcc, 32, v0\nv_lshlrev_b32 v{t}, 2, v0\ns_lshl_b32 s{sU}, s{sMb}, 7\nv_add_u32 v{t+1}, s{sU}, v{t}")
    k.e(f"s_lshl_b32 s{sU}, s{sH}, 7\ns_add_u32 s{sU}, s{sU}, {F_CS - F_ST - 128}\nv_min_u32 v{t}, {38*4}, v{t}\nv_add_u32 v{t}, s{sU}, v{t}")
    k.e(f"v_cndmask_b32 v{t}, v{t}, v{t+1}, vcc\ns_mov_b32 s{sU}, {hex(WS_F+F_ST)}")
    poll(k, t, t + 1, sU, "pln")
    k.e(f"v_and_b32 v{t}, 15, v0\nv_lshlrev_b32 v{t}, 3, v{t}")
    k.e(f"s_lshl_b32 s{sU}, s{sMb}, 11\ns_lshl_b32 s{sV}, s{sWr}, 10\ns_add_u32 s{sU}, s{sU}, s{sV}\ns_add_u32 s{sU}, s{sU}, {hex(WS_ST)}")
    for i in range(8): k.vmem(f"buffer_load_dwordx2 {vr(STA+2*i,2)}, v{t}, {sr(sWS,4)}, s{sU} offen offset:{i*128} sc1", "STA")
    skip, skip2 = lab(k, "cg"), lab(k, "cg2")
    k.e(f"s_lshl_b32 s{sU}, s{sW}, 8\nv_lshlrev_b32 v{t}, 2, v0\nv_add_u32 v{t}, s{sU}, v{t}")
    k.e(f"s_cmp_ge_u32 s{sW}, 5\ns_cbranch_scc1 {skip}")
    k.e(f"s_mul_i32 s{sU}, s{sH}, {16*1280}\ns_add_u32 s{sU}, s{sU}, {hex(WS_CS)}")
    for n in range(14):
        if n and n % 3 == 0: k.e(f"s_add_u32 s{sU}, s{sU}, {3*1280}")
        k.e(f"buffer_load_dword v{CSR+n}, v{t}, {sr(sWS,4)}, s{sU} offen offset:{(n%3)*1280} sc1")
    k.label(skip)
    k.e("s_waitcnt lgkmcnt(0)\ns_barrier"); k.lgkm = []
    stamp(k, 3)
    k.e(f"s_cmp_ge_u32 s{sW}, 5\ns_cbranch_scc1 {skip2}")
    k.e(f"v_add_u32 v{t}, {L_CO}, v{t}\nds_read_b32 v{CSR+14}, v{t}\nds_read_b32 v{CSR+15}, v{t} offset:1280\ns_waitcnt vmcnt(0) lgkmcnt(0)")
    for n in range(8): k.e(f"v_add_f32 v{CSR+n}, v{CSR+n}, v{CSR+8+n}")
    for n in range(4): k.e(f"v_add_f32 v{CSR+n}, v{CSR+n}, v{CSR+4+n}")
    k.e(f"v_add_f32 v{CSR}, v{CSR}, v{CSR+2}\nv_add_f32 v{CSR+1}, v{CSR+1}, v{CSR+3}\nv_add_f32 v{CSR}, v{CSR}, v{CSR+1}")
    k.e(f"ds_write_b32 v{t}, v{CSR} offset:{L_CT - L_CO}\ns_waitcnt lgkmcnt(0)")
    k.label(skip2)
    skip3 = lab(k, "w2")
    k.e(f"s_cmp_lt_u32 s{sW}, 4\ns_cbranch_scc1 {skip3}")
    g2_loader_setup(k)
    for st in range(2):
        for text, tag in g2_b_dma(st, None): k.e(text)
        k.e(f"s_add_u32 s{g2KB}, s{g2KB}, {64*2048}")
    k.label(skip3)
    k.e("s_barrier")
    k.e(f"v_lshrrev_b32 v{t}, 4, v0\nv_lshlrev_b32 v{t}, 4, v{t}\nv_add_u32 v{t}, {L_CT}, v{t}")
    k.e(f"v_add_u32 v{t+1}, s{sNbG}, v{t}")
    if var == 0:
        k.e(f"v_add_u32 v{t}, s{sNbS}, v{t}")
        rd = [(t + 1, 0), (t + 1, 448), (t + 1, 64), (t + 1, 512), (t, 0)]
    else:
        rd = [(t + 1, 0), (t + 1, 448), (t, 0), (t, 64), (t, 128)]
    for j, (a, o) in enumerate(rd): k.ds(f"ds_read_b128 {vr(CSR+4*j,4)}, v{a} offset:{o}", "CS")
    k.need_vm({"STA"})
    for i in range(8): k.e(f"v_sub_f32 v{STA+2*i}, 0, v{STA+2*i}")
    k.need_lgkm({"CS"})

def center(k, i, j):
    a = acc(i, j)
    for hf in (0, 2):
        k.e(f"v_pk_fma_f32 {vr(a+hf,2)}, {vr(CSR+4*j+hf,2)}, {vr(STA+2*i,2)}, {vr(a+hf,2)} op_sel_hi:[1,0,1]")

def geglu(k, i, pairs, outs):
    c0 = -2.0 * math.log2(math.e) * math.sqrt(2.0 / math.pi)
    R, C0, C1, S2 = KC, KC + 2, KC + 4, KC + 1
    k.e(f"v_rcp_f32 v{R}, v{STA+2*i+1}")
    k.e(f"v_mul_f32 v{S2+0}, v{STA+2*i+1}, v{STA+2*i+1}")
    for jg, ju in pairs: center(k, i, jg); center(k, i, ju)
    k.e(f"v_mul_f32 v{C0}, {f32hex(c0)}, v{R}\nv_mul_f32 v{C1}, v{R}, v{R}\nv_mul_f32 v{C1}, {f32hex(0.044715)}, v{C1}\nv_mul_f32 v{C1}, v{C1}, v{C0}")
    P = []
    for x, (jg, ju) in enumerate(pairs):
        for hf in range(2): P.append((acc(i, jg) + 2 * hf, acc(i, ju) + 2 * hf, GT + ((i & 1) * 4 + x * 2 + hf) * 2, outs[x] + hf))
    for g, u, t, o in P: k.e(f"v_pk_mul_f32 {vr(t,2)}, {vr(g,2)}, {vr(g,2)}")
    for g, u, t, o in P: k.e(f"v_pk_fma_f32 {vr(t,2)}, {vr(t,2)}, {vr(C1,2)}, {vr(C0,2)} op_sel_hi:[1,0,0]")
    for g, u, t, o in P: k.e(f"v_pk_mul_f32 {vr(t,2)}, {vr(t,2)}, {vr(g,2)}")
    for g, u, t, o in P:
        k.e(f"v_exp_f32 v{t}, v{t}\nv_exp_f32 v{t+1}, v{t+1}\nv_pk_mul_f32 {vr(g,2)}, {vr(g,2)}, {vr(u,2)}")
    for g, u, t, o in P: k.e(f"v_pk_fma_f32 {vr(t,2)}, {vr(t,2)}, {vr(R,2)}, {vr(R,2)} op_sel:[0,1,1] op_sel_hi:[1,1,1]")
    for g, u, t, o in P: k.e(f"v_rcp_f32 v{t}, v{t}\nv_rcp_f32 v{t+1}, v{t+1}")
    for g, u, t, o in P: k.e(f"v_pk_mul_f32 {vr(g,2)}, {vr(g,2)}, {vr(t,2)}")
    for g, u, t, o in P: k.e(f"v_cvt_pk_bf16_f32 v{o}, v{g}, v{g+1}")

def single(k, i, j, o):
    a = acc(i, j)
    center(k, i, j)
    for hf in (0, 2): k.e(f"v_pk_mul_f32 {vr(a+hf,2)}, {vr(a+hf,2)}, {vr(KC,2)} op_sel_hi:[1,0]")
    k.e(f"v_cvt_pk_bf16_f32 v{o}, v{a}, v{a+1}\nv_cvt_pk_bf16_f32 v{o+1}, v{a+2}, v{a+3}")

sHo, sSo, sSs, sZ = 28, 29, 30, 12
def phase_b(k, var):
    ln_gather(k, var)
    stamp(k, 4)
    vLd = 14
    k.e(f"v_lshlrev_b32 v{vL8}, 3, v0")
    k.e(f"s_lshl_b32 s31, s{sMb}, 4\ns_lshl_b32 s32, s{sWr}, 3\ns_add_u32 s31, s31, s32")
    k.e(f"s_lshr_b32 s33, s{sH}, 1\ns_mul_i32 s33, s33, 7\ns_and_b32 s34, s{sH}, 1")
    if var == 0: k.e(f"s_lshl_b32 s35, s34, 2\ns_add_u32 s33, s33, s35\ns_add_u32 s33, s33, s{sWc_}")
    else: k.e("s_add_u32 s33, s33, 3")
    k.e(f"s_mul_i32 s{sHo}, s31, 144\ns_add_u32 s{sHo}, s{sHo}, s33\ns_lshl_b32 s{sHo}, s{sHo}, 10")
    if var == 1: k.e(f"s_lshl_b32 s34, s34, 9\ns_add_u32 s{sHo}, s{sHo}, s34")
    k.e(f"s_mov_b32 s{sZ}, s{pWS}\ns_mov_b32 s{sZ+1}, s{pWS+1}\ns_mov_b32 s{sZ+3}, 0x20000\ns_cmp_eq_u32 s{sMb}, 7\ns_cselect_b32 s{sZ+2}, 0, s{sWS+2}")
    k.e(f"s_lshl_b32 s35, s{sH}, 7\ns_add_u32 s35, s35, s31\ns_lshl_b32 s35, s35, 10")
    if var == 0:
        k.e(f"s_add_u32 s36, s35, {hex(WS_K + 512)}")
        k.e(f"s_lshl_b32 s37, s{sH}, 1\ns_add_u32 s37, s37, s{sWc_}\ns_sub_u32 s37, s37, 1\ns_lshl_b32 s37, s37, 16\ns_lshl_b32 s38, s31, 9\ns_add_u32 s37, s37, s38\ns_add_u32 s37, s37, {hex(WS_V)}")
        k.e(f"s_lshl_b32 s38, s32, 10\ns_add_u32 s38, s38, {L_K + 16*1024 + 512}")
        k.e(f"s_lshl_b32 s39, s{sWc_}, 14\ns_lshl_b32 s40, s32, 9\ns_add_u32 s39, s39, s40\ns_add_u32 s39, s39, {L_V - 16384 + 8192}")
        k.e(f"v_and_b32 v{vS8}, 15, v0\nv_lshlrev_b32 v{vS8}, 5, v{vS8}\nv_lshrrev_b32 v{vLd}, 4, v0\nv_lshl_add_u32 v{vS8}, v{vLd}, 3, v{vS8}")
        k.e(f"s_cmp_eq_u32 s{sWc_}, 0\ns_cselect_b32 s{sSo}, s36, s37\ns_cselect_b32 s38, s38, s39")
        k.e(csel(sSs, 1024, 512))
        k.e(f"s_cselect_b64 vcc, -1, 0\nv_cndmask_b32 v{vS8}, v{vS8}, v{vL8}, vcc\nv_add_u32 v{vLd}, s38, v{vS8}")
    else:
        k.e(f"s_add_u32 s{sSo}, s35, {hex(WS_K)}")
        k.e(f"s_lshl_b32 s38, s32, 10\ns_add_u32 s39, s38, {L_K + 16*1024}\nv_add_u32 v{vLd}, s39, v{vL8}")
        k.e(f"s_add_u32 s39, s38, {L_Q}\nv_lshlrev_b32 v{vLd+1}, 4, v0\nv_add_u32 v{vLd+1}, s39, v{vLd+1}")
    for i in range(8):
        o = OUT + (i & 1) * 6
        k.e(f"v_rcp_f32 v{KC}, v{STA+2*i+1}")
        if var == 0:
            single(k, i, 4, o)
            k.ds(f"ds_write_b64 v{vLd}, {vr(o,2)}", "W")
            k.vmem(f"buffer_store_dwordx2 {vr(o,2)}, v{vS8}, {sr(sZ,4)}, s{sSo} offen sc1", "KV")
            k.e(f"s_add_u32 s{sSo}, s{sSo}, s{sSs}\nv_add_u32 v{vLd}, s{sSs}, v{vLd}")
        else:
            single(k, i, 4, o + 4)
            k.ds(f"ds_write_b64 v{vLd}, {vr(o+4,2)} offset:{i*1024}", "W")
            k.vmem(f"buffer_store_dwordx2 {vr(o+4,2)}, v{vL8}, {sr(sZ,4)}, s{sSo} offen sc1", "KV")
            k.e(f"s_add_u32 s{sSo}, s{sSo}, 1024")
            single(k, i, 2, o); single(k, i, 3, o + 2)
            k.ds(f"ds_write_b128 v{vLd+1}, {vr(o,4)} offset:{i*1024}", "W")
    for i in range(8):
        o = OUT + (i & 1) * 6
        if var == 0:
            geglu(k, i, [(0, 1), (2, 3)], [o, o + 2])
            k.vmem(f"buffer_store_dwordx2 {vr(o,2)}, v{vL8}, {sr(sWS,4)}, s{sHo} offen sc1", "H")
            k.vmem(f"buffer_store_dwordx2 {vr(o+2,2)}, v{vL8}, {sr(sWS,4)}, s{sHo} offen offset:512 sc1", "H")
        else:
            geglu(k, i, [(0, 1)], [o])
            k.vmem(f"buffer_store_dwordx2 {vr(o,2)}, v{vL8}, {sr(sWS,4)}, s{sHo} offen sc1", "H")
        k.e(f"s_add_u32 s{sHo}, s{sHo}, {144*1024}")
        if i == Opt.kvbar:
            barrier(k, {"KV"})
            sk = lab(k, "kvf")
            k.e(f"s_cmp_lg_u32 s{sW}, 0\ns_cbranch_scc1 {sk}")
            k.e(f"s_lshl_b32 s{sU}, s{sMb}, 7\ns_lshl_b32 s{sV}, s{sH}, 2\ns_add_u32 s{sU}, s{sU}, s{sV}\ns_add_u32 s{sU}, s{sU}, {hex(WS_F+F_KV)}")
            flag_store(k, vLd, sU)
            k.label(sk)
        if i == Opt.kvpoll: fetch_kv(k)
    stamp(k, 5)

def fetch_kv(k):
    t = 16
    sk = lab(k, "nokv")
    k.e(f"s_cmp_eq_u32 s{sMb}, 0\ns_cselect_b32 s{sZ+2}, 0, s{sWS+2}\ns_cbranch_scc1 {sk}")
    k.e(f"s_lshl_b32 s{sU}, s{sMb}, 7\ns_lshl_b32 s{sV}, s{sH}, 2\ns_add_u32 s{sU}, s{sU}, s{sV}\ns_add_u32 s{sU}, s{sU}, {hex(WS_F+F_KV-128)}\nv_mov_b32 v{t}, 0")
    save = list(k.vm)
    poll(k, t, t + 1, sU, "pkv")
    k.vm = save
    k.label(sk)
    k.e(f"v_lshlrev_b32 v{t}, 4, v0")
    k.e(f"s_lshl_b32 s31, s{sH}, 7\ns_lshl_b32 s32, s{sMb}, 4\ns_add_u32 s31, s31, s32\ns_add_u32 s31, s31, s{sW}\ns_lshl_b32 s31, s31, 10\ns_add_u32 s31, s31, {hex(WS_K - 16*1024)}")
    k.e(f"s_lshl_b32 s32, s{sH}, 17\ns_lshl_b32 s33, s{sMb}, 13\ns_add_u32 s32, s32, s33\ns_lshl_b32 s33, s{sW}, 10\ns_add_u32 s32, s32, s33\ns_add_u32 s32, s32, {hex(WS_V - 8192)}")
    for n, (so, add, m0) in enumerate([(31, 0, L_K), (31, 8192, L_K + 8192), (32, 0, L_V), (32, 65536, L_V + 16384)]):
        k.e(f"s_add_u32 s34, s{so}, {add}\ns_add_u32 m0, s33, {m0}")
        k.vmem(f"buffer_load_dwordx4 v{t}, {sr(sZ,4)}, s34 offen{Opt.hsc} lds", "NKV")

KF, VF0, VF1, S0, P8, QC, O0 = 16, 84, 120, 156, 224, 228, 244
vKa, vVa, vM, vT, vC, vNeg, vSum, vQa, vO8 = 2, 3, 5, 6, 232, 234, 236, 4, 7
sMk, sN, sOo, sAL = 96, 28, 29, 30
MK = [96, 98, 100, 32]
def S(t): return S0 + 4 * t
def k_read(k, t):
    for hf in range(2): k.ds(f"ds_read_b64 {vr(KF+4*t+2*hf,2)}, v{vKa} offset:{t*1024 + hf*512}", ("K", t))
def v_read(k, db, t):
    k.ds(f"ds_read_b64_tr_b16 {vr((VF0,VF1)[db]+2*t,2)}, v{vVa} offset:{db*16384 + t*512}", ("V", db, t))

def attn_block(k, blk, hook):
    k.need_lgkm({"Q"})
    vq = [(db, t) for t in range(17) for db in range(2)]
    for t in range(17):
        k.need_lgkm({("K", t)})
        k.e(f"v_mfma_f32_16x16x32_bf16 {vr(S(t),4)}, {vr(KF+4*t,4)}, {vr(QC,4)}, 0")
        v_read(k, *vq[2*t]); v_read(k, *vq[2*t+1])
    k.e(f"v_add_u32 v{vKa}, 1024, v{vKa}\nv_add_u32 v{vVa}, 512, v{vVa}")
    hook(k, 0)
    nm, md = lab(k, "nomask"), lab(k, "maskd")
    k.e(f"s_cmp_eq_u32 s{sN}, 0\ns_cbranch_scc1 {nm}\ns_nop 7")
    for t in range(16):
        for r in range(4): k.e(f"v_mov_b32 v{S(t)+r}, {f32hex(-1e30)}")
        if t < 15: k.e(f"s_cmp_eq_u32 s{sN}, {t+1}\ns_cbranch_scc1 {md}")
    k.label(md)
    k.e(f"s_sub_u32 s{sN}, s{sN}, 1")
    k.label(nm)
    vals = [S(t) + r for t in range(1, 16) for r in range(4)]
    k.e(f"v_max3_f32 v{vM}, v{vals[0]}, v{vals[1]}, v{vals[2]}\nv_max3_f32 v{vT}, v{vals[3]}, v{vals[4]}, v{vals[5]}")
    rest = vals[6:]
    for n in range(0, len(rest), 2):
        d = vM if (n // 2) % 2 == 0 else vT
        k.e(f"v_max3_f32 v{d}, v{d}, v{rest[n]}, v{rest[n+1]}")
    for r in range(4): k.e(f"v_cndmask_b32 v{S(0)+r}, v{S(0)+r}, v{S(16)+r}, {sr(MK[r],2)}")
    k.e(f"v_max3_f32 v{vM}, v{vM}, v{S(0)}, v{S(0)+1}\nv_max3_f32 v{vT}, v{vT}, v{S(0)+2}, v{S(0)+3}\nv_max_f32 v{vM}, v{vM}, v{vT}")
    for p in ("v_permlane16_swap_b32", "v_permlane32_swap_b32"):
        k.e(f"v_mov_b32 v{vT}, v{vM}\n{p} v{vM}, v{vT}\nv_max_f32 v{vM}, v{vM}, v{vT}")
    k.e(f"v_mul_f32 v{vNeg}, v{vC}, v{vM}\nv_sub_f32 v{vNeg}, 0, v{vNeg}")
    hook(k, 1)
    kq = list(range(17)) if blk == 0 else []
    if blk == 0: k.ds(f"ds_read_b128 {vr(QC,4)}, v{vQa} offset:1024", "Q")
    first = True
    for u in range(8):
        for t in (2*u, 2*u+1):
            s = S(t)
            for hf in (0, 2):
                k.e(f"v_pk_fma_f32 {vr(s+hf,2)}, {vr(s+hf,2)}, {vr(vC,2)}, {vr(vNeg,2)} op_sel_hi:[1,0,0]")
            for r in range(4): k.e(f"v_exp_f32 v{s+r}, v{s+r}")
            if kq: k_read(k, kq.pop(0))
            for hf in (0, 2):
                if first:
                    k.e(f"v_pk_add_f32 {vr(vSum,2)}, {vr(s,2)}, {vr(s+2,2)}"); first = False; break
                k.e(f"v_pk_add_f32 {vr(vSum,2)}, {vr(vSum,2)}, {vr(s+hf,2)}")
            if t == 0:
                e = S(16)
                for r in range(4): k.e(f"v_cndmask_b32 v{e+r}, 0, v{s+r}, {sr(MK[r],2)}")
                for r in range(4): k.e(f"v_cndmask_b32 v{s+r}, v{s+r}, 0, {sr(MK[r],2)}")
                k.e(f"v_cvt_pk_bf16_f32 v{P8}, v{e}, v{e+1}\nv_cvt_pk_bf16_f32 v{P8+1}, v{e+2}, v{e+3}")
        p = S(2*u)
        for x in range(4): k.e(f"v_cvt_pk_bf16_f32 v{p+x}, v{p+2*x}, v{p+2*x+1}")
        for db in range(2):
            if u == 0:
                k.need_lgkm({("V", db, 16)})
                k.e(f"v_mfma_f32_16x16x32_bf16 {vr(O0+4*db,4)}, {vr((VF0,VF1)[db]+32,4)}, {vr(P8,4)}, 0")
            else:
                k.e(f"v_mfma_f32_16x16x32_bf16 {vr(O0+4*db,4)}, {vr((VF0,VF1)[db]+4*(u-1),4)}, {vr(S(2*u-2),4)}, {vr(O0+4*db,4)}")
        if u in (2, 5): hook(k, 2 + (u == 5))
    while kq: k_read(k, kq.pop(0))
    k.e(f"v_add_f32 v{vSum}, v{vSum}, v{vSum+1}")
    for db in range(2):
        k.e(f"v_mfma_f32_16x16x32_bf16 {vr(O0+4*db,4)}, {vr((VF0,VF1)[db]+28,4)}, {vr(S(14),4)}, {vr(O0+4*db,4)}")
    for p in ("v_permlane16_swap_b32", "v_permlane32_swap_b32"):
        k.e(f"v_mov_b32 v{vT}, v{vSum}\n{p} v{vSum}, v{vT}\nv_add_f32 v{vSum}, v{vSum}, v{vT}")
    k.e(f"v_rcp_f32 v{vSum}, v{vSum}")
    for x in range(4): k.e(f"v_pk_mul_f32 {vr(O0+2*x,2)}, {vr(O0+2*x,2)}, {vr(vSum,2)} op_sel_hi:[1,0]")
    for x in range(4): k.e(f"v_cvt_pk_bf16_f32 v{S(16)+x}, v{O0+2*x}, v{O0+2*x+1}")
    for hf in range(2):
        k.vmem(f"buffer_store_dwordx2 {vr(S(16)+2*hf,2)}, v{vO8}, {sr(sWS,4)}, s{sOo} offen offset:{hf*512} sc1", "O")
    k.e(f"s_add_u32 s{sOo}, s{sOo}, {144*1024}")

def wg_flag(k, base, vt):
    sk = lab(k, "wf")
    k.e(f"s_cmp_lg_u32 s{sW}, 0\ns_cbranch_scc1 {sk}")
    k.e(f"s_lshl_b32 s{sU}, s{sMb}, 7\ns_lshl_b32 s{sV}, s{sH}, 2\ns_add_u32 s{sU}, s{sU}, s{sV}\ns_add_u32 s{sU}, s{sU}, {hex(WS_F+base)}")
    flag_store(k, vt, sU)
    k.label(sk)

def phase_c(k):
    k.e(f"v_lshlrev_b32 v{vO8}, 3, v0")
    k.e(f"s_lshl_b32 s31, s{sW}, 1\ns_lshl_b32 s{sOo}, s{sMb}, 4\ns_add_u32 s{sOo}, s{sOo}, s31\ns_mul_i32 s{sOo}, s{sOo}, 144")
    k.e(f"s_add_u32 s{sOo}, s{sOo}, s{sH}\ns_add_u32 s{sOo}, s{sOo}, 112\ns_lshl_b32 s{sOo}, s{sOo}, 10")
    k.e(f"s_sub_u32 s{sN}, 16, s31\ns_cmp_eq_u32 s{sMb}, 0\ns_cselect_b32 s{sN}, s{sN}, 0")
    k.e(f"s_lshl_b32 s31, s{sW}, 11\ns_add_u32 s34, s31, {L_K}\nv_add_u32 v{vKa}, s34, v{vO8}")
    k.e(f"s_add_u32 s34, s31, {L_Q}\nv_lshlrev_b32 v{vQa}, 4, v0\nv_add_u32 v{vQa}, s34, v{vQa}")
    k.e(f"s_lshl_b32 s31, s{sW}, 10\ns_add_u32 s34, s31, {L_V}\nv_add_u32 v{vVa}, s34, v{vO8}")
    k.e(f"v_and_b32 v{vM}, 15, v0\nv_lshrrev_b32 v{vT}, 4, v0\nv_lshlrev_b32 v{vT}, 2, v{vT}")
    for r in range(4):
        k.e(f"v_cmp_le_u32 {sr(MK[r],2)}, v{vT}, v{vM}")
        if r < 3: k.e(f"v_add_u32 v{vT}, 1, v{vT}")
    k.e(f"v_mov_b32 v{vC}, {f32hex(math.log2(math.e) / math.sqrt(32.0))}")
    for r in (VF0 + 34, VF0 + 35, VF1 + 34, VF1 + 35, P8 + 2, P8 + 3): k.e(f"v_mov_b32 v{r}, 0")

def phase_c2(k):
    k.ds(f"ds_read_b128 {vr(QC,4)}, v{vQa}", "Q")
    for t in range(17): k_read(k, t)
    def hook0(k, n):
        if n == Opt.hhook:
            k.e("s_waitcnt vmcnt(0)\ns_barrier"); k.vm = []
            wg_flag(k, F_H, vT)
    attn_block(k, 0, hook0)
    attn_block(k, 1, lambda k, n: None)
    stamp(k, 6)

g2Hs, g2Bs, g2Xs, g2Os = 24, 16, 8, 12
g2KA, g2KB, g2MA, g2MB, g2Mt, g2Nt, g2Half = 87, 88, 89, 92, 20, 21, 22
g2Wr, g2Rd, g2D, g2Loop, g2T2, g2w = 28, 29, 30, 31, 32, 33
g2DB = 8
g2L16, g2A, g2X, g2B = 12, 1, 3, 4
FR0, SETSZ, ACC2, XR = 16, 64, 144, 208
SLOT = 32768
def afr2(p, i, kk): return FR0 + p * SETSZ + (i * 2 + kk) * 4
def bfr2(p, b, kk): return FR0 + p * SETSZ + 32 + (b * 2 + kk) * 4
def acc2(i, b): return ACC2 + (i * 4 + b) * 4

def g2_ids(k):
    k.e(f"s_and_b32 s{sU}, s2, 7\ns_lshr_b32 s{sV}, s2, 3\ns_and_b32 s{g2Half}, s{sU}, 1")
    k.e(f"s_lshr_b32 s{g2Mt}, s{sU}, 1\ns_lshl_b32 s{g2Mt}, s{g2Mt}, 2\ns_and_b32 s{sU}, s{sV}, 3\ns_add_u32 s{g2Mt}, s{g2Mt}, s{sU}\ns_lshr_b32 s{g2Nt}, s{sV}, 2")

def g2_loader_setup(k):
    g2_ids(k)
    k.e(f"s_and_b32 s{sU}, s{sW}, 3")
    k.e(f"s_lshl_b32 s{g2KA}, s{g2Mt}, 3\ns_lshl_b32 s{sV}, s{sU}, 1\ns_add_u32 s{g2KA}, s{g2KA}, s{sV}\ns_mul_i32 s{g2KA}, s{g2KA}, 144")
    k.e(f"s_mul_i32 s{sV}, s{g2Half}, 72\ns_add_u32 s{g2KA}, s{g2KA}, s{sV}\ns_lshl_b32 s{g2KA}, s{g2KA}, 10")
    k.e(f"s_mul_i32 s{g2KB}, s{g2Half}, {36*64*2048}")
    k.e(f"s_lshl_b32 s{g2MA}, s{sU}, 12\ns_lshl_b32 s{g2MB}, s{sU}, 10\ns_add_u32 s{g2MB}, s{g2MB}, 16384")
    k.e(f"v_lshrrev_b32 v{g2DB}, 4, v0\nv_and_b32 v{g2DB+1}, 15, v0\ns_and_b32 s{sV}, s{sU}, 1\ns_lshl_b32 s{sV}, s{sV}, 2")
    k.e(f"v_add_u32 v{g2DB+2}, s{sV}, v{g2DB}\nv_lshlrev_b32 v{g2DB+2}, 1, v{g2DB+2}\nv_xor_b32 v{g2DB+1}, v{g2DB+1}, v{g2DB+2}")
    k.e(f"v_lshlrev_b32 v{g2DB+1}, 4, v{g2DB+1}\nv_lshl_add_u32 v{g2DB}, v{g2DB}, 11, v{g2DB+1}")
    k.e(f"s_lshl_b32 s{sU}, s{sU}, 13\ns_lshl_b32 s{sV}, s{g2Nt}, 8\ns_add_u32 s{sU}, s{sU}, s{sV}\nv_add_u32 v{g2DB}, s{sU}, v{g2DB}")
    for i in range(1, 4): k.e(f"v_add_u32 v{g2DB+i}, {i*16*2048}, v{g2DB}")
    k.e(f"v_lshlrev_b32 v{g2L16}, 4, v0")
    srd(k, g2Bs, pD, 3584 * 2048)

def g2_a_dma(base_sgpr_or_imm, tag):
    h = Opt.hsc
    return [(f"s_add_u32 m0, s{g2MA}, {base_sgpr_or_imm}", None),
            (f"buffer_load_dwordx4 v{g2L16}, {sr(g2Hs,4)}, s{g2KA} offen{h} lds", tag),
            (f"buffer_load_dwordx4 v{g2L16}, {sr(g2Hs,4)}, s{g2KA} offen offset:1024{h} lds", tag),
            (f"s_add_u32 s{sT}, s{g2KA}, {144*1024}\ns_add_u32 m0, m0, 2048", None),
            (f"buffer_load_dwordx4 v{g2L16}, {sr(g2Hs,4)}, s{sT} offen{h} lds", tag),
            (f"buffer_load_dwordx4 v{g2L16}, {sr(g2Hs,4)}, s{sT} offen offset:1024{h} lds", tag),
            (f"s_add_u32 s{g2KA}, s{g2KA}, 2048", None)]

def emit2(k, items):
    for text, tag in items:
        if tag is None: k.e(text)
        elif text.startswith("ds_"): k.ds(text, tag)
        else: k.vmem(text, tag)

def g2_step_dma(k, tag):
    emit2(k, g2_a_dma(f"s{g2Wr}", tag))
    for i in range(4):
        k.e(f"s_add_u32 m0, s{g2MB}, s{g2Wr}" if i == 0 else "s_add_u32 m0, m0, 4096")
        k.vmem(f"buffer_load_dwordx4 v{g2DB+i}, {sr(g2Bs,4)}, s{g2KB} offen lds", tag)
    k.e(f"s_add_u32 s{g2KB}, s{g2KB}, {64*2048}\ns_add_u32 s{g2Wr}, s{g2Wr}, {SLOT}\ns_cmp_eq_u32 s{g2Wr}, {Opt.NS*SLOT}\ns_cselect_b32 s{g2Wr}, 0, s{g2Wr}")

def g2_loader(k):
    NS, N = Opt.NS, 36
    vF, vFd = 13, 14
    k.e(f"v_and_b32 v{vF}, 31, v0\nv_lshlrev_b32 v{vF}, 2, v{vF}\ns_lshr_b32 s{sU}, s{g2Mt}, 1\ns_lshl_b32 s{sU}, s{sU}, 7\nv_add_u32 v{vF}, s{sU}, v{vF}")
    k.e(f"s_mov_b32 s{sU}, {hex(WS_F+F_H)}")
    poll(k, vF, vFd, sU, "ph")
    stamp(k, 7)
    for st in range(2): emit2(k, g2_a_dma(st * SLOT, ("D", st)))
    k.e("s_barrier")
    k.e(f"s_mov_b32 s{g2Wr}, {2*SLOT}")
    for st in range(2, NS): g2_step_dma(k, ("D", st))
    k.need_vm({("D", 0)}); k.e("s_barrier")
    k.need_vm({("D", 1)})
    sw = 56 - 36 - NS
    k.e(f"s_mov_b32 s{g2Loop}, 0\ns_cmp_eq_u32 s{g2Half}, 0")
    k.e(csel(g2D, 1000, sw))
    k.e(f"s_mov_b32 s{sU}, {hex(WS_F+F_O)}")
    lp, ns, nf = lab(k, "ll"), lab(k, "lns"), lab(k, "lnf")
    k.label(lp)
    k.e("s_barrier")
    k.e(f"s_cmp_lg_u32 s{g2Loop}, s{g2D}\ns_cbranch_scc1 {ns}")
    k.e(f"v_cmp_ne_u32 vcc, s{sNon}, v{vFd}\ns_nop 1\ns_cbranch_vccz {nf}")
    save = list(k.vm)
    poll(k, vF, vFd, sU, "po")
    k.vm = save
    k.label(nf)
    k.e(f"s_mov_b32 s{g2Bs}, s{pWo}\ns_mov_b32 s{g2Bs+1}, s{pWo+1}\ns_mov_b32 s{g2Bs+2}, {1024*2048}\ns_mov_b32 s{g2KB}, 0")
    k.label(ns)
    g2_step_dma(k, ("D", NS))
    n2 = lab(k, "lnp")
    k.e(f"s_cmp_lg_u32 s{g2Loop}, {sw - NS}\ns_cbranch_scc1 {n2}")
    k.e(f"buffer_load_dword v{vFd}, v{vF}, {sr(sWS,4)}, s{sU} offen sc1")
    k.label(n2)
    k.need_vm({("D", 2)})
    k.e(f"s_add_u32 s{g2Loop}, s{g2Loop}, 1\ns_cmp_lg_u32 s{g2Loop}, {N - NS}\ns_cbranch_scc1 {lp}")
    for j in range(NS - 1):
        k.e("s_barrier")
        k.need_vm({("D", 3 + j)})

def g2_reads(p, tag):
    it = []
    for x in range(4):
        for kk in range(2):
            for hf in range(2): it.append((f"ds_read_b64 {vr(afr2(p,x,kk)+2*hf,2)}, v{g2A} offset:{(x*2+kk)*1024 + hf*512}", tag))
        for kk in range(2):
            for rd in range(2): it.append((f"ds_read_b64_tr_b16 {vr(bfr2(p,x,kk)+2*rd,2)}, v{g2B+x} offset:{(32*kk+16*rd)*256}", tag))
    return it

def g2_rot():
    NS = Opt.NS
    return [f"s_add_u32 s{g2Rd}, s{g2Rd}, {SLOT}\ns_mov_b32 s{g2D}, {SLOT}",
            f"s_cmp_eq_u32 s{g2Rd}, {NS*SLOT}\ns_cselect_b32 s{g2Rd}, 0, s{g2Rd}\ns_cmov_b32 s{g2D}, {hex((-(NS-1)*SLOT) & 0xffffffff)}",
            f"v_add_u32 v{g2A}, s{g2D}, v{g2A}"] + [f"v_add_u32 v{g2B+b}, s{g2D}, v{g2B+b}" for b in range(4)]

def g2_step(k, p, reads, extra=None):
    k.e("s_waitcnt lgkmcnt(0)"); k.lgkm = []
    if reads: k.e("s_barrier")
    seq = []
    for i in range(4):
        for n, b in enumerate(range(4) if i % 2 == 0 else range(3, -1, -1)):
            kks = (0, 1) if n % 2 == 0 else (1, 0)
            seq += [(i, b, kks[0]), (i, b, kks[1])]
    fill = {g: [] for g in range(32)}
    if reads:
        rd = g2_reads(1 - p, "R")
        for x, it in enumerate(rd): fill[(x * 27) // len(rd)].append(it)
        rot = g2_rot()
        fill[20].append((rot[0], None)); fill[22].append((rot[1], None))
        for x, t in enumerate(rot[2:]): fill[27 + x].append((t, None))
    for x, it in enumerate(extra or []): fill[(x * 32) // len(extra)].append(it)
    for g, (i, b, kk) in enumerate(seq):
        a = acc2(i, b)
        k.e(f"v_mfma_f32_16x16x32_bf16 {vr(a,4)}, {vr(bfr2(p,b,kk),4)}, {vr(afr2(p,i,kk),4)}, {vr(a,4)}")
        emit2(k, fill[g])

def g2_compute(k):
    g2_ids(k)
    k.e(f"s_lshr_b32 s{sU}, s{sW}, 1\ns_lshl_b32 s{sV}, s{sU}, 13\nv_lshlrev_b32 v{g2A}, 3, v0\nv_add_u32 v{g2A}, s{sV}, v{g2A}")
    k.e(f"v_lshlrev_b32 v{g2L16}, 4, v0")
    k.e(f"v_lshrrev_b32 v8, 2, v0\nv_and_b32 v9, 7, v8\nv_lshlrev_b32 v9, 1, v9\nv_bfe_u32 v10, v0, 1, 1\nv_xor_b32 v9, v9, v10")
    k.e(f"v_lshlrev_b32 v8, 8, v8\nv_and_b32 v10, 1, v0\nv_lshl_add_u32 v8, v10, 3, v8\nv_add_u32 v8, 16384, v8")
    k.e(f"s_and_b32 s{sV}, s{sW}, 1\ns_lshl_b32 s{sV}, s{sV}, 3")
    for b in range(4): k.e(f"s_add_u32 s{sT}, s{sV}, {2*b}\nv_xor_b32 v10, s{sT}, v9\nv_lshl_add_u32 v{g2B+b}, v10, 4, v8")
    k.e(f"v_and_b32 v8, 15, v0\nv_lshlrev_b32 v{g2X}, 11, v8\nv_bfe_u32 v8, v0, 4, 1\nv_lshl_add_u32 v{g2X}, v8, 5, v{g2X}\nv_lshrrev_b32 v8, 5, v0\nv_lshl_add_u32 v{g2X}, v8, 4, v{g2X}")
    k.e(f"s_lshl_b32 s{sU}, s{sU}, 6\ns_lshl_b32 s{g2T2}, s{g2Mt}, 7\ns_add_u32 s{g2T2}, s{g2T2}, s{sU}\ns_lshl_b32 s{sU}, s{g2Half}, 5\ns_add_u32 s{g2T2}, s{g2T2}, s{sU}\ns_lshl_b32 s{g2T2}, s{g2T2}, 11")
    k.e(f"s_lshl_b32 s{sU}, s{g2Nt}, 8\ns_lshl_b32 s{sV}, s{sV}, 4\ns_add_u32 s{g2T2}, s{g2T2}, s{sU}\ns_add_u32 s{g2T2}, s{g2T2}, s{sV}")
    srd(k, g2Xs, pX, 0x400000)
    srd(k, g2Os, pOut, 0x400000)
    for r in range(ACC2, ACC2 + 64): k.e(f"v_mov_b32 v{r}, 0")
    k.e(f"s_mov_b32 s{g2Rd}, 0\ns_mov_b32 s{g2Loop}, 0")
    k.e("s_waitcnt vmcnt(0)\ns_barrier"); k.vm = []
    wg_flag(k, F_O, 8)
    k.e("s_barrier")
    stamp(k, 8)
    emit2(k, g2_reads(0, "R"))
    for t in g2_rot(): k.e(t)
    lp = lab(k, "g2l")
    k.e(".p2align 6")
    k.label(lp)
    g2_step(k, 0, True); g2_step(k, 1, True)
    k.e(f"s_add_u32 s{g2Loop}, s{g2Loop}, 2\ns_cmp_lg_u32 s{g2Loop}, 34\ns_cbranch_scc1 {lp}")
    xl = []
    for i in range(2):
        xl.append((f"s_add_u32 s{sT}, s{g2T2}, {i*16*2048}", None))
        for pr in range(2): xl.append((f"buffer_load_dwordx4 {vr(XR+(i*2+pr)*4,4)}, v{g2X}, {sr(g2Xs,4)}, s{sT} offen offset:{pr*64}", "X"))
    g2_step(k, 0, True, extra=xl); g2_step(k, 1, False)
    stamp(k, 9)
    k.e(f"s_lshl_b32 s{sU}, s{g2Mt}, 3\ns_add_u32 s{sU}, s{sU}, s{g2Nt}\ns_lshl_b32 s{sU}, s{sU}, 3\ns_add_u32 s{sU}, s{sU}, s{sW}\ns_lshl_b32 s{sV}, s{g2Half}, 2")
    k.e(f"s_add_u32 s34, s{sU}, s{sV}\ns_xor_b32 s35, s34, 4")
    k.e(f"s_lshl_b32 s36, s34, 13\ns_add_u32 s36, s36, {hex(WS_P)}\ns_lshl_b32 s37, s35, 13\ns_add_u32 s37, s37, {hex(WS_P)}")
    k.e(f"s_lshl_b32 s34, s34, 7\ns_add_u32 s34, s34, {hex(WS_F+F_P)}\ns_lshl_b32 s35, s35, 7\ns_add_u32 s35, s35, {hex(WS_F+F_P)}")
    h1, fin = lab(k, "h1"), lab(k, "fin")
    k.e(f"v_mov_b32 v8, 0\ns_cmp_eq_u32 s{g2Half}, 1\ns_cbranch_scc1 {h1}")
    save = list(k.vm)
    for half in range(2):
        if half == 1:
            k.label(h1); k.vm = list(save)
        own, send = (0, 2) if half == 0 else (2, 0)
        PR = FR0
        if Opt.pbf16:
            for n in range(4):
                a = acc2(send + n // 2, 2 * (n % 2))
                for d in range(4): k.e(f"v_cvt_pk_bf16_f32 v{PR+4*n+d}, v{a+2*d}, v{a+2*d+1}")
                k.e(f"buffer_store_dwordx4 {vr(PR+4*n,4)}, v{g2L16}, {sr(g2Hs,4)}, s36 offen offset:{n*1024} sc1")
        else:
            for n in range(8):
                if n == 4: k.e("s_add_u32 s36, s36, 4096")
                k.e(f"buffer_store_dwordx4 {vr(acc2(send + n // 4, n % 4),4)}, v{g2L16}, {sr(g2Hs,4)}, s36 offen offset:{(n%4)*1024} sc1")
        k.e("s_waitcnt vmcnt(0)")
        flag_store(k, 9, 34)
        poll(k, 8, 9, 35, "pp")
        stamp(k, 10)
        PR = FR0 + 32
        nld = 4 if Opt.pbf16 else 8
        for n in range(nld):
            if n == 4: k.e("s_add_u32 s37, s37, 4096")
            k.vmem(f"buffer_load_dwordx4 {vr(PR+4*n,4)}, v{g2L16}, {sr(g2Hs,4)}, s37 offen offset:{(n%4)*1024} sc1", ("P", n))
        for i in range(2):
            for pr in range(2):
                a, b = acc2(own + i, 2 * pr), acc2(own + i, 2 * pr + 1)
                t = FR0 + ((i * 2 + pr) & 1) * 8
                if Opt.pbf16:
                    k.need_vm({("P", i * 2 + pr)})
                    q = PR + 4 * (i * 2 + pr)
                    for d in range(4): k.e(f"v_lshlrev_b32 v{t+2*d}, 16, v{q+d}\nv_and_b32 v{t+2*d+1}, 0xffff0000, v{q+d}")
                    for d in range(4): k.e(f"v_pk_add_f32 {vr(a+2*d,2)}, {vr(a+2*d,2)}, {vr(t+2*d,2)}")
                else:
                    k.need_vm({("P", i * 4 + 2 * pr + 1)})
                    q = PR + 4 * (i * 4 + 2 * pr)
                    for d in range(4): k.e(f"v_pk_add_f32 {vr(a+2*d,2)}, {vr(a+2*d,2)}, {vr(q+2*d,2)}")
                for r in range(4): k.e(f"v_permlane16_swap_b32 v{a+r}, v{b+r}")
                x = XR + (i * 2 + pr) * 4
                for d in range(4): k.e(f"v_lshlrev_b32 v{t+2*d}, 16, v{x+d}\nv_and_b32 v{t+2*d+1}, 0xffff0000, v{x+d}")
                for d in range(4): k.e(f"v_pk_add_f32 {vr(t+2*d,2)}, {vr(t+2*d,2)}, {vr(a+2*d,2)}")
                for d in range(4): k.e(f"v_cvt_pk_bf16_f32 v{x+d}, v{t+2*d}, v{t+2*d+1}")
                k.e(f"s_add_u32 s{sT}, s{g2T2}, {i*16*2048}")
                k.vmem(f"buffer_store_dwordx4 {vr(x,4)}, v{g2X}, {sr(g2Os,4)}, s{sT} offen offset:{pr*64}", "st")
        if half == 0: k.e(f"s_branch {fin}")
    k.label(fin)

def swap23(k, d, s, t):
    k.e(f"v_lshrrev_b32 v{t}, 1, v{s}\nv_xor_b32 v{t}, v{t}, v{s}\nv_and_b32 v{t}, 4, v{t}\nv_mul_u32_u24 v{t}, 3, v{t}\nv_xor_b32 v{d}, v{s}, v{t}")

def qkv_voff(k, d, vL, t0, t1, t2):
    k.e(f"v_mul_u32_u24 v{t0}, 5462, v{vL}\nv_lshrrev_b32 v{t0}, 16, v{t0}")
    k.e(f"v_mul_u32_u24 v{t1}, 12, v{t0}\nv_sub_u32 v{t1}, v{vL}, v{t1}")
    k.e(f"v_lshrrev_b32 v{t2}, 1, v{t0}\nv_and_b32 v{t2}, 2, v{t2}\nv_xor_b32 v{t1}, v{t1}, v{t2}")
    swap23(k, d, t0, t2)
    k.e(f"v_mul_u32_u24 v{d}, 6144, v{d}")
    k.e(f"v_lshrrev_b32 v{t2}, 2, v{t1}\nv_lshl_add_u32 v{d}, v{t2}, 11, v{d}")
    k.e(f"v_and_b32 v{t1}, 3, v{t1}\nv_lshl_add_u32 v{d}, v{t1}, 4, v{d}\nv_add_u32 v{d}, s{sNbS}, v{d}")

def gen_fused(name):
    uid[0] = 0
    k = Kern(name)
    k.e(header(name))
    end = "L_end"
    k.e(f"s_cmp_ge_u32 s2, 256\ns_cbranch_scc1 {end}")
    if Opt.timing: k.e("s_memtime s[60:61]")
    k.e("s_load_dwordx4 s[4:7], s[0:1], 0\ns_load_dwordx8 s[48:55], s[0:1], 32\ns_load_dwordx4 s[56:59], s[0:1], 64")
    k.e(f"s_load_dwordx2 s[{pWo}:{pWo+1}], s[0:1], 16\ns_memrealtime s[100:101]")
    k.e(f"v_lshrrev_b32 v9, 6, v0\nv_and_b32 v0, 63, v0\nv_readfirstlane_b32 s{sW}, v9")
    k.e(f"s_and_b32 s{sH}, s2, 7\ns_lshl_b32 s{sH}, s{sH}, 2\ns_lshr_b32 s3, s2, 3\ns_and_b32 s3, s3, 3\ns_add_u32 s{sH}, s{sH}, s3")
    k.e(f"s_lshr_b32 s{sMb}, s2, 5\ns_lshr_b32 s{sWr}, s{sW}, 2\ns_and_b32 s{sWc_}, s{sW}, 3")
    sRA, sRB = sFl1, sFl2
    if Opt.rot:
        k.e(f"s_and_b32 s3, s{sH}, 1\ns_lshl_b32 s3, s3, 2\ns_xor_b32 s{sRA}, s{sW}, s3")
        k.e(f"s_and_b32 s3, s{sMb}, 1\ns_lshl_b32 s3, s3, 2\ns_xor_b32 s{sRB}, s{sW}, s3")
    else:
        k.e(f"s_mov_b32 s{sRA}, s{sW}\ns_mov_b32 s{sRB}, s{sW}")
    k.e(f"s_and_b32 s3, s{sW}, 1\ns_lshl_b32 s3, s3, 2")
    k.e(f"v_lshrrev_b32 v11, 4, v0\nv_add_u32 v11, s3, v11\nv_and_b32 v12, 7, v0\nv_xor_b32 v11, v11, v12\nv_lshlrev_b32 v11, 4, v11")
    k.e(f"v_lshrrev_b32 v12, 3, v0\nv_lshl_add_u32 v{vDA}, v12, 11, v11")
    k.e(f"s_lshl_b32 s{sKA}, s{sMb}, 19\ns_lshl_b32 s3, s{sRA}, 14\ns_add_u32 s{sKA}, s{sKA}, s3\ns_lshl_b32 s{sMA}, s{sRA}, 10")
    k.e(f"s_mov_b32 s{sX+2}, 0x400000\ns_mov_b32 s{sX+3}, 0x20000")
    k.e("s_waitcnt lgkmcnt(0)")
    k.e(f"s_mov_b32 s{sX}, s{pX}\ns_mov_b32 s{sX+1}, s{pX+1}")
    emit_items(k, dma_a(0, 0)); emit_items(k, dma_a(0, 1))
    k.e(f"s_lshl_b32 s{sNbS}, s{sH}, 6\ns_mul_i32 s{sNbG}, s{sH}, 224")
    k.e(f"s_lshl_b32 s3, s{sRB}, 10\ns_add_u32 s3, s3, {LDS_B}\ns_cmp_eq_u32 s{sRB}, 7")
    k.e(f"s_cselect_b32 s{sWa}, s{pQKV}, s{pG}\ns_cselect_b32 s{sWa+1}, s{pQKV+1}, s{pG+1}")
    k.e(f"s_cselect_b32 s{sWb}, s{pQKV}, s{pU}\ns_cselect_b32 s{sWb+1}, s{pQKV+1}, s{pU+1}")
    k.e(csel(sWa+2, 1024*6144, 1024*7168)); k.e(f"s_mov_b32 s{sWb+2}, s{sWa+2}\ns_mov_b32 s{sWa+3}, 0x20000\ns_mov_b32 s{sWb+3}, 0x20000")
    k.e(csel(sStep, 64*6144, 64*7168)); k.e(csel(sO[1], 16*6144, 32*7168))
    k.e(f"s_cselect_b32 s{sO[2]}, {32*6144}, 0"); k.e(csel(sO[3], 48*6144, 32*7168))
    k.e(f"s_cselect_b32 s{sM[0]}, {LDS_B+28672}, s3")
    k.e(csel(sM[1], 3072, 7168)); k.e(csel(sM[2], 6144, 14336)); k.e(csel(sM[3], 9216, 14336+7168))
    k.e(f"s_mov_b32 s{sKB}, 0\ns_mov_b32 s{sKQ}, 0")
    w7, w7d = lab(k, "w7"), lab(k, "w7d")
    k.e(f"s_cbranch_scc1 {w7}")
    k.e(f"s_lshl_b32 s3, s{sRB}, 6\nv_add_u32 v11, s3, v0\nv_mul_u32_u24 v12, 4682, v11\nv_lshrrev_b32 v12, 16, v12")
    k.e(f"v_mul_u32_u24 v13, 14, v12\nv_sub_u32 v13, v11, v13")
    swap23(k, vDB0, 12, 14)
    k.e(f"v_mul_u32_u24 v{vDB0}, 7168, v{vDB0}\nv_lshl_add_u32 v{vDB0}, v13, 4, v{vDB0}\nv_add_u32 v{vDB0}, s{sNbG}, v{vDB0}\ns_branch {w7d}")
    k.label(w7)
    qkv_voff(k, vDB0, 0, 12, 13, 14)
    k.label(w7d)
    for d in (1, 2, 3): k.e(f"s_add_u32 s{sM[d]}, s{sM[0]}, s{sM[d]}")
    for d in range(4): emit_items(k, dma_b(0, d))
    tab = 0
    for w, t in enumerate([2, 4, 5, 7, 8, 10, 11, 1]): tab |= t << (4 * w)
    k.e(f"s_lshl_b32 s3, s{sRB}, 2\ns_lshr_b32 s3, {hex(tab)}, s3\ns_and_b32 s3, s3, 15")
    k.e(f"s_lshl_b32 s{sM[4]}, s3, 10\ns_add_u32 s{sM[4]}, s{sM[4]}, {LDS_B+28672}\ns_lshl_b32 s3, s3, 6\nv_add_u32 v11, s3, v0")
    srd(k, sWc, pQKV, 1024 * 6144)
    qkv_voff(k, vDB1, 11, 12, 13, 14)
    emit_items(k, dma_b(0, 4))
    emit_items(k, dma_a(0, 2)); emit_items(k, dma_a(0, 3))
    srd(k, sWS, pWS, WS_BYTES)
    nn = lab(k, "nn")
    k.e(f"v_mov_b32 v{vNon}, 0\ns_or_b32 s3, s2, s{sW}\ns_cmp_lg_u32 s3, 0\ns_cbranch_scc1 {nn}")
    k.e(f"s_or_b32 s3, s100, 1\nv_mov_b32 v11, s3\nglobal_store_dword v{vNon}, v11, {sr(pDbg,2)} sc1")
    k.label(nn)
    k.e("v_and_b32 v11, 15, v0\nv_lshrrev_b32 v12, 4, v0")
    k.e("v_lshrrev_b32 v13, 1, v11\nv_xor_b32 v13, v13, v12\nv_lshlrev_b32 v13, 4, v13")
    k.e(f"v_lshl_add_u32 v{vA0}, v11, 7, v13\ns_lshl_b32 s3, s{sWr}, 14\nv_add_u32 v{vA0}, s3, v{vA0}\nv_xor_b32 v{vA1}, 64, v{vA0}")
    k.e("v_lshrrev_b32 v13, 1, v12\nv_lshlrev_b32 v13, 4, v13\nv_and_b32 v14, 1, v12\nv_lshl_add_u32 v13, v14, 2, v13")
    k.e("v_bfe_u32 v15, v0, 2, 2\nv_add_u32 v13, v13, v15\nv_and_b32 v15, 3, v0\nv_lshlrev_b32 v15, 3, v15")
    k.e(f"v_mul_u32_u24 v{vGU}, 224, v13\nv_add_u32 v{vGU}, v{vGU}, v15")
    k.e(f"v_mul_u32_u24 v{vQe}, 192, v13\nv_add_u32 v{vQe}, v{vQe}, v15\nv_add_u32 v{vQe}, {LDS_B+28672}, v{vQe}\nv_lshlrev_b32 v14, 5, v14")
    for r in range(ACC0, 256): k.e(f"v_mov_b32 v{r}, 0")
    k.e(f"s_mov_b32 s{sOne}, 0x3f803f80\ns_mov_b32 s{sStage}, 1")
    k.e(f"s_lshl_b32 s{sRow}, s{sMb}, 5\ns_add_u32 s{sRow}, s{sRow}, s{sH}\ns_lshl_b32 s{sRow}, s{sRow}, 3\ns_add_u32 s{sRow}, s{sRow}, s{sW}\ns_lshl_b32 s{sRow}, s{sRow}, 11")
    if Opt.timing:
        k.e(f"s_lshl_b32 s3, s2, 3\ns_add_u32 s3, s3, s{sW}\ns_lshl_b32 s3, s3, 6\ns_add_u32 s3, s3, {hex(WS_T)}\nv_mov_b32 v11, s100")
        k.e(f"buffer_store_dword v11, off, {sr(sWS,4)}, s3 offset:60")
    k.e(f"s_lshl_b32 s{sCs}, s{sMb}, 1\ns_add_u32 s{sFl2}, s{sCs}, 2\ns_add_u32 s{sCs}, s{sCs}, s{sWr}")
    k.e(f"s_cmp_eq_u32 s{sMb}, 7\ns_cmov_b32 s{sCs}, 99\ns_cmov_b32 s{sFl2}, 99")
    k.e(f"s_mov_b32 s{sFl1}, 2\ns_cmp_lg_u32 s{sW}, 0\ns_cmov_b32 s{sFl1}, 99\ns_cmov_b32 s{sFl2}, 99")
    k.e(f"s_and_b32 s3, s{sH}, 1")
    v1, join = lab(k, "v1"), lab(k, "join")
    k.e(f"s_cmp_eq_u32 s{sWc_}, 3\ns_cbranch_scc1 {v1}")
    save = (list(k.lgkm), list(k.vm))
    for var in (0, 1):
        if var == 1:
            k.label(v1)
            k.lgkm, k.vm = list(save[0]), list(save[1])
        if var == 0:
            k.e(f"s_lshl_b32 s{sU}, s{sWc_}, 1\ns_add_u32 s{sU}, s{sU}, s3")
            k.e(f"s_add_u32 s{sV}, s{sWc_}, 3\ns_lshl_b32 s{sNbS}, s{sV}, 6\ns_lshl_b32 s{sV}, s{sV}, 5\nv_xor_b32 v14, s{sV}, v14\nv_add_u32 v{vQe}, v{vQe}, v14")
        else:
            k.e(f"s_cmp_eq_u32 s3, 0\ns_cselect_b32 s{sU}, 6, 0")
            k.e(f"v_sub_u32 v{vQo}, v{vQe}, v14\nv_add_u32 v{vQe}, v{vQe}, v14")
        k.e(f"s_add_u32 s{sNbG}, s{sU}, 6\ns_lshl_b32 s{sNbG}, s{sNbG}, 6\ns_lshl_b32 s{sU}, s{sU}, 5\ns_add_u32 s{sU}, s{sU}, {LDS_B}\nv_add_u32 v{vGU}, s{sU}, v{vGU}")
        gen_main(k, var)
        stamp(k, 2)
        phase_b(k, var)
        phase_c(k)
        if Opt.hhook < 0:
            k.e("s_waitcnt vmcnt(0) lgkmcnt(0)\ns_barrier"); k.vm = []; k.lgkm = []
            wg_flag(k, F_H, vT)
        else:
            barrier(k, {"NKV"})
        if var == 0: k.e(f"s_branch {join}")
    k.label(join)
    k.lgkm, k.vm = [], []
    phase_c2(k)
    ld, done = lab(k, "ld"), lab(k, "done")
    k.e(f"s_cmp_ge_u32 s{sW}, 4\ns_cbranch_scc1 {ld}")
    g2_compute(k)
    k.e(f"s_branch {done}")
    k.label(ld)
    k.vm = []
    g2_loader(k)
    k.label(done)
    if Opt.timing:
        k.e("s_waitcnt vmcnt(0)")
        stamp(k, 11)
        k.e("s_memrealtime s[98:99]\ns_waitcnt lgkmcnt(0)")
        for n in range(1, 12): k.e(f"s_sub_u32 s{60+2*n}, s{60+2*n}, s60\nv_mov_b32 v{24+n}, s{60+2*n}")
        k.e(f"v_mov_b32 v24, 0\nv_mov_b32 v36, s98")
        k.e(f"s_lshl_b32 s3, s2, 3\ns_add_u32 s3, s3, s{sW}\ns_lshl_b32 s3, s3, 6\ns_add_u32 s3, s3, {hex(WS_T)}")
        for q in range(3): k.e(f"buffer_store_dwordx4 v[{24+4*q}:{27+4*q}], off, {sr(sWS,4)}, s3 offset:{16*q}")
        k.e(f"buffer_store_dword v36, off, {sr(sWS,4)}, s3 offset:48")
        if Opt.dbg:
            k.e(f"s_cmp_lg_u32 s2, 37\ns_cbranch_scc1 {end}\ns_cmp_lg_u32 s{sW}, 0\ns_cbranch_scc1 {end}")
            k.e(f"buffer_load_dword v37, off, {sr(sWS,4)}, s3 offset:60 sc1\ns_waitcnt vmcnt(0)\nv_sub_u32 v24, v36, v37\nv_mov_b32 v40, 0")
            for q in range(3): k.e(f"global_store_dwordx4 v40, v[{24+4*q}:{27+4*q}], {sr(pDbg,2)} offset:{16+16*q}")
    k.label(end)
    k.e("s_endpgm")
    return k.text(), descriptor(name, 256, 102, 256), f"; @launch grid=(256,1,1) block=(512,1,1) lds={LDS_BYTES}"
```

```python
from asmlib import *
import math

class Opt:
    timing = False
    perm = 0
    dbg = False
    nB1 = 3
    rot = True
    hsc = " sc1"
    NS = 5
    pbf16 = False
    kvbar = 2
    kvpoll = 5
    hhook = 1

WS_H, WS_K, WS_V = 0, 0x1600000, 0x1A00000
WS_P = 0x2200000
WS_ST = 0x2B00000
WS_CS = 0x2B10000
WS_F = 0x2C00000
F_ST, F_CS, F_KV, F_H, F_O, F_P = 0, 0x1000, 0x2000, 0x3000, 0x4000, 0x8000
WS_T = 0x3000000
LDS_B, BSLOT = 65536, 40960
L_K, L_V, L_Q, L_CO, L_CT = 65536, 98304, 131072, 147456, 150016
LDS_BYTES = 163840
sX, sWa, sWb, sWc, sWS = 8, 12, 16, 20, 24
sKA, sKB, sKQ, sStep = 28, 29, 30, 31
sO = [None, 32, 33, 34]
sM = [35, 36, 37, 38, 39]
sMA, sT, sStage, sW, sMb, sH, sWr, sWc_ = 40, 41, 42, 43, 44, 45, 46, 47
pX, pQKV, pG, pU, pD, pOut, pDbg, pWS, pWo = 4, 6, 48, 50, 52, 54, 56, 58, 84
sNon, sCs, sFl1, sFl2, sNbG, sNbS, sOne, sU, sV, sRow = 86, 87, 88, 89, 90, 91, 92, 93, 94, 95
ACC0, BF0, AF0 = 96, 56, 24
vA0, vA1, vGU, vQe, vQo, vDA, vDB0, vDB1, vNon = 1, 2, 3, 4, 5, 6, 7, 8, 9
RAW, TMP = 10, 18
def acc(i, j): return ACC0 + (i * 5 + j) * 4
def bfr(j, kk): return BF0 + (j * 2 + kk) * 4
def afr(st, b, kk): return AF0 + ((st * 2 + b) * 2 + kk) * 4
NST = 16
uid = [0]
def lab(k, s):
    uid[0] += 1
    return f"L_{s}_{uid[0]}"

def csel(d, a, b): return f"s_mov_b32 s{d}, {b}\ns_cmov_b32 s{d}, {a}"
def stamp(k, n):
    if Opt.timing: k.e(f"s_memtime s[{60+2*n}:{61+2*n}]")

def a_read(k, stage, pair, b, kk):
    i = 2 * pair + b
    k.ds(f"ds_read_b128 {vr(afr(pair&1,b,kk),4)}, v{vA0 if kk == 0 else vA1} offset:{(stage&1)*32768 + i*2048}", ("A", stage, pair, b, kk))

def b_read(k, var, stage, j, kk, rd):
    sl = (stage & 1) * BSLOT
    ng = 4 if var == 0 else 2
    if j < ng: base, off = vGU, sl + (j & 1) * 14336 + (j >> 1) * 32 + (32 * kk + 8 * rd) * 224
    elif var == 0: base, off = vQe, sl + (32 * kk + 8 * rd) * 192
    else: base, off = (vQe if j % 2 == 0 else vQo), sl + (j - 2) * 32 + (32 * kk + 8 * rd) * 192
    assert off < 65536
    k.ds(f"ds_read_b64_tr_b16 {vr(bfr(j,kk)+2*rd,2)}, v{base} offset:{off}", ("B", stage, j, kk, rd))

def dma_a(stage, which):
    t0 = [0, 16, 8, 24][which]
    r = []
    if t0: r.append(("s", f"s_add_u32 s{sT}, s{sKA}, {t0*16384}", None))
    r.append(("s", f"s_add_u32 m0, s{sMA}, {(stage&1)*32768 + t0*1024}", None))
    r.append(("v", f"buffer_load_dwordx4 v{vDA}, {sr(sX,4)}, s{sT if t0 else sKA} offen lds", ("Alo" if which < 2 else "Ahi", stage)))
    return r

def dma_b(stage, d):
    r = []
    sl = (stage & 1) * BSLOT
    if d in (1, 2, 3): r.append(("s", f"s_add_u32 s{sT}, s{sKB}, s{sO[d]}", None))
    r.append(("s", f"s_add_u32 m0, s{sM[d]}, {sl}" if sl else f"s_mov_b32 m0, s{sM[d]}", None))
    so = {0: sKB, 4: sKQ}.get(d, sT)
    r.append(("v", f"buffer_load_dwordx4 v{vDB1 if d == 4 else vDB0}, {sr([sWa,sWa,sWb,sWb,sWc][d],4)}, s{so} offen lds", ("B", stage)))
    return r

def advance():
    return [("s", f"s_add_u32 s{sKA}, s{sKA}, 128", None),
            ("s", f"s_add_u32 s{sKB}, s{sKB}, s{sStep}", None),
            ("s", f"s_add_u32 s{sKQ}, s{sKQ}, {64*6144}", None)]

def emit_items(k, items):
    for kind, text, tag in items:
        if kind == "s": k.e(text)
        elif kind == "v": k.vmem(text, tag)
        elif kind == "f": text(k)

def pair_order():
    seq = []
    for j in range(5):
        bs = (0, 1) if j % 2 == 0 else (1, 0)
        seq += [(bs[0], j, 0), (bs[0], j, 1), (bs[1], j, 1), (bs[1], j, 0)]
    return seq

def reduce_list(op, v, t):
    L = []
    for mod in ("quad_perm:[1,0,3,2]", "quad_perm:[2,3,0,1]", "row_half_mirror", "row_mirror"):
        L.append(f"{op}_dpp v{v}, v{v}, v{v} {mod} row_mask:0xf bank_mask:0xf")
    for p in ("v_permlane16_swap_b32", "v_permlane32_swap_b32"):
        L += [f"v_mov_b32 v{t}, v{v}", f"{p} v{v}, v{t}", f"{op} v{v}, v{v}, v{t}"]
    return L

def stats_list():
    mu, sq, a, b = TMP, TMP + 1, TMP + 2, TMP + 3
    L = [f"v_mov_b32 v{mu}, 0"]
    for i in range(8): L.append(f"v_dot2_f32_bf16 v{mu}, v{RAW+i}, s{sOne}, v{mu}")
    L += reduce_list("v_add_f32", mu, a)
    L.append(f"v_mul_f32 v{mu}, {f32hex(1/1024)}, v{mu}")
    L.append(f"v_mov_b32 v{sq}, 0")
    for i in range(8):
        L += [f"v_lshlrev_b32 v{a}, 16, v{RAW+i}", f"v_and_b32 v{b}, 0xffff0000, v{RAW+i}",
              f"v_sub_f32 v{a}, v{a}, v{mu}", f"v_sub_f32 v{b}, v{b}, v{mu}",
              f"v_fmac_f32 v{sq}, v{a}, v{a}", f"v_fmac_f32 v{sq}, v{b}, v{b}"]
    L += reduce_list("v_add_f32", sq, a)
    L.append(f"v_mul_f32 v{sq}, {f32hex(1/1024)}, v{sq}")
    rnd = lambda r: [f"v_cvt_pk_bf16_f32 v{r}, v{r}, v{r}", f"v_lshlrev_b32 v{r}, 16, v{r}"]
    L += rnd(mu) + rnd(sq) + [f"v_add_f32 v{sq}, {f32hex(1e-5)}, v{sq}"] + rnd(sq) + [f"v_sqrt_f32 v{sq}, v{sq}"] + rnd(sq)
    return L

def colsum_block(k, stage, var, tail):
    cs, t = TMP, TMP + 5
    skip = lab(k, "cs")
    if tail: k.e(f"s_cmp_lg_u32 s{sWr}, {stage & 1}")
    elif stage < 2: k.e(f"s_cmp_lg_u32 s{sCs}, {stage}")
    else: k.e(f"s_cmp_lg_u32 s{sCs}, s{sStage}")
    k.e(f"s_cbranch_scc1 {skip}")
    for j in range(5): k.e(f"v_dot2_f32_bf16 v{cs+j}, v{bfr(j,0)}, s{sOne}, 0")
    for r in range(1, 8):
        for j in range(5): k.e(f"v_dot2_f32_bf16 v{cs+j}, v{bfr(j,0)+r}, s{sOne}, v{cs+j}")
    for p in ("v_permlane16_swap_b32", "v_permlane32_swap_b32"):
        for j in range(5): k.e(f"v_mov_b32 v{t}, v{cs+j}\n{p} v{cs+j}, v{t}\nv_add_f32 v{cs+j}, v{cs+j}, v{t}")
    k.e(f"v_and_b32 v{t}, 15, v0\nv_lshlrev_b32 v{t}, 2, v{t}")
    offs = [(sNbG, 0), (sNbG, 448), (sNbG, 64), (sNbG, 512), (sNbS, 0)] if var == 0 else [(sNbG, 0), (sNbG, 448), (None, 0), (None, 64), (None, 128)]
    if tail:
        k.e(f"v_add_u32 v{t}, {L_CO + (stage & 1) * 1280}, v{t}")
        cur = None
        for j, (s_, o) in enumerate(offs):
            if s_ != cur:
                if cur is not None: k.e(f"v_subrev_u32 v{t}, s{cur}, v{t}")
                if s_ is not None: k.e(f"v_add_u32 v{t}, s{s_}, v{t}")
                cur = s_
            k.e(f"ds_write_b32 v{t}, v{cs+j} offset:{o}")
    else:
        k.e(f"s_lshl_b32 s{sU}, s{sH}, 4\ns_add_u32 s{sU}, s{sU}, s{sCs}\ns_mul_i32 s{sU}, s{sU}, 1280\ns_add_u32 s{sU}, s{sU}, {hex(WS_CS)}")
        for j, (s_, o) in enumerate(offs):
            if s_ is not None: k.e(f"s_add_u32 s{sV}, s{sU}, s{s_}")
            k.e(f"buffer_store_dword v{cs+j}, v{t}, {sr(sWS,4)}, s{sV if s_ is not None else sU} offen offset:{o} sc1")
    k.label(skip)

def flag_store(k, vtmp, soff):
    k.e(f"v_mov_b32 v{vtmp}, s{sNon}")
    k.e(f"buffer_store_dword v{vtmp}, off, {sr(sWS,4)}, s{soff} sc1")

def flag_block(k, stage):
    for which, sfl in ((0, sFl1), (1, sFl2)):
        if which == 0 and stage != 2: continue
        skip = lab(k, "fl")
        k.e(f"s_cmp_lg_u32 s{sfl}, s{sStage}\ns_cbranch_scc1 {skip}")
        if which == 0: k.e(f"s_lshl_b32 s{sU}, s{sMb}, 7\ns_lshl_b32 s{sV}, s{sH}, 2\ns_add_u32 s{sU}, s{sU}, s{sV}\ns_add_u32 s{sU}, s{sU}, {hex(WS_F+F_ST)}")
        else: k.e(f"s_lshl_b32 s{sU}, s{sH}, 7\ns_lshl_b32 s{sV}, s{sMb}, 2\ns_add_u32 s{sU}, s{sU}, s{sV}\ns_add_u32 s{sU}, s{sU}, {hex(WS_F+F_CS)}")
        flag_store(k, TMP + 5, sU)
        k.label(skip)

def spread(n, first, last): return [first + ((last - first) * i) // max(n - 1, 1) for i in range(n)]

def gen_pair(k, var, stage, pair, carry, mfma=True, valu=None):
    fill = {g: [] for g in range(24)}
    for g, it in carry.items(): fill[g] += it
    nst, npair = (stage, pair + 1) if pair < 3 else (stage + 1, 0)
    if nst < NST:
        g0 = 3 if pair == 0 else 0
        for n, (b, kk) in enumerate([(0, 0), (0, 1), (1, 1), (1, 0)]):
            fill[g0 + n].append(("f", (lambda kk_, b_: (lambda kn: a_read(kn, nst, npair, b_, kk_)))(kk, b), None))
    if pair == 3 and stage + 1 < NST:
        for j in range(5):
            for n, (kk, rd) in enumerate([(1, 0), (1, 1), (0, 0), (0, 1)]):
                fill[4 * j + 3 + n].append(("f", (lambda j_, kk_, rd_: (lambda kn: b_read(kn, var, stage + 1, j_, kk_, rd_)))(j, kk, rd), None))
    def place(items, g):
        sc = [x for x in items if x[0] == "s"]
        for n, x in enumerate(sc): fill[g - len(sc) + n].append(x)
        fill[g] += [x for x in items if x[0] == "v"]
    n1 = Opt.nB1
    ylist = [("a", 0), ("a", 1)] + [("b", d) for d in range(n1)]
    xlist = [("b", d) for d in range(n1, 5)] + [("a", 2), ("a", 3)]
    def mk(x, tgt): return dma_a(tgt, x[1]) if x[0] == "a" else dma_b(tgt, x[1])
    if stage == -1:
        pass
    elif stage == 0 and pair == 0:
        lst = [("a", 0), ("a", 1)] + [("b", d) for d in range(5)]
        fill[0] += advance()
        for x, p in zip(lst, spread(len(lst), 2, 19)): place(mk(x, 1), p)
    elif stage == 0 and pair in (1, 2):
        lst = [("a", 2, 1), ("a", 3, 1), ("raw",), ("adv",)] + [(x[0], x[1], 2) for x in ylist]
        for x, p in zip(lst, spread(len(lst), 4, 38)):
            if (p < 20) != (pair == 1): continue
            g = p % 20
            if x[0] == "adv": fill[g] += advance()
            elif x[0] == "raw":
                fill[g - 1].append(("s", f"v_lshlrev_b32 v{RAW+4}, 4, v0", None))
                fill[g].append(("v", f"buffer_load_dwordx4 {vr(RAW,4)}, v{RAW+4}, {sr(sX,4)}, s{sRow} offen", ("RAW", 0)))
                fill[g].append(("v", f"buffer_load_dwordx4 {vr(RAW+4,4)}, v{RAW+4}, {sr(sX,4)}, s{sRow} offen offset:1024", ("RAW", 0)))
                fill[g + 1].append(("v", f"global_load_dword v{vNon}, v{vNon}, {sr(pDbg,2)} sc1", ("RAW", 0)))
            else: place(mk(x, x[2]), max(g, 2))
    elif pair in (1, 2):
        tgt = stage + 2
        if tgt < NST:
            if pair == 1:
                for n, it in enumerate(advance()): fill[n].append(it)
            for x, p in zip(ylist, spread(len(ylist), 7, 37)):
                if pair == 1 and p < 20: place(mk(x, tgt), max(p, 2))
                if pair == 2 and p >= 20: place(mk(x, tgt), max(p - 20, 6))
    else:
        tgt = stage + 2 if pair == 3 else stage + 1
        if tgt < NST:
            n3 = 1 if len(xlist) > 2 else 0
            if pair == 3:
                for x in xlist[:n3]: place(mk(x, tgt), 10)
            else:
                for x, p in zip(xlist[n3:], spread(len(xlist) - n3, 8, 18)): place(mk(x, tgt), p)
    if valu:
        for n, it in enumerate(valu): fill[(n * 20) // len(valu)].append(it)
    for g, (b, j, kk) in enumerate(pair_order()):
        if mfma:
            k.need_lgkm({("A", stage, pair, b, kk), ("B", stage, j, kk, 0), ("B", stage, j, kk, 1)})
            a = acc(2 * pair + b, j)
            k.e(f"v_mfma_f32_16x16x32_bf16 {vr(a,4)}, {vr(bfr(j,kk),4)}, {vr(afr(pair&1,b,kk),4)}, {vr(a,4)}")
        emit_items(k, fill[g])
    return {g - 20: fill[g] for g in range(20, 24) if fill[g]}

def barrier(k, tags):
    k.need_vm(tags, also_lgkm0=True)
    k.e("s_barrier")

def nonce_check(k):
    ok, lp = lab(k, "nok"), lab(k, "nlp")
    k.e(f"v_readfirstlane_b32 s{sNon}, v{vNon}\ns_mov_b32 s{sV}, 0")
    k.label(lp)
    k.e(f"s_cmp_lg_u32 s{sNon}, 0\ns_cbranch_scc1 {ok}")
    k.e(f"v_mov_b32 v{vNon}, 0\nglobal_load_dword v{vNon}, v{vNon}, {sr(pDbg,2)} sc1\ns_waitcnt vmcnt(0)\nv_readfirstlane_b32 s{sNon}, v{vNon}")
    k.e(f"s_add_u32 s{sV}, s{sV}, 1\ns_cmp_lt_u32 s{sV}, 0x100000\ns_cbranch_scc1 {lp}")
    k.label(ok)

def gen_stage(k, var, stage, carry):
    carry = gen_pair(k, var, stage, 0, carry)
    barrier(k, {("Ahi", stage), ("RAW", 0)} if stage == 1 else {("Ahi", stage)})
    if stage == 0:
        pass
    colsum_block(k, stage, var, stage >= 14)
    v1 = v2 = None
    if stage == 1:
        nonce_check(k)
        L = [("s", x, None) for x in stats_list()]
        L.append(("s", f"s_lshr_b32 s{sRow}, s{sRow}, 8\ns_add_u32 s{sRow}, s{sRow}, {hex(WS_ST)}", None))
        L.append(("v", f"buffer_store_dwordx2 {vr(TMP,2)}, off, {sr(sWS,4)}, s{sRow} sc1", ("ST", 0)))
        h = len(L) // 2
        v1, v2 = L[:h], L[h:]
    carry = gen_pair(k, var, stage, 1, carry, valu=v1)
    carry = gen_pair(k, var, stage, 2, carry, valu=v2)
    if stage + 1 < NST:
        barrier(k, {("Alo", stage + 1), ("B", stage + 1)})
    if stage >= 2 and stage % 2 == 0: flag_block(k, stage)
    if stage >= 1: k.e(f"s_add_u32 s{sStage}, s{sStage}, 1")
    carry = gen_pair(k, var, stage, 3, carry)
    return carry

def gen_main(k, var):
    barrier(k, {("Alo", 0), ("B", 0)})
    stamp(k, 1)
    carry = gen_pair(k, var, -1, 3, {}, mfma=False)
    carry = gen_stage(k, var, 0, carry)
    carry = gen_stage(k, var, 1, carry)
    def norm(base):
        f = lambda t: tuple((x - base) if n == 1 else x for n, x in enumerate(t))
        return [f(t) for t in k.lgkm], [f(t) for t in k.vm if t[0] != "ST"]
    k.vm = [t for t in k.vm if t[0] != "ST"]
    loop = lab(k, "loop")
    k.e(".p2align 6")
    k.label(loop)
    st0 = norm(2)
    c = gen_stage(k, var, 2, carry)
    c = gen_stage(k, var, 3, c)
    assert st0 == norm(4), (st0, norm(4))
    k.e(f"s_cmp_lg_u32 s{sStage}, 14\ns_cbranch_scc1 {loop}")
    sh = lambda t: tuple((x + 10) if n == 1 else x for n, x in enumerate(t))
    k.lgkm = [sh(t) for t in k.lgkm]; k.vm = [sh(t) for t in k.vm]
    c = gen_pair(Kern("tmp"), var, 13, 3, {}, mfma=False)
    c = gen_stage(k, var, 14, c)
    c = gen_stage(k, var, 15, c)
    assert not c

def poll(k, vaddr, vdst, soff, name):
    lp, ok = lab(k, name), lab(k, name + "ok")
    k.e(f"s_mov_b32 s{sV}, 0")
    k.label(lp)
    k.e(f"buffer_load_dword v{vdst}, v{vaddr}, {sr(sWS,4)}, s{soff} offen sc1\ns_waitcnt vmcnt(0)")
    k.e(f"v_cmp_ne_u32 vcc, s{sNon}, v{vdst}\ns_nop 1\ns_cbranch_vccz {ok}")
    k.e(f"s_sleep 1\ns_add_u32 s{sV}, s{sV}, 1\ns_cmp_lt_u32 s{sV}, 0x80000\ns_cbranch_scc1 {lp}")
    k.label(ok)
    k.vm = []

STA, CSR, KC = 24, 40, 60
vL8, vS8, OUT, GT = 66, 67, 68, 80

def g2_b_dma(step_slot, tag):
    it = []
    for i in range(4):
        it.append((f"s_add_u32 m0, s{g2MB}, {step_slot*32768}" if i == 0 else "s_add_u32 m0, m0, 4096", None))
        it.append((f"buffer_load_dwordx4 v{g2DB+i}, {sr(g2Bs,4)}, s{g2KB} offen lds", tag))
    return it

def ln_gather(k, var):
    t = OUT
    k.e(f"v_cmp_gt_u32 vcc, 32, v0\nv_lshlrev_b32 v{t}, 2, v0\ns_lshl_b32 s{sU}, s{sMb}, 7\nv_add_u32 v{t+1}, s{sU}, v{t}")
    k.e(f"s_lshl_b32 s{sU}, s{sH}, 7\ns_add_u32 s{sU}, s{sU}, {F_CS - F_ST - 128}\nv_min_u32 v{t}, {38*4}, v{t}\nv_add_u32 v{t}, s{sU}, v{t}")
    k.e(f"v_cndmask_b32 v{t}, v{t}, v{t+1}, vcc\ns_mov_b32 s{sU}, {hex(WS_F+F_ST)}")
    poll(k, t, t + 1, sU, "pln")
    k.e(f"v_and_b32 v{t}, 15, v0\nv_lshlrev_b32 v{t}, 3, v{t}")
    k.e(f"s_lshl_b32 s{sU}, s{sMb}, 11\ns_lshl_b32 s{sV}, s{sWr}, 10\ns_add_u32 s{sU}, s{sU}, s{sV}\ns_add_u32 s{sU}, s{sU}, {hex(WS_ST)}")
    for i in range(8): k.vmem(f"buffer_load_dwordx2 {vr(STA+2*i,2)}, v{t}, {sr(sWS,4)}, s{sU} offen offset:{i*128} sc1", "STA")
    skip, skip2 = lab(k, "cg"), lab(k, "cg2")
    k.e(f"s_lshl_b32 s{sU}, s{sW}, 8\nv_lshlrev_b32 v{t}, 2, v0\nv_add_u32 v{t}, s{sU}, v{t}")
    k.e(f"s_cmp_ge_u32 s{sW}, 5\ns_cbranch_scc1 {skip}")
    k.e(f"s_mul_i32 s{sU}, s{sH}, {16*1280}\ns_add_u32 s{sU}, s{sU}, {hex(WS_CS)}")
    for n in range(14):
        if n and n % 3 == 0: k.e(f"s_add_u32 s{sU}, s{sU}, {3*1280}")
        k.e(f"buffer_load_dword v{CSR+n}, v{t}, {sr(sWS,4)}, s{sU} offen offset:{(n%3)*1280} sc1")
    k.label(skip)
    k.e("s_waitcnt lgkmcnt(0)\ns_barrier"); k.lgkm = []
    stamp(k, 3)
    k.e(f"s_cmp_ge_u32 s{sW}, 5\ns_cbranch_scc1 {skip2}")
    k.e(f"v_add_u32 v{t}, {L_CO}, v{t}\nds_read_b32 v{CSR+14}, v{t}\nds_read_b32 v{CSR+15}, v{t} offset:1280\ns_waitcnt vmcnt(0) lgkmcnt(0)")
    for n in range(8): k.e(f"v_add_f32 v{CSR+n}, v{CSR+n}, v{CSR+8+n}")
    for n in range(4): k.e(f"v_add_f32 v{CSR+n}, v{CSR+n}, v{CSR+4+n}")
    k.e(f"v_add_f32 v{CSR}, v{CSR}, v{CSR+2}\nv_add_f32 v{CSR+1}, v{CSR+1}, v{CSR+3}\nv_add_f32 v{CSR}, v{CSR}, v{CSR+1}")
    k.e(f"ds_write_b32 v{t}, v{CSR} offset:{L_CT - L_CO}\ns_waitcnt lgkmcnt(0)")
    k.label(skip2)
    skip3 = lab(k, "w2")
    k.e(f"s_cmp_lt_u32 s{sW}, 4\ns_cbranch_scc1 {skip3}")
    g2_loader_setup(k)
    for st in range(2):
        for text, tag in g2_b_dma(st, None): k.e(text)
        k.e(f"s_add_u32 s{g2KB}, s{g2KB}, {64*2048}")
    k.label(skip3)
    k.e("s_barrier")
    k.e(f"v_lshrrev_b32 v{t}, 4, v0\nv_lshlrev_b32 v{t}, 4, v{t}\nv_add_u32 v{t}, {L_CT}, v{t}")
    k.e(f"v_add_u32 v{t+1}, s{sNbG}, v{t}")
    if var == 0:
        k.e(f"v_add_u32 v{t}, s{sNbS}, v{t}")
        rd = [(t + 1, 0), (t + 1, 448), (t + 1, 64), (t + 1, 512), (t, 0)]
    else:
        rd = [(t + 1, 0), (t + 1, 448), (t, 0), (t, 64), (t, 128)]
    for j, (a, o) in enumerate(rd): k.ds(f"ds_read_b128 {vr(CSR+4*j,4)}, v{a} offset:{o}", "CS")
    k.need_vm({"STA"})
    for i in range(8): k.e(f"v_sub_f32 v{STA+2*i}, 0, v{STA+2*i}")
    k.need_lgkm({"CS"})

def center(k, i, j):
    a = acc(i, j)
    for hf in (0, 2):
        k.e(f"v_pk_fma_f32 {vr(a+hf,2)}, {vr(CSR+4*j+hf,2)}, {vr(STA+2*i,2)}, {vr(a+hf,2)} op_sel_hi:[1,0,1]")

def geglu(k, i, pairs, outs):
    c0 = -2.0 * math.log2(math.e) * math.sqrt(2.0 / math.pi)
    R, C0, C1, S2 = KC, KC + 2, KC + 4, KC + 1
    k.e(f"v_rcp_f32 v{R}, v{STA+2*i+1}")
    k.e(f"v_mul_f32 v{S2+0}, v{STA+2*i+1}, v{STA+2*i+1}")
    for jg, ju in pairs: center(k, i, jg); center(k, i, ju)
    k.e(f"v_mul_f32 v{C0}, {f32hex(c0)}, v{R}\nv_mul_f32 v{C1}, v{R}, v{R}\nv_mul_f32 v{C1}, {f32hex(0.044715)}, v{C1}\nv_mul_f32 v{C1}, v{C1}, v{C0}")
    P = []
    for x, (jg, ju) in enumerate(pairs):
        for hf in range(2): P.append((acc(i, jg) + 2 * hf, acc(i, ju) + 2 * hf, GT + ((i & 1) * 4 + x * 2 + hf) * 2, outs[x] + hf))
    for g, u, t, o in P: k.e(f"v_pk_mul_f32 {vr(t,2)}, {vr(g,2)}, {vr(g,2)}")
    for g, u, t, o in P: k.e(f"v_pk_fma_f32 {vr(t,2)}, {vr(t,2)}, {vr(C1,2)}, {vr(C0,2)} op_sel_hi:[1,0,0]")
    for g, u, t, o in P: k.e(f"v_pk_mul_f32 {vr(t,2)}, {vr(t,2)}, {vr(g,2)}")
    for g, u, t, o in P:
        k.e(f"v_exp_f32 v{t}, v{t}\nv_exp_f32 v{t+1}, v{t+1}\nv_pk_mul_f32 {vr(g,2)}, {vr(g,2)}, {vr(u,2)}")
    for g, u, t, o in P: k.e(f"v_pk_fma_f32 {vr(t,2)}, {vr(t,2)}, {vr(R,2)}, {vr(R,2)} op_sel:[0,1,1] op_sel_hi:[1,1,1]")
    for g, u, t, o in P: k.e(f"v_rcp_f32 v{t}, v{t}\nv_rcp_f32 v{t+1}, v{t+1}")
    for g, u, t, o in P: k.e(f"v_pk_mul_f32 {vr(g,2)}, {vr(g,2)}, {vr(t,2)}")
    for g, u, t, o in P: k.e(f"v_cvt_pk_bf16_f32 v{o}, v{g}, v{g+1}")

def single(k, i, j, o):
    a = acc(i, j)
    center(k, i, j)
    for hf in (0, 2): k.e(f"v_pk_mul_f32 {vr(a+hf,2)}, {vr(a+hf,2)}, {vr(KC,2)} op_sel_hi:[1,0]")
    k.e(f"v_cvt_pk_bf16_f32 v{o}, v{a}, v{a+1}\nv_cvt_pk_bf16_f32 v{o+1}, v{a+2}, v{a+3}")

sHo, sSo, sSs, sZ = 28, 29, 30, 12
def phase_b(k, var):
    ln_gather(k, var)
    stamp(k, 4)
    vLd = 14
    k.e(f"v_lshlrev_b32 v{vL8}, 3, v0")
    k.e(f"s_lshl_b32 s31, s{sMb}, 4\ns_lshl_b32 s32, s{sWr}, 3\ns_add_u32 s31, s31, s32")
    k.e(f"s_lshr_b32 s33, s{sH}, 1\ns_mul_i32 s33, s33, 7\ns_and_b32 s34, s{sH}, 1")
    if var == 0: k.e(f"s_lshl_b32 s35, s34, 2\ns_add_u32 s33, s33, s35\ns_add_u32 s33, s33, s{sWc_}")
    else: k.e("s_add_u32 s33, s33, 3")
    k.e(f"s_mul_i32 s{sHo}, s31, 144\ns_add_u32 s{sHo}, s{sHo}, s33\ns_lshl_b32 s{sHo}, s{sHo}, 10")
    if var == 1: k.e(f"s_lshl_b32 s34, s34, 9\ns_add_u32 s{sHo}, s{sHo}, s34")
    k.e(f"s_mov_b32 s{sZ}, s{pWS}\ns_mov_b32 s{sZ+1}, s{pWS+1}\ns_mov_b32 s{sZ+3}, 0x20000\ns_cmp_eq_u32 s{sMb}, 7\ns_cselect_b32 s{sZ+2}, 0, s{sWS+2}")
    k.e(f"s_lshl_b32 s35, s{sH}, 7\ns_add_u32 s35, s35, s31\ns_lshl_b32 s35, s35, 10")
    if var == 0:
        k.e(f"s_add_u32 s36, s35, {hex(WS_K + 512)}")
        k.e(f"s_lshl_b32 s37, s{sH}, 1\ns_add_u32 s37, s37, s{sWc_}\ns_sub_u32 s37, s37, 1\ns_lshl_b32 s37, s37, 16\ns_lshl_b32 s38, s31, 9\ns_add_u32 s37, s37, s38\ns_add_u32 s37, s37, {hex(WS_V)}")
        k.e(f"s_lshl_b32 s38, s32, 10\ns_add_u32 s38, s38, {L_K + 16*1024 + 512}")
        k.e(f"s_lshl_b32 s39, s{sWc_}, 14\ns_lshl_b32 s40, s32, 9\ns_add_u32 s39, s39, s40\ns_add_u32 s39, s39, {L_V - 16384 + 8192}")
        k.e(f"v_and_b32 v{vS8}, 15, v0\nv_lshlrev_b32 v{vS8}, 5, v{vS8}\nv_lshrrev_b32 v{vLd}, 4, v0\nv_lshl_add_u32 v{vS8}, v{vLd}, 3, v{vS8}")
        k.e(f"s_cmp_eq_u32 s{sWc_}, 0\ns_cselect_b32 s{sSo}, s36, s37\ns_cselect_b32 s38, s38, s39")
        k.e(csel(sSs, 1024, 512))
        k.e(f"s_cselect_b64 vcc, -1, 0\nv_cndmask_b32 v{vS8}, v{vS8}, v{vL8}, vcc\nv_add_u32 v{vLd}, s38, v{vS8}")
    else:
        k.e(f"s_add_u32 s{sSo}, s35, {hex(WS_K)}")
        k.e(f"s_lshl_b32 s38, s32, 10\ns_add_u32 s39, s38, {L_K + 16*1024}\nv_add_u32 v{vLd}, s39, v{vL8}")
        k.e(f"s_add_u32 s39, s38, {L_Q}\nv_lshlrev_b32 v{vLd+1}, 4, v0\nv_add_u32 v{vLd+1}, s39, v{vLd+1}")
    for i in range(8):
        o = OUT + (i & 1) * 6
        k.e(f"v_rcp_f32 v{KC}, v{STA+2*i+1}")
        if var == 0:
            single(k, i, 4, o)
            k.ds(f"ds_write_b64 v{vLd}, {vr(o,2)}", "W")
            k.vmem(f"buffer_store_dwordx2 {vr(o,2)}, v{vS8}, {sr(sZ,4)}, s{sSo} offen sc1", "KV")
            k.e(f"s_add_u32 s{sSo}, s{sSo}, s{sSs}\nv_add_u32 v{vLd}, s{sSs}, v{vLd}")
        else:
            single(k, i, 4, o + 4)
            k.ds(f"ds_write_b64 v{vLd}, {vr(o+4,2)} offset:{i*1024}", "W")
            k.vmem(f"buffer_store_dwordx2 {vr(o+4,2)}, v{vL8}, {sr(sZ,4)}, s{sSo} offen sc1", "KV")
            k.e(f"s_add_u32 s{sSo}, s{sSo}, 1024")
            single(k, i, 2, o); single(k, i, 3, o + 2)
            k.ds(f"ds_write_b128 v{vLd+1}, {vr(o,4)} offset:{i*1024}", "W")
    for i in range(8):
        o = OUT + (i & 1) * 6
        if var == 0:
            geglu(k, i, [(0, 1), (2, 3)], [o, o + 2])
            k.vmem(f"buffer_store_dwordx2 {vr(o,2)}, v{vL8}, {sr(sWS,4)}, s{sHo} offen sc1", "H")
            k.vmem(f"buffer_store_dwordx2 {vr(o+2,2)}, v{vL8}, {sr(sWS,4)}, s{sHo} offen offset:512 sc1", "H")
        else:
            geglu(k, i, [(0, 1)], [o])
            k.vmem(f"buffer_store_dwordx2 {vr(o,2)}, v{vL8}, {sr(sWS,4)}, s{sHo} offen sc1", "H")
        k.e(f"s_add_u32 s{sHo}, s{sHo}, {144*1024}")
        if i == Opt.kvbar:
            barrier(k, {"KV"})
            sk = lab(k, "kvf")
            k.e(f"s_cmp_lg_u32 s{sW}, 0\ns_cbranch_scc1 {sk}")
            k.e(f"s_lshl_b32 s{sU}, s{sMb}, 7\ns_lshl_b32 s{sV}, s{sH}, 2\ns_add_u32 s{sU}, s{sU}, s{sV}\ns_add_u32 s{sU}, s{sU}, {hex(WS_F+F_KV)}")
            flag_store(k, vLd, sU)
            k.label(sk)
        if i == Opt.kvpoll: fetch_kv(k)
    stamp(k, 5)

def fetch_kv(k):
    t = 16
    sk = lab(k, "nokv")
    k.e(f"s_cmp_eq_u32 s{sMb}, 0\ns_cselect_b32 s{sZ+2}, 0, s{sWS+2}\ns_cbranch_scc1 {sk}")
    k.e(f"s_lshl_b32 s{sU}, s{sMb}, 7\ns_lshl_b32 s{sV}, s{sH}, 2\ns_add_u32 s{sU}, s{sU}, s{sV}\ns_add_u32 s{sU}, s{sU}, {hex(WS_F+F_KV-128)}\nv_mov_b32 v{t}, 0")
    save = list(k.vm)
    poll(k, t, t + 1, sU, "pkv")
    k.vm = save
    k.label(sk)
    k.e(f"v_lshlrev_b32 v{t}, 4, v0")
    k.e(f"s_lshl_b32 s31, s{sH}, 7\ns_lshl_b32 s32, s{sMb}, 4\ns_add_u32 s31, s31, s32\ns_add_u32 s31, s31, s{sW}\ns_lshl_b32 s31, s31, 10\ns_add_u32 s31, s31, {hex(WS_K - 16*1024)}")
    k.e(f"s_lshl_b32 s32, s{sH}, 17\ns_lshl_b32 s33, s{sMb}, 13\ns_add_u32 s32, s32, s33\ns_lshl_b32 s33, s{sW}, 10\ns_add_u32 s32, s32, s33\ns_add_u32 s32, s32, {hex(WS_V - 8192)}")
    for n, (so, add, m0) in enumerate([(31, 0, L_K), (31, 8192, L_K + 8192), (32, 0, L_V), (32, 65536, L_V + 16384)]):
        k.e(f"s_add_u32 s34, s{so}, {add}\ns_add_u32 m0, s33, {m0}")
        k.vmem(f"buffer_load_dwordx4 v{t}, {sr(sZ,4)}, s34 offen{Opt.hsc} lds", "NKV")

KF, VF0, VF1, S0, P8, QC, O0 = 16, 84, 120, 156, 224, 228, 244
vKa, vVa, vM, vT, vC, vNeg, vSum, vQa, vO8 = 2, 3, 5, 6, 232, 234, 236, 4, 7
sMk, sN, sOo, sAL = 96, 28, 29, 30
MK = [96, 98, 100, 32]
def S(t): return S0 + 4 * t
def k_read(k, t):
    for hf in range(2): k.ds(f"ds_read_b64 {vr(KF+4*t+2*hf,2)}, v{vKa} offset:{t*1024 + hf*512}", ("K", t))
def v_read(k, db, t):
    k.ds(f"ds_read_b64_tr_b16 {vr((VF0,VF1)[db]+2*t,2)}, v{vVa} offset:{db*16384 + t*512}", ("V", db, t))

def attn_block(k, blk, hook):
    k.need_lgkm({"Q"})
    vq = [(db, t) for t in range(17) for db in range(2)]
    for t in range(17):
        k.need_lgkm({("K", t)})
        k.e(f"v_mfma_f32_16x16x32_bf16 {vr(S(t),4)}, {vr(KF+4*t,4)}, {vr(QC,4)}, 0")
        v_read(k, *vq[2*t]); v_read(k, *vq[2*t+1])
    k.e(f"v_add_u32 v{vKa}, 1024, v{vKa}\nv_add_u32 v{vVa}, 512, v{vVa}")
    hook(k, 0)
    nm, md = lab(k, "nomask"), lab(k, "maskd")
    k.e(f"s_cmp_eq_u32 s{sN}, 0\ns_cbranch_scc1 {nm}\ns_nop 7")
    for t in range(16):
        for r in range(4): k.e(f"v_mov_b32 v{S(t)+r}, {f32hex(-1e30)}")
        if t < 15: k.e(f"s_cmp_eq_u32 s{sN}, {t+1}\ns_cbranch_scc1 {md}")
    k.label(md)
    k.e(f"s_sub_u32 s{sN}, s{sN}, 1")
    k.label(nm)
    vals = [S(t) + r for t in range(1, 16) for r in range(4)]
    k.e(f"v_max3_f32 v{vM}, v{vals[0]}, v{vals[1]}, v{vals[2]}\nv_max3_f32 v{vT}, v{vals[3]}, v{vals[4]}, v{vals[5]}")
    rest = vals[6:]
    for n in range(0, len(rest), 2):
        d = vM if (n // 2) % 2 == 0 else vT
        k.e(f"v_max3_f32 v{d}, v{d}, v{rest[n]}, v{rest[n+1]}")
    for r in range(4): k.e(f"v_cndmask_b32 v{S(0)+r}, v{S(0)+r}, v{S(16)+r}, {sr(MK[r],2)}")
    k.e(f"v_max3_f32 v{vM}, v{vM}, v{S(0)}, v{S(0)+1}\nv_max3_f32 v{vT}, v{vT}, v{S(0)+2}, v{S(0)+3}\nv_max_f32 v{vM}, v{vM}, v{vT}")
    for p in ("v_permlane16_swap_b32", "v_permlane32_swap_b32"):
        k.e(f"v_mov_b32 v{vT}, v{vM}\n{p} v{vM}, v{vT}\nv_max_f32 v{vM}, v{vM}, v{vT}")
    k.e(f"v_mul_f32 v{vNeg}, v{vC}, v{vM}\nv_sub_f32 v{vNeg}, 0, v{vNeg}")
    hook(k, 1)
    kq = list(range(17)) if blk == 0 else []
    if blk == 0: k.ds(f"ds_read_b128 {vr(QC,4)}, v{vQa} offset:1024", "Q")
    first = True
    for u in range(8):
        for t in (2*u, 2*u+1):
            s = S(t)
            for hf in (0, 2):
                k.e(f"v_pk_fma_f32 {vr(s+hf,2)}, {vr(s+hf,2)}, {vr(vC,2)}, {vr(vNeg,2)} op_sel_hi:[1,0,0]")
            for r in range(4): k.e(f"v_exp_f32 v{s+r}, v{s+r}")
            if kq: k_read(k, kq.pop(0))
            for hf in (0, 2):
                if first:
                    k.e(f"v_pk_add_f32 {vr(vSum,2)}, {vr(s,2)}, {vr(s+2,2)}"); first = False; break
                k.e(f"v_pk_add_f32 {vr(vSum,2)}, {vr(vSum,2)}, {vr(s+hf,2)}")
            if t == 0:
                e = S(16)
                for r in range(4): k.e(f"v_cndmask_b32 v{e+r}, 0, v{s+r}, {sr(MK[r],2)}")
                for r in range(4): k.e(f"v_cndmask_b32 v{s+r}, v{s+r}, 0, {sr(MK[r],2)}")
                k.e(f"v_cvt_pk_bf16_f32 v{P8}, v{e}, v{e+1}\nv_cvt_pk_bf16_f32 v{P8+1}, v{e+2}, v{e+3}")
        p = S(2*u)
        for x in range(4): k.e(f"v_cvt_pk_bf16_f32 v{p+x}, v{p+2*x}, v{p+2*x+1}")
        for db in range(2):
            if u == 0:
                k.need_lgkm({("V", db, 16)})
                k.e(f"v_mfma_f32_16x16x32_bf16 {vr(O0+4*db,4)}, {vr((VF0,VF1)[db]+32,4)}, {vr(P8,4)}, 0")
            else:
                k.e(f"v_mfma_f32_16x16x32_bf16 {vr(O0+4*db,4)}, {vr((VF0,VF1)[db]+4*(u-1),4)}, {vr(S(2*u-2),4)}, {vr(O0+4*db,4)}")
        if u in (2, 5): hook(k, 2 + (u == 5))
    while kq: k_read(k, kq.pop(0))
    k.e(f"v_add_f32 v{vSum}, v{vSum}, v{vSum+1}")
    for db in range(2):
        k.e(f"v_mfma_f32_16x16x32_bf16 {vr(O0+4*db,4)}, {vr((VF0,VF1)[db]+28,4)}, {vr(S(14),4)}, {vr(O0+4*db,4)}")
    for p in ("v_permlane16_swap_b32", "v_permlane32_swap_b32"):
        k.e(f"v_mov_b32 v{vT}, v{vSum}\n{p} v{vSum}, v{vT}\nv_add_f32 v{vSum}, v{vSum}, v{vT}")
    k.e(f"v_rcp_f32 v{vSum}, v{vSum}")
    for x in range(4): k.e(f"v_pk_mul_f32 {vr(O0+2*x,2)}, {vr(O0+2*x,2)}, {vr(vSum,2)} op_sel_hi:[1,0]")
    for x in range(4): k.e(f"v_cvt_pk_bf16_f32 v{S(16)+x}, v{O0+2*x}, v{O0+2*x+1}")
    for hf in range(2):
        k.vmem(f"buffer_store_dwordx2 {vr(S(16)+2*hf,2)}, v{vO8}, {sr(sWS,4)}, s{sOo} offen offset:{hf*512} sc1", "O")
    k.e(f"s_add_u32 s{sOo}, s{sOo}, {144*1024}")

def wg_flag(k, base, vt):
    sk = lab(k, "wf")
    k.e(f"s_cmp_lg_u32 s{sW}, 0\ns_cbranch_scc1 {sk}")
    k.e(f"s_lshl_b32 s{sU}, s{sMb}, 7\ns_lshl_b32 s{sV}, s{sH}, 2\ns_add_u32 s{sU}, s{sU}, s{sV}\ns_add_u32 s{sU}, s{sU}, {hex(WS_F+base)}")
    flag_store(k, vt, sU)
    k.label(sk)

def phase_c(k):
    k.e(f"v_lshlrev_b32 v{vO8}, 3, v0")
    k.e(f"s_lshl_b32 s31, s{sW}, 1\ns_lshl_b32 s{sOo}, s{sMb}, 4\ns_add_u32 s{sOo}, s{sOo}, s31\ns_mul_i32 s{sOo}, s{sOo}, 144")
    k.e(f"s_add_u32 s{sOo}, s{sOo}, s{sH}\ns_add_u32 s{sOo}, s{sOo}, 112\ns_lshl_b32 s{sOo}, s{sOo}, 10")
    k.e(f"s_sub_u32 s{sN}, 16, s31\ns_cmp_eq_u32 s{sMb}, 0\ns_cselect_b32 s{sN}, s{sN}, 0")
    k.e(f"s_lshl_b32 s31, s{sW}, 11\ns_add_u32 s34, s31, {L_K}\nv_add_u32 v{vKa}, s34, v{vO8}")
    k.e(f"s_add_u32 s34, s31, {L_Q}\nv_lshlrev_b32 v{vQa}, 4, v0\nv_add_u32 v{vQa}, s34, v{vQa}")
    k.e(f"s_lshl_b32 s31, s{sW}, 10\ns_add_u32 s34, s31, {L_V}\nv_add_u32 v{vVa}, s34, v{vO8}")
    k.e(f"v_and_b32 v{vM}, 15, v0\nv_lshrrev_b32 v{vT}, 4, v0\nv_lshlrev_b32 v{vT}, 2, v{vT}")
    for r in range(4):
        k.e(f"v_cmp_le_u32 {sr(MK[r],2)}, v{vT}, v{vM}")
        if r < 3: k.e(f"v_add_u32 v{vT}, 1, v{vT}")
    k.e(f"v_mov_b32 v{vC}, {f32hex(math.log2(math.e) / math.sqrt(32.0))}")
    for r in (VF0 + 34, VF0 + 35, VF1 + 34, VF1 + 35, P8 + 2, P8 + 3): k.e(f"v_mov_b32 v{r}, 0")

def phase_c2(k):
    k.ds(f"ds_read_b128 {vr(QC,4)}, v{vQa}", "Q")
    for t in range(17): k_read(k, t)
    def hook0(k, n):
        if n == Opt.hhook:
            k.e("s_waitcnt vmcnt(0)\ns_barrier"); k.vm = []
            wg_flag(k, F_H, vT)
    attn_block(k, 0, hook0)
    attn_block(k, 1, lambda k, n: None)
    stamp(k, 6)

g2Hs, g2Bs, g2Xs, g2Os = 24, 16, 8, 12
g2KA, g2KB, g2MA, g2MB, g2Mt, g2Nt, g2Half = 87, 88, 89, 92, 20, 21, 22
g2Wr, g2Rd, g2D, g2Loop, g2T2, g2w = 28, 29, 30, 31, 32, 33
g2DB = 8
g2L16, g2A, g2X, g2B = 12, 1, 3, 4
FR0, SETSZ, ACC2, XR = 16, 64, 144, 208
SLOT = 32768
def afr2(p, i, kk): return FR0 + p * SETSZ + (i * 2 + kk) * 4
def bfr2(p, b, kk): return FR0 + p * SETSZ + 32 + (b * 2 + kk) * 4
def acc2(i, b): return ACC2 + (i * 4 + b) * 4

def g2_ids(k):
    k.e(f"s_and_b32 s{sU}, s2, 7\ns_lshr_b32 s{sV}, s2, 3\ns_and_b32 s{g2Half}, s{sU}, 1")
    k.e(f"s_lshr_b32 s{g2Mt}, s{sU}, 1\ns_lshl_b32 s{g2Mt}, s{g2Mt}, 2\ns_and_b32 s{sU}, s{sV}, 3\ns_add_u32 s{g2Mt}, s{g2Mt}, s{sU}\ns_lshr_b32 s{g2Nt}, s{sV}, 2")

def g2_loader_setup(k):
    g2_ids(k)
    k.e(f"s_and_b32 s{sU}, s{sW}, 3")
    k.e(f"s_lshl_b32 s{g2KA}, s{g2Mt}, 3\ns_lshl_b32 s{sV}, s{sU}, 1\ns_add_u32 s{g2KA}, s{g2KA}, s{sV}\ns_mul_i32 s{g2KA}, s{g2KA}, 144")
    k.e(f"s_mul_i32 s{sV}, s{g2Half}, 72\ns_add_u32 s{g2KA}, s{g2KA}, s{sV}\ns_lshl_b32 s{g2KA}, s{g2KA}, 10")
    k.e(f"s_mul_i32 s{g2KB}, s{g2Half}, {36*64*2048}")
    k.e(f"s_lshl_b32 s{g2MA}, s{sU}, 12\ns_lshl_b32 s{g2MB}, s{sU}, 10\ns_add_u32 s{g2MB}, s{g2MB}, 16384")
    k.e(f"v_lshrrev_b32 v{g2DB}, 4, v0\nv_and_b32 v{g2DB+1}, 15, v0\ns_and_b32 s{sV}, s{sU}, 1\ns_lshl_b32 s{sV}, s{sV}, 2")
    k.e(f"v_add_u32 v{g2DB+2}, s{sV}, v{g2DB}\nv_lshlrev_b32 v{g2DB+2}, 1, v{g2DB+2}\nv_xor_b32 v{g2DB+1}, v{g2DB+1}, v{g2DB+2}")
    k.e(f"v_lshlrev_b32 v{g2DB+1}, 4, v{g2DB+1}\nv_lshl_add_u32 v{g2DB}, v{g2DB}, 11, v{g2DB+1}")
    k.e(f"s_lshl_b32 s{sU}, s{sU}, 13\ns_lshl_b32 s{sV}, s{g2Nt}, 8\ns_add_u32 s{sU}, s{sU}, s{sV}\nv_add_u32 v{g2DB}, s{sU}, v{g2DB}")
    for i in range(1, 4): k.e(f"v_add_u32 v{g2DB+i}, {i*16*2048}, v{g2DB}")
    k.e(f"v_lshlrev_b32 v{g2L16}, 4, v0")
    srd(k, g2Bs, pD, 3584 * 2048)

def g2_a_dma(base_sgpr_or_imm, tag):
    h = Opt.hsc
    return [(f"s_add_u32 m0, s{g2MA}, {base_sgpr_or_imm}", None),
            (f"buffer_load_dwordx4 v{g2L16}, {sr(g2Hs,4)}, s{g2KA} offen{h} lds", tag),
            (f"buffer_load_dwordx4 v{g2L16}, {sr(g2Hs,4)}, s{g2KA} offen offset:1024{h} lds", tag),
            (f"s_add_u32 s{sT}, s{g2KA}, {144*1024}\ns_add_u32 m0, m0, 2048", None),
            (f"buffer_load_dwordx4 v{g2L16}, {sr(g2Hs,4)}, s{sT} offen{h} lds", tag),
            (f"buffer_load_dwordx4 v{g2L16}, {sr(g2Hs,4)}, s{sT} offen offset:1024{h} lds", tag),
            (f"s_add_u32 s{g2KA}, s{g2KA}, 2048", None)]

def emit2(k, items):
    for text, tag in items:
        if tag is None: k.e(text)
        elif text.startswith("ds_"): k.ds(text, tag)
        else: k.vmem(text, tag)

def g2_step_dma(k, tag):
    emit2(k, g2_a_dma(f"s{g2Wr}", tag))
    for i in range(4):
        k.e(f"s_add_u32 m0, s{g2MB}, s{g2Wr}" if i == 0 else "s_add_u32 m0, m0, 4096")
        k.vmem(f"buffer_load_dwordx4 v{g2DB+i}, {sr(g2Bs,4)}, s{g2KB} offen lds", tag)
    k.e(f"s_add_u32 s{g2KB}, s{g2KB}, {64*2048}\ns_add_u32 s{g2Wr}, s{g2Wr}, {SLOT}\ns_cmp_eq_u32 s{g2Wr}, {Opt.NS*SLOT}\ns_cselect_b32 s{g2Wr}, 0, s{g2Wr}")

def g2_loader(k):
    NS, N = Opt.NS, 36
    vF, vFd = 13, 14
    k.e(f"v_and_b32 v{vF}, 31, v0\nv_lshlrev_b32 v{vF}, 2, v{vF}\ns_lshr_b32 s{sU}, s{g2Mt}, 1\ns_lshl_b32 s{sU}, s{sU}, 7\nv_add_u32 v{vF}, s{sU}, v{vF}")
    k.e(f"s_mov_b32 s{sU}, {hex(WS_F+F_H)}")
    poll(k, vF, vFd, sU, "ph")
    stamp(k, 7)
    for st in range(2): emit2(k, g2_a_dma(st * SLOT, ("D", st)))
    k.e("s_barrier")
    k.e(f"s_mov_b32 s{g2Wr}, {2*SLOT}")
    for st in range(2, NS): g2_step_dma(k, ("D", st))
    k.need_vm({("D", 0)}); k.e("s_barrier")
    k.need_vm({("D", 1)})
    sw = 56 - 36 - NS
    k.e(f"s_mov_b32 s{g2Loop}, 0\ns_cmp_eq_u32 s{g2Half}, 0")
    k.e(csel(g2D, 1000, sw))
    k.e(f"s_mov_b32 s{sU}, {hex(WS_F+F_O)}")
    lp, ns, nf = lab(k, "ll"), lab(k, "lns"), lab(k, "lnf")
    k.label(lp)
    k.e("s_barrier")
    k.e(f"s_cmp_lg_u32 s{g2Loop}, s{g2D}\ns_cbranch_scc1 {ns}")
    k.e(f"v_cmp_ne_u32 vcc, s{sNon}, v{vFd}\ns_nop 1\ns_cbranch_vccz {nf}")
    save = list(k.vm)
    poll(k, vF, vFd, sU, "po")
    k.vm = save
    k.label(nf)
    k.e(f"s_mov_b32 s{g2Bs}, s{pWo}\ns_mov_b32 s{g2Bs+1}, s{pWo+1}\ns_mov_b32 s{g2Bs+2}, {1024*2048}\ns_mov_b32 s{g2KB}, 0")
    k.label(ns)
    g2_step_dma(k, ("D", NS))
    n2 = lab(k, "lnp")
    k.e(f"s_cmp_lg_u32 s{g2Loop}, {sw - NS}\ns_cbranch_scc1 {n2}")
    k.e(f"buffer_load_dword v{vFd}, v{vF}, {sr(sWS,4)}, s{sU} offen sc1")
    k.label(n2)
    k.need_vm({("D", 2)})
    k.e(f"s_add_u32 s{g2Loop}, s{g2Loop}, 1\ns_cmp_lg_u32 s{g2Loop}, {N - NS}\ns_cbranch_scc1 {lp}")
    for j in range(NS - 1):
        k.e("s_barrier")
        k.need_vm({("D", 3 + j)})

def g2_reads(p, tag):
    it = []
    for x in range(4):
        for kk in range(2):
            for hf in range(2): it.append((f"ds_read_b64 {vr(afr2(p,x,kk)+2*hf,2)}, v{g2A} offset:{(x*2+kk)*1024 + hf*512}", tag))
        for kk in range(2):
            for rd in range(2): it.append((f"ds_read_b64_tr_b16 {vr(bfr2(p,x,kk)+2*rd,2)}, v{g2B+x} offset:{(32*kk+16*rd)*256}", tag))
    return it

def g2_rot():
    NS = Opt.NS
    return [f"s_add_u32 s{g2Rd}, s{g2Rd}, {SLOT}\ns_mov_b32 s{g2D}, {SLOT}",
            f"s_cmp_eq_u32 s{g2Rd}, {NS*SLOT}\ns_cselect_b32 s{g2Rd}, 0, s{g2Rd}\ns_cmov_b32 s{g2D}, {hex((-(NS-1)*SLOT) & 0xffffffff)}",
            f"v_add_u32 v{g2A}, s{g2D}, v{g2A}"] + [f"v_add_u32 v{g2B+b}, s{g2D}, v{g2B+b}" for b in range(4)]

def g2_step(k, p, reads, extra=None):
    k.e("s_waitcnt lgkmcnt(0)"); k.lgkm = []
    if reads: k.e("s_barrier")
    seq = []
    for i in range(4):
        for n, b in enumerate(range(4) if i % 2 == 0 else range(3, -1, -1)):
            kks = (0, 1) if n % 2 == 0 else (1, 0)
            seq += [(i, b, kks[0]), (i, b, kks[1])]
    fill = {g: [] for g in range(32)}
    if reads:
        rd = g2_reads(1 - p, "R")
        for x, it in enumerate(rd): fill[(x * 27) // len(rd)].append(it)
        rot = g2_rot()
        fill[20].append((rot[0], None)); fill[22].append((rot[1], None))
        for x, t in enumerate(rot[2:]): fill[27 + x].append((t, None))
    for x, it in enumerate(extra or []): fill[(x * 32) // len(extra)].append(it)
    for g, (i, b, kk) in enumerate(seq):
        a = acc2(i, b)
        k.e(f"v_mfma_f32_16x16x32_bf16 {vr(a,4)}, {vr(bfr2(p,b,kk),4)}, {vr(afr2(p,i,kk),4)}, {vr(a,4)}")
        emit2(k, fill[g])

def g2_compute(k):
    g2_ids(k)
    k.e(f"s_lshr_b32 s{sU}, s{sW}, 1\ns_lshl_b32 s{sV}, s{sU}, 13\nv_lshlrev_b32 v{g2A}, 3, v0\nv_add_u32 v{g2A}, s{sV}, v{g2A}")
    k.e(f"v_lshlrev_b32 v{g2L16}, 4, v0")
    k.e(f"v_lshrrev_b32 v8, 2, v0\nv_and_b32 v9, 7, v8\nv_lshlrev_b32 v9, 1, v9\nv_bfe_u32 v10, v0, 1, 1\nv_xor_b32 v9, v9, v10")
    k.e(f"v_lshlrev_b32 v8, 8, v8\nv_and_b32 v10, 1, v0\nv_lshl_add_u32 v8, v10, 3, v8\nv_add_u32 v8, 16384, v8")
    k.e(f"s_and_b32 s{sV}, s{sW}, 1\ns_lshl_b32 s{sV}, s{sV}, 3")
    for b in range(4): k.e(f"s_add_u32 s{sT}, s{sV}, {2*b}\nv_xor_b32 v10, s{sT}, v9\nv_lshl_add_u32 v{g2B+b}, v10, 4, v8")
    k.e(f"v_and_b32 v8, 15, v0\nv_lshlrev_b32 v{g2X}, 11, v8\nv_bfe_u32 v8, v0, 4, 1\nv_lshl_add_u32 v{g2X}, v8, 5, v{g2X}\nv_lshrrev_b32 v8, 5, v0\nv_lshl_add_u32 v{g2X}, v8, 4, v{g2X}")
    k.e(f"s_lshl_b32 s{sU}, s{sU}, 6\ns_lshl_b32 s{g2T2}, s{g2Mt}, 7\ns_add_u32 s{g2T2}, s{g2T2}, s{sU}\ns_lshl_b32 s{sU}, s{g2Half}, 5\ns_add_u32 s{g2T2}, s{g2T2}, s{sU}\ns_lshl_b32 s{g2T2}, s{g2T2}, 11")
    k.e(f"s_lshl_b32 s{sU}, s{g2Nt}, 8\ns_lshl_b32 s{sV}, s{sV}, 4\ns_add_u32 s{g2T2}, s{g2T2}, s{sU}\ns_add_u32 s{g2T2}, s{g2T2}, s{sV}")
    srd(k, g2Xs, pX, 0x400000)
    srd(k, g2Os, pOut, 0x400000)
    for r in range(ACC2, ACC2 + 64): k.e(f"v_mov_b32 v{r}, 0")
    k.e(f"s_mov_b32 s{g2Rd}, 0\ns_mov_b32 s{g2Loop}, 0")
    k.e("s_waitcnt vmcnt(0)\ns_barrier"); k.vm = []
    wg_flag(k, F_O, 8)
    k.e("s_barrier")
    stamp(k, 8)
    emit2(k, g2_reads(0, "R"))
    for t in g2_rot(): k.e(t)
    lp = lab(k, "g2l")
    k.e(".p2align 6")
    k.label(lp)
    g2_step(k, 0, True); g2_step(k, 1, True)
    k.e(f"s_add_u32 s{g2Loop}, s{g2Loop}, 2\ns_cmp_lg_u32 s{g2Loop}, 34\ns_cbranch_scc1 {lp}")
    xl = []
    for i in range(2):
        xl.append((f"s_add_u32 s{sT}, s{g2T2}, {i*16*2048}", None))
        for pr in range(2): xl.append((f"buffer_load_dwordx4 {vr(XR+(i*2+pr)*4,4)}, v{g2X}, {sr(g2Xs,4)}, s{sT} offen offset:{pr*64}", "X"))
    g2_step(k, 0, True, extra=xl); g2_step(k, 1, False)
    stamp(k, 9)
    k.e(f"s_lshl_b32 s{sU}, s{g2Mt}, 3\ns_add_u32 s{sU}, s{sU}, s{g2Nt}\ns_lshl_b32 s{sU}, s{sU}, 3\ns_add_u32 s{sU}, s{sU}, s{sW}\ns_lshl_b32 s{sV}, s{g2Half}, 2")
    k.e(f"s_add_u32 s34, s{sU}, s{sV}\ns_xor_b32 s35, s34, 4")
    k.e(f"s_lshl_b32 s36, s34, 13\ns_add_u32 s36, s36, {hex(WS_P)}\ns_lshl_b32 s37, s35, 13\ns_add_u32 s37, s37, {hex(WS_P)}")
    k.e(f"s_lshl_b32 s34, s34, 7\ns_add_u32 s34, s34, {hex(WS_F+F_P)}\ns_lshl_b32 s35, s35, 7\ns_add_u32 s35, s35, {hex(WS_F+F_P)}")
    h1, fin = lab(k, "h1"), lab(k, "fin")
    k.e(f"v_mov_b32 v8, 0\ns_cmp_eq_u32 s{g2Half}, 1\ns_cbranch_scc1 {h1}")
    save = list(k.vm)
    for half in range(2):
        if half == 1:
            k.label(h1); k.vm = list(save)
        own, send = (0, 2) if half == 0 else (2, 0)
        PR = FR0
        if Opt.pbf16:
            for n in range(4):
                a = acc2(send + n // 2, 2 * (n % 2))
                for d in range(4): k.e(f"v_cvt_pk_bf16_f32 v{PR+4*n+d}, v{a+2*d}, v{a+2*d+1}")
                k.e(f"buffer_store_dwordx4 {vr(PR+4*n,4)}, v{g2L16}, {sr(g2Hs,4)}, s36 offen offset:{n*1024} sc1")
        else:
            for n in range(8):
                if n == 4: k.e("s_add_u32 s36, s36, 4096")
                k.e(f"buffer_store_dwordx4 {vr(acc2(send + n // 4, n % 4),4)}, v{g2L16}, {sr(g2Hs,4)}, s36 offen offset:{(n%4)*1024} sc1")
        k.e("s_waitcnt vmcnt(0)")
        flag_store(k, 9, 34)
        poll(k, 8, 9, 35, "pp")
        stamp(k, 10)
        PR = FR0 + 32
        nld = 4 if Opt.pbf16 else 8
        for n in range(nld):
            if n == 4: k.e("s_add_u32 s37, s37, 4096")
            k.vmem(f"buffer_load_dwordx4 {vr(PR+4*n,4)}, v{g2L16}, {sr(g2Hs,4)}, s37 offen offset:{(n%4)*1024} sc1", ("P", n))
        for i in range(2):
            for pr in range(2):
                a, b = acc2(own + i, 2 * pr), acc2(own + i, 2 * pr + 1)
                t = FR0 + ((i * 2 + pr) & 1) * 8
                if Opt.pbf16:
                    k.need_vm({("P", i * 2 + pr)})
                    q = PR + 4 * (i * 2 + pr)
                    for d in range(4): k.e(f"v_lshlrev_b32 v{t+2*d}, 16, v{q+d}\nv_and_b32 v{t+2*d+1}, 0xffff0000, v{q+d}")
                    for d in range(4): k.e(f"v_pk_add_f32 {vr(a+2*d,2)}, {vr(a+2*d,2)}, {vr(t+2*d,2)}")
                else:
                    k.need_vm({("P", i * 4 + 2 * pr + 1)})
                    q = PR + 4 * (i * 4 + 2 * pr)
                    for d in range(4): k.e(f"v_pk_add_f32 {vr(a+2*d,2)}, {vr(a+2*d,2)}, {vr(q+2*d,2)}")
                for r in range(4): k.e(f"v_permlane16_swap_b32 v{a+r}, v{b+r}")
                x = XR + (i * 2 + pr) * 4
                for d in range(4): k.e(f"v_lshlrev_b32 v{t+2*d}, 16, v{x+d}\nv_and_b32 v{t+2*d+1}, 0xffff0000, v{x+d}")
                for d in range(4): k.e(f"v_pk_add_f32 {vr(t+2*d,2)}, {vr(t+2*d,2)}, {vr(a+2*d,2)}")
                for d in range(4): k.e(f"v_cvt_pk_bf16_f32 v{x+d}, v{t+2*d}, v{t+2*d+1}")
                k.e(f"s_add_u32 s{sT}, s{g2T2}, {i*16*2048}")
                k.vmem(f"buffer_store_dwordx4 {vr(x,4)}, v{g2X}, {sr(g2Os,4)}, s{sT} offen offset:{pr*64}", "st")
        if half == 0: k.e(f"s_branch {fin}")
    k.label(fin)

def swap23(k, d, s, t):
    k.e(f"v_lshrrev_b32 v{t}, 1, v{s}\nv_xor_b32 v{t}, v{t}, v{s}\nv_and_b32 v{t}, 4, v{t}\nv_mul_u32_u24 v{t}, 3, v{t}\nv_xor_b32 v{d}, v{s}, v{t}")

def qkv_voff(k, d, vL, t0, t1, t2):
    k.e(f"v_mul_u32_u24 v{t0}, 5462, v{vL}\nv_lshrrev_b32 v{t0}, 16, v{t0}")
    k.e(f"v_mul_u32_u24 v{t1}, 12, v{t0}\nv_sub_u32 v{t1}, v{vL}, v{t1}")
    k.e(f"v_lshrrev_b32 v{t2}, 1, v{t0}\nv_and_b32 v{t2}, 2, v{t2}\nv_xor_b32 v{t1}, v{t1}, v{t2}")
    swap23(k, d, t0, t2)
    k.e(f"v_mul_u32_u24 v{d}, 6144, v{d}")
    k.e(f"v_lshrrev_b32 v{t2}, 2, v{t1}\nv_lshl_add_u32 v{d}, v{t2}, 11, v{d}")
    k.e(f"v_and_b32 v{t1}, 3, v{t1}\nv_lshl_add_u32 v{d}, v{t1}, 4, v{d}\nv_add_u32 v{d}, s{sNbS}, v{d}")

def gen_fused(name):
    uid[0] = 0
    k = Kern(name)
    k.e(header(name))
    end = "L_end"
    k.e(f"s_cmp_ge_u32 s2, 256\ns_cbranch_scc1 {end}")
    if Opt.perm == 1: k.e("s_and_b32 s3, s2, 7\ns_lshl_b32 s3, s3, 5\ns_lshr_b32 s2, s2, 3\ns_or_b32 s2, s2, s3")
    if Opt.perm == 2:
        for bit, mask in ((3, 5), (4, 3), (5, 6), (0, 24), (1, 40), (2, 48), (6, 21), (7, 42)):
            k.e(f"s_bitcmp1_b32 s2, {bit}\ns_cselect_b32 s3, {mask}, 0\ns_xor_b32 s2, s2, s3")
    if Opt.timing: k.e("s_memtime s[60:61]")
    k.e("s_load_dwordx4 s[4:7], s[0:1], 0\ns_load_dwordx8 s[48:55], s[0:1], 32\ns_load_dwordx4 s[56:59], s[0:1], 64")
    k.e(f"s_load_dwordx2 s[{pWo}:{pWo+1}], s[0:1], 16\ns_memrealtime s[100:101]")
    k.e(f"v_lshrrev_b32 v9, 6, v0\nv_and_b32 v0, 63, v0\nv_readfirstlane_b32 s{sW}, v9")
    k.e(f"s_and_b32 s{sH}, s2, 7\ns_lshl_b32 s{sH}, s{sH}, 2\ns_lshr_b32 s3, s2, 3\ns_and_b32 s3, s3, 3\ns_add_u32 s{sH}, s{sH}, s3")
    k.e(f"s_lshr_b32 s{sMb}, s2, 5\ns_lshr_b32 s{sWr}, s{sW}, 2\ns_and_b32 s{sWc_}, s{sW}, 3")
    sRA, sRB = sFl1, sFl2
    if Opt.rot:
        k.e(f"s_and_b32 s3, s{sH}, 1\ns_lshl_b32 s3, s3, 2\ns_xor_b32 s{sRA}, s{sW}, s3")
        k.e(f"s_and_b32 s3, s{sMb}, 1\ns_lshl_b32 s3, s3, 2\ns_xor_b32 s{sRB}, s{sW}, s3")
    else:
        k.e(f"s_mov_b32 s{sRA}, s{sW}\ns_mov_b32 s{sRB}, s{sW}")
    k.e(f"s_and_b32 s3, s{sW}, 1\ns_lshl_b32 s3, s3, 2")
    k.e(f"v_lshrrev_b32 v11, 4, v0\nv_add_u32 v11, s3, v11\nv_and_b32 v12, 7, v0\nv_xor_b32 v11, v11, v12\nv_lshlrev_b32 v11, 4, v11")
    k.e(f"v_lshrrev_b32 v12, 3, v0\nv_lshl_add_u32 v{vDA}, v12, 11, v11")
    k.e(f"s_lshl_b32 s{sKA}, s{sMb}, 19\ns_lshl_b32 s3, s{sRA}, 14\ns_add_u32 s{sKA}, s{sKA}, s3\ns_lshl_b32 s{sMA}, s{sRA}, 10")
    k.e(f"s_mov_b32 s{sX+2}, 0x400000\ns_mov_b32 s{sX+3}, 0x20000")
    k.e("s_waitcnt lgkmcnt(0)")
    k.e(f"s_mov_b32 s{sX}, s{pX}\ns_mov_b32 s{sX+1}, s{pX+1}")
    emit_items(k, dma_a(0, 0)); emit_items(k, dma_a(0, 1))
    k.e(f"s_lshl_b32 s{sNbS}, s{sH}, 6\ns_mul_i32 s{sNbG}, s{sH}, 224")
    k.e(f"s_lshl_b32 s3, s{sRB}, 10\ns_add_u32 s3, s3, {LDS_B}\ns_cmp_eq_u32 s{sRB}, 7")
    k.e(f"s_cselect_b32 s{sWa}, s{pQKV}, s{pG}\ns_cselect_b32 s{sWa+1}, s{pQKV+1}, s{pG+1}")
    k.e(f"s_cselect_b32 s{sWb}, s{pQKV}, s{pU}\ns_cselect_b32 s{sWb+1}, s{pQKV+1}, s{pU+1}")
    k.e(csel(sWa+2, 1024*6144, 1024*7168)); k.e(f"s_mov_b32 s{sWb+2}, s{sWa+2}\ns_mov_b32 s{sWa+3}, 0x20000\ns_mov_b32 s{sWb+3}, 0x20000")
    k.e(csel(sStep, 64*6144, 64*7168)); k.e(csel(sO[1], 16*6144, 32*7168))
    k.e(f"s_cselect_b32 s{sO[2]}, {32*6144}, 0"); k.e(csel(sO[3], 48*6144, 32*7168))
    k.e(f"s_cselect_b32 s{sM[0]}, {LDS_B+28672}, s3")
    k.e(csel(sM[1], 3072, 7168)); k.e(csel(sM[2], 6144, 14336)); k.e(csel(sM[3], 9216, 14336+7168))
    k.e(f"s_mov_b32 s{sKB}, 0\ns_mov_b32 s{sKQ}, 0")
    w7, w7d = lab(k, "w7"), lab(k, "w7d")
    k.e(f"s_cbranch_scc1 {w7}")
    k.e(f"s_lshl_b32 s3, s{sRB}, 6\nv_add_u32 v11, s3, v0\nv_mul_u32_u24 v12, 4682, v11\nv_lshrrev_b32 v12, 16, v12")
    k.e(f"v_mul_u32_u24 v13, 14, v12\nv_sub_u32 v13, v11, v13")
    swap23(k, vDB0, 12, 14)
    k.e(f"v_mul_u32_u24 v{vDB0}, 7168, v{vDB0}\nv_lshl_add_u32 v{vDB0}, v13, 4, v{vDB0}\nv_add_u32 v{vDB0}, s{sNbG}, v{vDB0}\ns_branch {w7d}")
    k.label(w7)
    qkv_voff(k, vDB0, 0, 12, 13, 14)
    k.label(w7d)
    for d in (1, 2, 3): k.e(f"s_add_u32 s{sM[d]}, s{sM[0]}, s{sM[d]}")
    for d in range(4): emit_items(k, dma_b(0, d))
    tab = 0
    for w, t in enumerate([2, 4, 5, 7, 8, 10, 11, 1]): tab |= t << (4 * w)
    k.e(f"s_lshl_b32 s3, s{sRB}, 2\ns_lshr_b32 s3, {hex(tab)}, s3\ns_and_b32 s3, s3, 15")
    k.e(f"s_lshl_b32 s{sM[4]}, s3, 10\ns_add_u32 s{sM[4]}, s{sM[4]}, {LDS_B+28672}\ns_lshl_b32 s3, s3, 6\nv_add_u32 v11, s3, v0")
    srd(k, sWc, pQKV, 1024 * 6144)
    qkv_voff(k, vDB1, 11, 12, 13, 14)
    emit_items(k, dma_b(0, 4))
    emit_items(k, dma_a(0, 2)); emit_items(k, dma_a(0, 3))
    srd(k, sWS, pWS, WS_BYTES)
    nn = lab(k, "nn")
    k.e(f"v_mov_b32 v{vNon}, 0\ns_or_b32 s3, s2, s{sW}\ns_cmp_lg_u32 s3, 0\ns_cbranch_scc1 {nn}")
    k.e(f"s_or_b32 s3, s100, 1\nv_mov_b32 v11, s3\nglobal_store_dword v{vNon}, v11, {sr(pDbg,2)} sc1")
    k.label(nn)
    k.e("v_and_b32 v11, 15, v0\nv_lshrrev_b32 v12, 4, v0")
    k.e("v_lshrrev_b32 v13, 1, v11\nv_xor_b32 v13, v13, v12\nv_lshlrev_b32 v13, 4, v13")
    k.e(f"v_lshl_add_u32 v{vA0}, v11, 7, v13\ns_lshl_b32 s3, s{sWr}, 14\nv_add_u32 v{vA0}, s3, v{vA0}\nv_xor_b32 v{vA1}, 64, v{vA0}")
    k.e("v_lshrrev_b32 v13, 1, v12\nv_lshlrev_b32 v13, 4, v13\nv_and_b32 v14, 1, v12\nv_lshl_add_u32 v13, v14, 2, v13")
    k.e("v_bfe_u32 v15, v0, 2, 2\nv_add_u32 v13, v13, v15\nv_and_b32 v15, 3, v0\nv_lshlrev_b32 v15, 3, v15")
    k.e(f"v_mul_u32_u24 v{vGU}, 224, v13\nv_add_u32 v{vGU}, v{vGU}, v15")
    k.e(f"v_mul_u32_u24 v{vQe}, 192, v13\nv_add_u32 v{vQe}, v{vQe}, v15\nv_add_u32 v{vQe}, {LDS_B+28672}, v{vQe}\nv_lshlrev_b32 v14, 5, v14")
    for r in range(ACC0, 256): k.e(f"v_mov_b32 v{r}, 0")
    k.e(f"s_mov_b32 s{sOne}, 0x3f803f80\ns_mov_b32 s{sStage}, 1")
    k.e(f"s_lshl_b32 s{sRow}, s{sMb}, 5\ns_add_u32 s{sRow}, s{sRow}, s{sH}\ns_lshl_b32 s{sRow}, s{sRow}, 3\ns_add_u32 s{sRow}, s{sRow}, s{sW}\ns_lshl_b32 s{sRow}, s{sRow}, 11")
    if Opt.timing:
        k.e(f"s_lshl_b32 s3, s2, 3\ns_add_u32 s3, s3, s{sW}\ns_lshl_b32 s3, s3, 6\ns_add_u32 s3, s3, {hex(WS_T)}\nv_mov_b32 v11, s100")
        k.e(f"buffer_store_dword v11, off, {sr(sWS,4)}, s3 offset:60")
    k.e(f"s_lshl_b32 s{sCs}, s{sMb}, 1\ns_add_u32 s{sFl2}, s{sCs}, 2\ns_add_u32 s{sCs}, s{sCs}, s{sWr}")
    k.e(f"s_cmp_eq_u32 s{sMb}, 7\ns_cmov_b32 s{sCs}, 99\ns_cmov_b32 s{sFl2}, 99")
    k.e(f"s_mov_b32 s{sFl1}, 2\ns_cmp_lg_u32 s{sW}, 0\ns_cmov_b32 s{sFl1}, 99\ns_cmov_b32 s{sFl2}, 99")
    k.e(f"s_and_b32 s3, s{sH}, 1")
    v1, join = lab(k, "v1"), lab(k, "join")
    k.e(f"s_cmp_eq_u32 s{sWc_}, 3\ns_cbranch_scc1 {v1}")
    save = (list(k.lgkm), list(k.vm))
    for var in (0, 1):
        if var == 1:
            k.label(v1)
            k.lgkm, k.vm = list(save[0]), list(save[1])
        if var == 0:
            k.e(f"s_lshl_b32 s{sU}, s{sWc_}, 1\ns_add_u32 s{sU}, s{sU}, s3")
            k.e(f"s_add_u32 s{sV}, s{sWc_}, 3\ns_lshl_b32 s{sNbS}, s{sV}, 6\ns_lshl_b32 s{sV}, s{sV}, 5\nv_xor_b32 v14, s{sV}, v14\nv_add_u32 v{vQe}, v{vQe}, v14")
        else:
            k.e(f"s_cmp_eq_u32 s3, 0\ns_cselect_b32 s{sU}, 6, 0")
            k.e(f"v_sub_u32 v{vQo}, v{vQe}, v14\nv_add_u32 v{vQe}, v{vQe}, v14")
        k.e(f"s_add_u32 s{sNbG}, s{sU}, 6\ns_lshl_b32 s{sNbG}, s{sNbG}, 6\ns_lshl_b32 s{sU}, s{sU}, 5\ns_add_u32 s{sU}, s{sU}, {LDS_B}\nv_add_u32 v{vGU}, s{sU}, v{vGU}")
        gen_main(k, var)
        stamp(k, 2)
        phase_b(k, var)
        phase_c(k)
        if Opt.hhook < 0:
            k.e("s_waitcnt vmcnt(0) lgkmcnt(0)\ns_barrier"); k.vm = []; k.lgkm = []
            wg_flag(k, F_H, vT)
        else:
            barrier(k, {"NKV"})
        if var == 0: k.e(f"s_branch {join}")
    k.label(join)
    k.lgkm, k.vm = [], []
    phase_c2(k)
    ld, done = lab(k, "ld"), lab(k, "done")
    k.e(f"s_cmp_ge_u32 s{sW}, 4\ns_cbranch_scc1 {ld}")
    g2_compute(k)
    k.e(f"s_branch {done}")
    k.label(ld)
    k.vm = []
    g2_loader(k)
    k.label(done)
    if Opt.timing:
        k.e("s_waitcnt vmcnt(0)")
        stamp(k, 11)
        k.e("s_memrealtime s[98:99]\ns_waitcnt lgkmcnt(0)")
        for n in range(1, 12): k.e(f"s_sub_u32 s{60+2*n}, s{60+2*n}, s60\nv_mov_b32 v{24+n}, s{60+2*n}")
        k.e(f"v_mov_b32 v24, 0\nv_mov_b32 v36, s98")
        k.e(f"s_lshl_b32 s3, s2, 3\ns_add_u32 s3, s3, s{sW}\ns_lshl_b32 s3, s3, 6\ns_add_u32 s3, s3, {hex(WS_T)}")
        for q in range(3): k.e(f"buffer_store_dwordx4 v[{24+4*q}:{27+4*q}], off, {sr(sWS,4)}, s3 offset:{16*q}")
        k.e(f"buffer_store_dword v36, off, {sr(sWS,4)}, s3 offset:48")
        if Opt.dbg:
            k.e(f"s_cmp_lg_u32 s2, 37\ns_cbranch_scc1 {end}\ns_cmp_lg_u32 s{sW}, 0\ns_cbranch_scc1 {end}")
            k.e(f"buffer_load_dword v37, off, {sr(sWS,4)}, s3 offset:60 sc1\ns_waitcnt vmcnt(0)\nv_sub_u32 v24, v36, v37\nv_mov_b32 v40, 0")
            for q in range(3): k.e(f"global_store_dwordx4 v40, v[{24+4*q}:{27+4*q}], {sr(pDbg,2)} offset:{16+16*q}")
    k.label(end)
    k.e("s_endpgm")
    return k.text(), descriptor(name, 256, 102, 256), f"; @launch grid=(256,1,1) block=(512,1,1) lds={LDS_BYTES}"
```

```python
import sys
from build import assemble
import fused
NAME = "parallel_sum__sliding_block__glu_gated_geglu__prompt_kernel"
def make(path, **kw):
    d = {k: getattr(fused.Opt, k) for k in kw}
    for k, v in kw.items(): setattr(fused.Opt, k, v)
    assemble([fused.gen_fused(NAME)], path)
    for k, v in d.items(): setattr(fused.Opt, k, v)
if __name__ == "__main__":
    make("f0.s")
    make("f0t.s", timing=True)
    make("f0d.s", timing=True, dbg=True)
    make("f0u.s", perm=1)
    make("f0ut.s", perm=1, timing=True)
    make("f0x.s", perm=2)
    make("f0xt.s", perm=2, timing=True)
```

```python
from asmlib import *
import math

class Opt:
    timing = False
    dummy = 0
    perm = 0
    dbg = False
    nB1 = 3
    rot = True
    hsc = " sc1"
    NS = 5
    pbf16 = False
    kvbar = 2
    kvpoll = 5
    hhook = 1

WS_H, WS_K, WS_V = 0, 0x1600000, 0x1A00000
WS_P = 0x2200000
WS_ST = 0x2B00000
WS_CS = 0x2B10000
WS_F = 0x2C00000
F_ST, F_CS, F_KV, F_H, F_O, F_P = 0, 0x1000, 0x2000, 0x3000, 0x4000, 0x8000
WS_T = 0x3000000
LDS_B, BSLOT = 65536, 40960
L_K, L_V, L_Q, L_CO, L_CT = 65536, 98304, 131072, 147456, 150016
LDS_BYTES = 163840
sX, sWa, sWb, sWc, sWS = 8, 12, 16, 20, 24
sKA, sKB, sKQ, sStep = 28, 29, 30, 31
sO = [None, 32, 33, 34]
sM = [35, 36, 37, 38, 39]
sMA, sT, sStage, sW, sMb, sH, sWr, sWc_ = 40, 41, 42, 43, 44, 45, 46, 47
pX, pQKV, pG, pU, pD, pOut, pDbg, pWS, pWo = 4, 6, 48, 50, 52, 54, 56, 58, 84
sNon, sCs, sFl1, sFl2, sNbG, sNbS, sOne, sU, sV, sRow = 86, 87, 88, 89, 90, 91, 92, 93, 94, 95
ACC0, BF0, AF0 = 96, 56, 24
vA0, vA1, vGU, vQe, vQo, vDA, vDB0, vDB1, vNon = 1, 2, 3, 4, 5, 6, 7, 8, 9
RAW, TMP = 10, 18
def acc(i, j): return ACC0 + (i * 5 + j) * 4
def bfr(j, kk): return BF0 + (j * 2 + kk) * 4
def afr(st, b, kk): return AF0 + ((st * 2 + b) * 2 + kk) * 4
NST = 16
uid = [0]
def lab(k, s):
    uid[0] += 1
    return f"L_{s}_{uid[0]}"

def csel(d, a, b): return f"s_mov_b32 s{d}, {b}\ns_cmov_b32 s{d}, {a}"
def stamp(k, n):
    if Opt.timing: k.e(f"s_memtime s[{60+2*n}:{61+2*n}]")

def a_read(k, stage, pair, b, kk):
    i = 2 * pair + b
    k.ds(f"ds_read_b128 {vr(afr(pair&1,b,kk),4)}, v{vA0 if kk == 0 else vA1} offset:{(stage&1)*32768 + i*2048}", ("A", stage, pair, b, kk))

def b_read(k, var, stage, j, kk, rd):
    sl = (stage & 1) * BSLOT
    ng = 4 if var == 0 else 2
    if j < ng: base, off = vGU, sl + (j & 1) * 14336 + (j >> 1) * 32 + (32 * kk + 8 * rd) * 224
    elif var == 0: base, off = vQe, sl + (32 * kk + 8 * rd) * 192
    else: base, off = (vQe if j % 2 == 0 else vQo), sl + (j - 2) * 32 + (32 * kk + 8 * rd) * 192
    assert off < 65536
    k.ds(f"ds_read_b64_tr_b16 {vr(bfr(j,kk)+2*rd,2)}, v{base} offset:{off}", ("B", stage, j, kk, rd))

def dma_a(stage, which):
    t0 = [0, 16, 8, 24][which]
    r = []
    if t0: r.append(("s", f"s_add_u32 s{sT}, s{sKA}, {t0*16384}", None))
    r.append(("s", f"s_add_u32 m0, s{sMA}, {(stage&1)*32768 + t0*1024}", None))
    r.append(("v", f"buffer_load_dwordx4 v{vDA}, {sr(sX,4)}, s{sT if t0 else sKA} offen lds", ("Alo" if which < 2 else "Ahi", stage)))
    return r

def dma_b(stage, d):
    r = []
    sl = (stage & 1) * BSLOT
    if d in (1, 2, 3): r.append(("s", f"s_add_u32 s{sT}, s{sKB}, s{sO[d]}", None))
    r.append(("s", f"s_add_u32 m0, s{sM[d]}, {sl}" if sl else f"s_mov_b32 m0, s{sM[d]}", None))
    so = {0: sKB, 4: sKQ}.get(d, sT)
    r.append(("v", f"buffer_load_dwordx4 v{vDB1 if d == 4 else vDB0}, {sr([sWa,sWa,sWb,sWb,sWc][d],4)}, s{so} offen lds", ("B", stage)))
    return r

def advance():
    return [("s", f"s_add_u32 s{sKA}, s{sKA}, 128", None),
            ("s", f"s_add_u32 s{sKB}, s{sKB}, s{sStep}", None),
            ("s", f"s_add_u32 s{sKQ}, s{sKQ}, {64*6144}", None)]

def emit_items(k, items):
    for kind, text, tag in items:
        if kind == "s": k.e(text)
        elif kind == "v": k.vmem(text, tag)
        elif kind == "f": text(k)

def pair_order():
    seq = []
    for j in range(5):
        bs = (0, 1) if j % 2 == 0 else (1, 0)
        seq += [(bs[0], j, 0), (bs[0], j, 1), (bs[1], j, 1), (bs[1], j, 0)]
    return seq

def reduce_list(op, v, t):
    L = []
    for mod in ("quad_perm:[1,0,3,2]", "quad_perm:[2,3,0,1]", "row_half_mirror", "row_mirror"):
        L.append(f"{op}_dpp v{v}, v{v}, v{v} {mod} row_mask:0xf bank_mask:0xf")
    for p in ("v_permlane16_swap_b32", "v_permlane32_swap_b32"):
        L += [f"v_mov_b32 v{t}, v{v}", f"{p} v{v}, v{t}", f"{op} v{v}, v{v}, v{t}"]
    return L

def stats_list():
    mu, sq, a, b = TMP, TMP + 1, TMP + 2, TMP + 3
    L = [f"v_mov_b32 v{mu}, 0"]
    for i in range(8): L.append(f"v_dot2_f32_bf16 v{mu}, v{RAW+i}, s{sOne}, v{mu}")
    L += reduce_list("v_add_f32", mu, a)
    L.append(f"v_mul_f32 v{mu}, {f32hex(1/1024)}, v{mu}")
    L.append(f"v_mov_b32 v{sq}, 0")
    for i in range(8):
        L += [f"v_lshlrev_b32 v{a}, 16, v{RAW+i}", f"v_and_b32 v{b}, 0xffff0000, v{RAW+i}",
              f"v_sub_f32 v{a}, v{a}, v{mu}", f"v_sub_f32 v{b}, v{b}, v{mu}",
              f"v_fmac_f32 v{sq}, v{a}, v{a}", f"v_fmac_f32 v{sq}, v{b}, v{b}"]
    L += reduce_list("v_add_f32", sq, a)
    L.append(f"v_mul_f32 v{sq}, {f32hex(1/1024)}, v{sq}")
    rnd = lambda r: [f"v_cvt_pk_bf16_f32 v{r}, v{r}, v{r}", f"v_lshlrev_b32 v{r}, 16, v{r}"]
    L += rnd(mu) + rnd(sq) + [f"v_add_f32 v{sq}, {f32hex(1e-5)}, v{sq}"] + rnd(sq) + [f"v_sqrt_f32 v{sq}, v{sq}"] + rnd(sq)
    return L

def colsum_block(k, stage, var, tail):
    cs, t = TMP, TMP + 5
    skip = lab(k, "cs")
    if tail: k.e(f"s_cmp_lg_u32 s{sWr}, {stage & 1}")
    elif stage < 2: k.e(f"s_cmp_lg_u32 s{sCs}, {stage}")
    else: k.e(f"s_cmp_lg_u32 s{sCs}, s{sStage}")
    k.e(f"s_cbranch_scc1 {skip}")
    for j in range(5): k.e(f"v_dot2_f32_bf16 v{cs+j}, v{bfr(j,0)}, s{sOne}, 0")
    for r in range(1, 8):
        for j in range(5): k.e(f"v_dot2_f32_bf16 v{cs+j}, v{bfr(j,0)+r}, s{sOne}, v{cs+j}")
    for p in ("v_permlane16_swap_b32", "v_permlane32_swap_b32"):
        for j in range(5): k.e(f"v_mov_b32 v{t}, v{cs+j}\n{p} v{cs+j}, v{t}\nv_add_f32 v{cs+j}, v{cs+j}, v{t}")
    k.e(f"v_and_b32 v{t}, 15, v0\nv_lshlrev_b32 v{t}, 2, v{t}")
    offs = [(sNbG, 0), (sNbG, 448), (sNbG, 64), (sNbG, 512), (sNbS, 0)] if var == 0 else [(sNbG, 0), (sNbG, 448), (None, 0), (None, 64), (None, 128)]
    if tail:
        k.e(f"v_add_u32 v{t}, {L_CO + (stage & 1) * 1280}, v{t}")
        cur = None
        for j, (s_, o) in enumerate(offs):
            if s_ != cur:
                if cur is not None: k.e(f"v_subrev_u32 v{t}, s{cur}, v{t}")
                if s_ is not None: k.e(f"v_add_u32 v{t}, s{s_}, v{t}")
                cur = s_
            k.e(f"ds_write_b32 v{t}, v{cs+j} offset:{o}")
    else:
        k.e(f"s_lshl_b32 s{sU}, s{sH}, 4\ns_add_u32 s{sU}, s{sU}, s{sCs}\ns_mul_i32 s{sU}, s{sU}, 1280\ns_add_u32 s{sU}, s{sU}, {hex(WS_CS)}")
        for j, (s_, o) in enumerate(offs):
            if s_ is not None: k.e(f"s_add_u32 s{sV}, s{sU}, s{s_}")
            k.e(f"buffer_store_dword v{cs+j}, v{t}, {sr(sWS,4)}, s{sV if s_ is not None else sU} offen offset:{o} sc1")
    k.label(skip)

def flag_store(k, vtmp, soff):
    k.e(f"v_mov_b32 v{vtmp}, s{sNon}")
    k.e(f"buffer_store_dword v{vtmp}, off, {sr(sWS,4)}, s{soff} sc1")

def flag_block(k, stage):
    for which, sfl in ((0, sFl1), (1, sFl2)):
        if which == 0 and stage != 2: continue
        skip = lab(k, "fl")
        k.e(f"s_cmp_lg_u32 s{sfl}, s{sStage}\ns_cbranch_scc1 {skip}")
        if which == 0: k.e(f"s_lshl_b32 s{sU}, s{sMb}, 7\ns_lshl_b32 s{sV}, s{sH}, 2\ns_add_u32 s{sU}, s{sU}, s{sV}\ns_add_u32 s{sU}, s{sU}, {hex(WS_F+F_ST)}")
        else: k.e(f"s_lshl_b32 s{sU}, s{sH}, 7\ns_lshl_b32 s{sV}, s{sMb}, 2\ns_add_u32 s{sU}, s{sU}, s{sV}\ns_add_u32 s{sU}, s{sU}, {hex(WS_F+F_CS)}")
        flag_store(k, TMP + 5, sU)
        k.label(skip)

def spread(n, first, last): return [first + ((last - first) * i) // max(n - 1, 1) for i in range(n)]

def gen_pair(k, var, stage, pair, carry, mfma=True, valu=None):
    fill = {g: [] for g in range(24)}
    for g, it in carry.items(): fill[g] += it
    nst, npair = (stage, pair + 1) if pair < 3 else (stage + 1, 0)
    if nst < NST:
        g0 = 3 if pair == 0 else 0
        for n, (b, kk) in enumerate([(0, 0), (0, 1), (1, 1), (1, 0)]):
            fill[g0 + n].append(("f", (lambda kk_, b_: (lambda kn: a_read(kn, nst, npair, b_, kk_)))(kk, b), None))
    if pair == 3 and stage + 1 < NST:
        for j in range(5):
            for n, (kk, rd) in enumerate([(1, 0), (1, 1), (0, 0), (0, 1)]):
                fill[4 * j + 3 + n].append(("f", (lambda j_, kk_, rd_: (lambda kn: b_read(kn, var, stage + 1, j_, kk_, rd_)))(j, kk, rd), None))
    def place(items, g):
        sc = [x for x in items if x[0] == "s"]
        for n, x in enumerate(sc): fill[g - len(sc) + n].append(x)
        fill[g] += [x for x in items if x[0] == "v"]
    n1 = Opt.nB1
    ylist = [("a", 0), ("a", 1)] + [("b", d) for d in range(n1)]
    xlist = [("b", d) for d in range(n1, 5)] + [("a", 2), ("a", 3)]
    def mk(x, tgt): return dma_a(tgt, x[1]) if x[0] == "a" else dma_b(tgt, x[1])
    if stage == -1:
        pass
    elif stage == 0 and pair == 0:
        lst = [("a", 0), ("a", 1)] + [("b", d) for d in range(5)]
        fill[0] += advance()
        for x, p in zip(lst, spread(len(lst), 2, 19)): place(mk(x, 1), p)
    elif stage == 0 and pair in (1, 2):
        lst = [("a", 2, 1), ("a", 3, 1), ("raw",), ("adv",)] + [(x[0], x[1], 2) for x in ylist]
        for x, p in zip(lst, spread(len(lst), 4, 38)):
            if (p < 20) != (pair == 1): continue
            g = p % 20
            if x[0] == "adv": fill[g] += advance()
            elif x[0] == "raw":
                fill[g - 1].append(("s", f"v_lshlrev_b32 v{RAW+4}, 4, v0", None))
                fill[g].append(("v", f"buffer_load_dwordx4 {vr(RAW,4)}, v{RAW+4}, {sr(sX,4)}, s{sRow} offen", ("RAW", 0)))
                fill[g].append(("v", f"buffer_load_dwordx4 {vr(RAW+4,4)}, v{RAW+4}, {sr(sX,4)}, s{sRow} offen offset:1024", ("RAW", 0)))
                fill[g + 1].append(("v", f"global_load_dword v{vNon}, v{vNon}, {sr(pDbg,2)} sc1", ("RAW", 0)))
            else: place(mk(x, x[2]), max(g, 2))
    elif pair in (1, 2):
        tgt = stage + 2
        if tgt < NST:
            if pair == 1:
                for n, it in enumerate(advance()): fill[n].append(it)
            for x, p in zip(ylist, spread(len(ylist), 7, 37)):
                if pair == 1 and p < 20: place(mk(x, tgt), max(p, 2))
                if pair == 2 and p >= 20: place(mk(x, tgt), max(p - 20, 6))
    else:
        tgt = stage + 2 if pair == 3 else stage + 1
        if tgt < NST:
            n3 = 1 if len(xlist) > 2 else 0
            if pair == 3:
                for x in xlist[:n3]: place(mk(x, tgt), 10)
            else:
                for x, p in zip(xlist[n3:], spread(len(xlist) - n3, 8, 18)): place(mk(x, tgt), p)
    if valu:
        for n, it in enumerate(valu): fill[(n * 20) // len(valu)].append(it)
    for g, (b, j, kk) in enumerate(pair_order()):
        if mfma:
            k.need_lgkm({("A", stage, pair, b, kk), ("B", stage, j, kk, 0), ("B", stage, j, kk, 1)})
            a = acc(2 * pair + b, j)
            k.e(f"v_mfma_f32_16x16x32_bf16 {vr(a,4)}, {vr(bfr(j,kk),4)}, {vr(afr(pair&1,b,kk),4)}, {vr(a,4)}")
        emit_items(k, fill[g])
    return {g - 20: fill[g] for g in range(20, 24) if fill[g]}

def barrier(k, tags):
    k.need_vm(tags, also_lgkm0=True)
    k.e("s_barrier")

def nonce_check(k):
    ok, lp = lab(k, "nok"), lab(k, "nlp")
    k.e(f"v_readfirstlane_b32 s{sNon}, v{vNon}\ns_mov_b32 s{sV}, 0")
    k.label(lp)
    k.e(f"s_cmp_lg_u32 s{sNon}, 0\ns_cbranch_scc1 {ok}")
    k.e(f"v_mov_b32 v{vNon}, 0\nglobal_load_dword v{vNon}, v{vNon}, {sr(pDbg,2)} sc1\ns_waitcnt vmcnt(0)\nv_readfirstlane_b32 s{sNon}, v{vNon}")
    k.e(f"s_add_u32 s{sV}, s{sV}, 1\ns_cmp_lt_u32 s{sV}, 0x100000\ns_cbranch_scc1 {lp}")
    k.label(ok)

def gen_stage(k, var, stage, carry):
    carry = gen_pair(k, var, stage, 0, carry)
    barrier(k, {("Ahi", stage), ("RAW", 0)} if stage == 1 else {("Ahi", stage)})
    if stage == 0:
        pass
    colsum_block(k, stage, var, stage >= 14)
    v1 = v2 = None
    if stage == 1:
        nonce_check(k)
        L = [("s", x, None) for x in stats_list()]
        L.append(("s", f"s_lshr_b32 s{sRow}, s{sRow}, 8\ns_add_u32 s{sRow}, s{sRow}, {hex(WS_ST)}", None))
        L.append(("v", f"buffer_store_dwordx2 {vr(TMP,2)}, off, {sr(sWS,4)}, s{sRow} sc1", ("ST", 0)))
        h = len(L) // 2
        v1, v2 = L[:h], L[h:]
    carry = gen_pair(k, var, stage, 1, carry, valu=v1)
    carry = gen_pair(k, var, stage, 2, carry, valu=v2)
    if stage + 1 < NST:
        barrier(k, {("Alo", stage + 1), ("B", stage + 1)})
    if stage >= 2 and stage % 2 == 0: flag_block(k, stage)
    if stage >= 1: k.e(f"s_add_u32 s{sStage}, s{sStage}, 1")
    carry = gen_pair(k, var, stage, 3, carry)
    return carry

def gen_main(k, var):
    barrier(k, {("Alo", 0), ("B", 0)})
    stamp(k, 1)
    carry = gen_pair(k, var, -1, 3, {}, mfma=False)
    carry = gen_stage(k, var, 0, carry)
    carry = gen_stage(k, var, 1, carry)
    def norm(base):
        f = lambda t: tuple((x - base) if n == 1 else x for n, x in enumerate(t))
        return [f(t) for t in k.lgkm], [f(t) for t in k.vm if t[0] != "ST"]
    k.vm = [t for t in k.vm if t[0] != "ST"]
    loop = lab(k, "loop")
    k.e(".p2align 6")
    k.label(loop)
    st0 = norm(2)
    c = gen_stage(k, var, 2, carry)
    c = gen_stage(k, var, 3, c)
    assert st0 == norm(4), (st0, norm(4))
    k.e(f"s_cmp_lg_u32 s{sStage}, 14\ns_cbranch_scc1 {loop}")
    sh = lambda t: tuple((x + 10) if n == 1 else x for n, x in enumerate(t))
    k.lgkm = [sh(t) for t in k.lgkm]; k.vm = [sh(t) for t in k.vm]
    c = gen_pair(Kern("tmp"), var, 13, 3, {}, mfma=False)
    c = gen_stage(k, var, 14, c)
    c = gen_stage(k, var, 15, c)
    assert not c

def poll(k, vaddr, vdst, soff, name):
    lp, ok = lab(k, name), lab(k, name + "ok")
    k.e(f"s_mov_b32 s{sV}, 0")
    k.label(lp)
    k.e(f"buffer_load_dword v{vdst}, v{vaddr}, {sr(sWS,4)}, s{soff} offen sc1\ns_waitcnt vmcnt(0)")
    k.e(f"v_cmp_ne_u32 vcc, s{sNon}, v{vdst}\ns_nop 1\ns_cbranch_vccz {ok}")
    k.e(f"s_sleep 1\ns_add_u32 s{sV}, s{sV}, 1\ns_cmp_lt_u32 s{sV}, 0x80000\ns_cbranch_scc1 {lp}")
    k.label(ok)
    k.vm = []

STA, CSR, KC = 24, 40, 60
vL8, vS8, OUT, GT = 66, 67, 68, 80

def g2_b_dma(step_slot, tag):
    it = []
    for i in range(4):
        it.append((f"s_add_u32 m0, s{g2MB}, {step_slot*32768}" if i == 0 else "s_add_u32 m0, m0, 4096", None))
        it.append((f"buffer_load_dwordx4 v{g2DB+i}, {sr(g2Bs,4)}, s{g2KB} offen lds", tag))
    return it

def ln_gather(k, var):
    t = OUT
    k.e(f"v_cmp_gt_u32 vcc, 32, v0\nv_lshlrev_b32 v{t}, 2, v0\ns_lshl_b32 s{sU}, s{sMb}, 7\nv_add_u32 v{t+1}, s{sU}, v{t}")
    k.e(f"s_lshl_b32 s{sU}, s{sH}, 7\ns_add_u32 s{sU}, s{sU}, {F_CS - F_ST - 128}\nv_min_u32 v{t}, {38*4}, v{t}\nv_add_u32 v{t}, s{sU}, v{t}")
    k.e(f"v_cndmask_b32 v{t}, v{t}, v{t+1}, vcc\ns_mov_b32 s{sU}, {hex(WS_F+F_ST)}")
    poll(k, t, t + 1, sU, "pln")
    k.e(f"v_and_b32 v{t}, 15, v0\nv_lshlrev_b32 v{t}, 3, v{t}")
    k.e(f"s_lshl_b32 s{sU}, s{sMb}, 11\ns_lshl_b32 s{sV}, s{sWr}, 10\ns_add_u32 s{sU}, s{sU}, s{sV}\ns_add_u32 s{sU}, s{sU}, {hex(WS_ST)}")
    for i in range(8): k.vmem(f"buffer_load_dwordx2 {vr(STA+2*i,2)}, v{t}, {sr(sWS,4)}, s{sU} offen offset:{i*128} sc1", "STA")
    skip, skip2 = lab(k, "cg"), lab(k, "cg2")
    k.e(f"s_lshl_b32 s{sU}, s{sW}, 8\nv_lshlrev_b32 v{t}, 2, v0\nv_add_u32 v{t}, s{sU}, v{t}")
    k.e(f"s_cmp_ge_u32 s{sW}, 5\ns_cbranch_scc1 {skip}")
    k.e(f"s_mul_i32 s{sU}, s{sH}, {16*1280}\ns_add_u32 s{sU}, s{sU}, {hex(WS_CS)}")
    for n in range(14):
        if n and n % 3 == 0: k.e(f"s_add_u32 s{sU}, s{sU}, {3*1280}")
        k.e(f"buffer_load_dword v{CSR+n}, v{t}, {sr(sWS,4)}, s{sU} offen offset:{(n%3)*1280} sc1")
    k.label(skip)
    k.e("s_waitcnt lgkmcnt(0)\ns_barrier"); k.lgkm = []
    stamp(k, 3)
    k.e(f"s_cmp_ge_u32 s{sW}, 5\ns_cbranch_scc1 {skip2}")
    k.e(f"v_add_u32 v{t}, {L_CO}, v{t}\nds_read_b32 v{CSR+14}, v{t}\nds_read_b32 v{CSR+15}, v{t} offset:1280\ns_waitcnt vmcnt(0) lgkmcnt(0)")
    for n in range(8): k.e(f"v_add_f32 v{CSR+n}, v{CSR+n}, v{CSR+8+n}")
    for n in range(4): k.e(f"v_add_f32 v{CSR+n}, v{CSR+n}, v{CSR+4+n}")
    k.e(f"v_add_f32 v{CSR}, v{CSR}, v{CSR+2}\nv_add_f32 v{CSR+1}, v{CSR+1}, v{CSR+3}\nv_add_f32 v{CSR}, v{CSR}, v{CSR+1}")
    k.e(f"ds_write_b32 v{t}, v{CSR} offset:{L_CT - L_CO}\ns_waitcnt lgkmcnt(0)")
    k.label(skip2)
    skip3 = lab(k, "w2")
    k.e(f"s_cmp_lt_u32 s{sW}, 4\ns_cbranch_scc1 {skip3}")
    g2_loader_setup(k)
    for st in range(2):
        for text, tag in g2_b_dma(st, None): k.e(text)
        k.e(f"s_add_u32 s{g2KB}, s{g2KB}, {64*2048}")
    k.label(skip3)
    k.e("s_barrier")
    k.e(f"v_lshrrev_b32 v{t}, 4, v0\nv_lshlrev_b32 v{t}, 4, v{t}\nv_add_u32 v{t}, {L_CT}, v{t}")
    k.e(f"v_add_u32 v{t+1}, s{sNbG}, v{t}")
    if var == 0:
        k.e(f"v_add_u32 v{t}, s{sNbS}, v{t}")
        rd = [(t + 1, 0), (t + 1, 448), (t + 1, 64), (t + 1, 512), (t, 0)]
    else:
        rd = [(t + 1, 0), (t + 1, 448), (t, 0), (t, 64), (t, 128)]
    for j, (a, o) in enumerate(rd): k.ds(f"ds_read_b128 {vr(CSR+4*j,4)}, v{a} offset:{o}", "CS")
    k.need_vm({"STA"})
    for i in range(8): k.e(f"v_sub_f32 v{STA+2*i}, 0, v{STA+2*i}")
    k.need_lgkm({"CS"})

def center(k, i, j):
    a = acc(i, j)
    for hf in (0, 2):
        k.e(f"v_pk_fma_f32 {vr(a+hf,2)}, {vr(CSR+4*j+hf,2)}, {vr(STA+2*i,2)}, {vr(a+hf,2)} op_sel_hi:[1,0,1]")

def geglu(k, i, pairs, outs):
    c0 = -2.0 * math.log2(math.e) * math.sqrt(2.0 / math.pi)
    R, C0, C1, S2 = KC, KC + 2, KC + 4, KC + 1
    k.e(f"v_rcp_f32 v{R}, v{STA+2*i+1}")
    k.e(f"v_mul_f32 v{S2+0}, v{STA+2*i+1}, v{STA+2*i+1}")
    for jg, ju in pairs: center(k, i, jg); center(k, i, ju)
    k.e(f"v_mul_f32 v{C0}, {f32hex(c0)}, v{R}\nv_mul_f32 v{C1}, v{R}, v{R}\nv_mul_f32 v{C1}, {f32hex(0.044715)}, v{C1}\nv_mul_f32 v{C1}, v{C1}, v{C0}")
    P = []
    for x, (jg, ju) in enumerate(pairs):
        for hf in range(2): P.append((acc(i, jg) + 2 * hf, acc(i, ju) + 2 * hf, GT + ((i & 1) * 4 + x * 2 + hf) * 2, outs[x] + hf))
    for g, u, t, o in P: k.e(f"v_pk_mul_f32 {vr(t,2)}, {vr(g,2)}, {vr(g,2)}")
    for g, u, t, o in P: k.e(f"v_pk_fma_f32 {vr(t,2)}, {vr(t,2)}, {vr(C1,2)}, {vr(C0,2)} op_sel_hi:[1,0,0]")
    for g, u, t, o in P: k.e(f"v_pk_mul_f32 {vr(t,2)}, {vr(t,2)}, {vr(g,2)}")
    for g, u, t, o in P:
        k.e(f"v_exp_f32 v{t}, v{t}\nv_exp_f32 v{t+1}, v{t+1}\nv_pk_mul_f32 {vr(g,2)}, {vr(g,2)}, {vr(u,2)}")
    for g, u, t, o in P: k.e(f"v_pk_fma_f32 {vr(t,2)}, {vr(t,2)}, {vr(R,2)}, {vr(R,2)} op_sel:[0,1,1] op_sel_hi:[1,1,1]")
    for g, u, t, o in P: k.e(f"v_rcp_f32 v{t}, v{t}\nv_rcp_f32 v{t+1}, v{t+1}")
    for g, u, t, o in P: k.e(f"v_pk_mul_f32 {vr(g,2)}, {vr(g,2)}, {vr(t,2)}")
    for g, u, t, o in P: k.e(f"v_cvt_pk_bf16_f32 v{o}, v{g}, v{g+1}")

def single(k, i, j, o):
    a = acc(i, j)
    center(k, i, j)
    for hf in (0, 2): k.e(f"v_pk_mul_f32 {vr(a+hf,2)}, {vr(a+hf,2)}, {vr(KC,2)} op_sel_hi:[1,0]")
    k.e(f"v_cvt_pk_bf16_f32 v{o}, v{a}, v{a+1}\nv_cvt_pk_bf16_f32 v{o+1}, v{a+2}, v{a+3}")

sHo, sSo, sSs, sZ = 28, 29, 30, 12
def phase_b(k, var):
    ln_gather(k, var)
    stamp(k, 4)
    vLd = 14
    k.e(f"v_lshlrev_b32 v{vL8}, 3, v0")
    k.e(f"s_lshl_b32 s31, s{sMb}, 4\ns_lshl_b32 s32, s{sWr}, 3\ns_add_u32 s31, s31, s32")
    k.e(f"s_lshr_b32 s33, s{sH}, 1\ns_mul_i32 s33, s33, 7\ns_and_b32 s34, s{sH}, 1")
    if var == 0: k.e(f"s_lshl_b32 s35, s34, 2\ns_add_u32 s33, s33, s35\ns_add_u32 s33, s33, s{sWc_}")
    else: k.e("s_add_u32 s33, s33, 3")
    k.e(f"s_mul_i32 s{sHo}, s31, 144\ns_add_u32 s{sHo}, s{sHo}, s33\ns_lshl_b32 s{sHo}, s{sHo}, 10")
    if var == 1: k.e(f"s_lshl_b32 s34, s34, 9\ns_add_u32 s{sHo}, s{sHo}, s34")
    k.e(f"s_mov_b32 s{sZ}, s{pWS}\ns_mov_b32 s{sZ+1}, s{pWS+1}\ns_mov_b32 s{sZ+3}, 0x20000\ns_cmp_eq_u32 s{sMb}, 7\ns_cselect_b32 s{sZ+2}, 0, s{sWS+2}")
    k.e(f"s_lshl_b32 s35, s{sH}, 7\ns_add_u32 s35, s35, s31\ns_lshl_b32 s35, s35, 10")
    if var == 0:
        k.e(f"s_add_u32 s36, s35, {hex(WS_K + 512)}")
        k.e(f"s_lshl_b32 s37, s{sH}, 1\ns_add_u32 s37, s37, s{sWc_}\ns_sub_u32 s37, s37, 1\ns_lshl_b32 s37, s37, 16\ns_lshl_b32 s38, s31, 9\ns_add_u32 s37, s37, s38\ns_add_u32 s37, s37, {hex(WS_V)}")
        k.e(f"s_lshl_b32 s38, s32, 10\ns_add_u32 s38, s38, {L_K + 16*1024 + 512}")
        k.e(f"s_lshl_b32 s39, s{sWc_}, 14\ns_lshl_b32 s40, s32, 9\ns_add_u32 s39, s39, s40\ns_add_u32 s39, s39, {L_V - 16384 + 8192}")
        k.e(f"v_and_b32 v{vS8}, 15, v0\nv_lshlrev_b32 v{vS8}, 5, v{vS8}\nv_lshrrev_b32 v{vLd}, 4, v0\nv_lshl_add_u32 v{vS8}, v{vLd}, 3, v{vS8}")
        k.e(f"s_cmp_eq_u32 s{sWc_}, 0\ns_cselect_b32 s{sSo}, s36, s37\ns_cselect_b32 s38, s38, s39")
        k.e(csel(sSs, 1024, 512))
        k.e(f"s_cselect_b64 vcc, -1, 0\nv_cndmask_b32 v{vS8}, v{vS8}, v{vL8}, vcc\nv_add_u32 v{vLd}, s38, v{vS8}")
    else:
        k.e(f"s_add_u32 s{sSo}, s35, {hex(WS_K)}")
        k.e(f"s_lshl_b32 s38, s32, 10\ns_add_u32 s39, s38, {L_K + 16*1024}\nv_add_u32 v{vLd}, s39, v{vL8}")
        k.e(f"s_add_u32 s39, s38, {L_Q}\nv_lshlrev_b32 v{vLd+1}, 4, v0\nv_add_u32 v{vLd+1}, s39, v{vLd+1}")
    for i in range(8):
        o = OUT + (i & 1) * 6
        k.e(f"v_rcp_f32 v{KC}, v{STA+2*i+1}")
        if var == 0:
            single(k, i, 4, o)
            k.ds(f"ds_write_b64 v{vLd}, {vr(o,2)}", "W")
            k.vmem(f"buffer_store_dwordx2 {vr(o,2)}, v{vS8}, {sr(sZ,4)}, s{sSo} offen sc1", "KV")
            k.e(f"s_add_u32 s{sSo}, s{sSo}, s{sSs}\nv_add_u32 v{vLd}, s{sSs}, v{vLd}")
        else:
            single(k, i, 4, o + 4)
            k.ds(f"ds_write_b64 v{vLd}, {vr(o+4,2)} offset:{i*1024}", "W")
            k.vmem(f"buffer_store_dwordx2 {vr(o+4,2)}, v{vL8}, {sr(sZ,4)}, s{sSo} offen sc1", "KV")
            k.e(f"s_add_u32 s{sSo}, s{sSo}, 1024")
            single(k, i, 2, o); single(k, i, 3, o + 2)
            k.ds(f"ds_write_b128 v{vLd+1}, {vr(o,4)} offset:{i*1024}", "W")
    for i in range(8):
        o = OUT + (i & 1) * 6
        if var == 0:
            geglu(k, i, [(0, 1), (2, 3)], [o, o + 2])
            k.vmem(f"buffer_store_dwordx2 {vr(o,2)}, v{vL8}, {sr(sWS,4)}, s{sHo} offen sc1", "H")
            k.vmem(f"buffer_store_dwordx2 {vr(o+2,2)}, v{vL8}, {sr(sWS,4)}, s{sHo} offen offset:512 sc1", "H")
        else:
            geglu(k, i, [(0, 1)], [o])
            k.vmem(f"buffer_store_dwordx2 {vr(o,2)}, v{vL8}, {sr(sWS,4)}, s{sHo} offen sc1", "H")
        k.e(f"s_add_u32 s{sHo}, s{sHo}, {144*1024}")
        if i == Opt.kvbar:
            barrier(k, {"KV"})
            sk = lab(k, "kvf")
            k.e(f"s_cmp_lg_u32 s{sW}, 0\ns_cbranch_scc1 {sk}")
            k.e(f"s_lshl_b32 s{sU}, s{sMb}, 7\ns_lshl_b32 s{sV}, s{sH}, 2\ns_add_u32 s{sU}, s{sU}, s{sV}\ns_add_u32 s{sU}, s{sU}, {hex(WS_F+F_KV)}")
            flag_store(k, vLd, sU)
            k.label(sk)
        if i == Opt.kvpoll: fetch_kv(k)
    stamp(k, 5)

def fetch_kv(k):
    t = 16
    sk = lab(k, "nokv")
    k.e(f"s_cmp_eq_u32 s{sMb}, 0\ns_cselect_b32 s{sZ+2}, 0, s{sWS+2}\ns_cbranch_scc1 {sk}")
    k.e(f"s_lshl_b32 s{sU}, s{sMb}, 7\ns_lshl_b32 s{sV}, s{sH}, 2\ns_add_u32 s{sU}, s{sU}, s{sV}\ns_add_u32 s{sU}, s{sU}, {hex(WS_F+F_KV-128)}\nv_mov_b32 v{t}, 0")
    save = list(k.vm)
    poll(k, t, t + 1, sU, "pkv")
    k.vm = save
    k.label(sk)
    k.e(f"v_lshlrev_b32 v{t}, 4, v0")
    k.e(f"s_lshl_b32 s31, s{sH}, 7\ns_lshl_b32 s32, s{sMb}, 4\ns_add_u32 s31, s31, s32\ns_add_u32 s31, s31, s{sW}\ns_lshl_b32 s31, s31, 10\ns_add_u32 s31, s31, {hex(WS_K - 16*1024)}")
    k.e(f"s_lshl_b32 s32, s{sH}, 17\ns_lshl_b32 s33, s{sMb}, 13\ns_add_u32 s32, s32, s33\ns_lshl_b32 s33, s{sW}, 10\ns_add_u32 s32, s32, s33\ns_add_u32 s32, s32, {hex(WS_V - 8192)}")
    for n, (so, add, m0) in enumerate([(31, 0, L_K), (31, 8192, L_K + 8192), (32, 0, L_V), (32, 65536, L_V + 16384)]):
        k.e(f"s_add_u32 s34, s{so}, {add}\ns_add_u32 m0, s33, {m0}")
        k.vmem(f"buffer_load_dwordx4 v{t}, {sr(sZ,4)}, s34 offen{Opt.hsc} lds", "NKV")

KF, VF0, VF1, S0, P8, QC, O0 = 16, 84, 120, 156, 224, 228, 244
vKa, vVa, vM, vT, vC, vNeg, vSum, vQa, vO8 = 2, 3, 5, 6, 232, 234, 236, 4, 7
sMk, sN, sOo, sAL = 96, 28, 29, 30
MK = [96, 98, 100, 32]
def S(t): return S0 + 4 * t
def k_read(k, t):
    for hf in range(2): k.ds(f"ds_read_b64 {vr(KF+4*t+2*hf,2)}, v{vKa} offset:{t*1024 + hf*512}", ("K", t))
def v_read(k, db, t):
    k.ds(f"ds_read_b64_tr_b16 {vr((VF0,VF1)[db]+2*t,2)}, v{vVa} offset:{db*16384 + t*512}", ("V", db, t))

def attn_block(k, blk, hook):
    k.need_lgkm({"Q"})
    vq = [(db, t) for t in range(17) for db in range(2)]
    for t in range(17):
        k.need_lgkm({("K", t)})
        k.e(f"v_mfma_f32_16x16x32_bf16 {vr(S(t),4)}, {vr(KF+4*t,4)}, {vr(QC,4)}, 0")
        v_read(k, *vq[2*t]); v_read(k, *vq[2*t+1])
    k.e(f"v_add_u32 v{vKa}, 1024, v{vKa}\nv_add_u32 v{vVa}, 512, v{vVa}")
    hook(k, 0)
    nm, md = lab(k, "nomask"), lab(k, "maskd")
    k.e(f"s_cmp_eq_u32 s{sN}, 0\ns_cbranch_scc1 {nm}\ns_nop 7")
    for t in range(16):
        for r in range(4): k.e(f"v_mov_b32 v{S(t)+r}, {f32hex(-1e30)}")
        if t < 15: k.e(f"s_cmp_eq_u32 s{sN}, {t+1}\ns_cbranch_scc1 {md}")
    k.label(md)
    k.e(f"s_sub_u32 s{sN}, s{sN}, 1")
    k.label(nm)
    vals = [S(t) + r for t in range(1, 16) for r in range(4)]
    k.e(f"v_max3_f32 v{vM}, v{vals[0]}, v{vals[1]}, v{vals[2]}\nv_max3_f32 v{vT}, v{vals[3]}, v{vals[4]}, v{vals[5]}")
    rest = vals[6:]
    for n in range(0, len(rest), 2):
        d = vM if (n // 2) % 2 == 0 else vT
        k.e(f"v_max3_f32 v{d}, v{d}, v{rest[n]}, v{rest[n+1]}")
    for r in range(4): k.e(f"v_cndmask_b32 v{S(0)+r}, v{S(0)+r}, v{S(16)+r}, {sr(MK[r],2)}")
    k.e(f"v_max3_f32 v{vM}, v{vM}, v{S(0)}, v{S(0)+1}\nv_max3_f32 v{vT}, v{vT}, v{S(0)+2}, v{S(0)+3}\nv_max_f32 v{vM}, v{vM}, v{vT}")
    for p in ("v_permlane16_swap_b32", "v_permlane32_swap_b32"):
        k.e(f"v_mov_b32 v{vT}, v{vM}\n{p} v{vM}, v{vT}\nv_max_f32 v{vM}, v{vM}, v{vT}")
    k.e(f"v_mul_f32 v{vNeg}, v{vC}, v{vM}\nv_sub_f32 v{vNeg}, 0, v{vNeg}")
    hook(k, 1)
    kq = list(range(17)) if blk == 0 else []
    if blk == 0: k.ds(f"ds_read_b128 {vr(QC,4)}, v{vQa} offset:1024", "Q")
    first = True
    for u in range(8):
        for t in (2*u, 2*u+1):
            s = S(t)
            for hf in (0, 2):
                k.e(f"v_pk_fma_f32 {vr(s+hf,2)}, {vr(s+hf,2)}, {vr(vC,2)}, {vr(vNeg,2)} op_sel_hi:[1,0,0]")
            for r in range(4): k.e(f"v_exp_f32 v{s+r}, v{s+r}")
            if kq: k_read(k, kq.pop(0))
            for hf in (0, 2):
                if first:
                    k.e(f"v_pk_add_f32 {vr(vSum,2)}, {vr(s,2)}, {vr(s+2,2)}"); first = False; break
                k.e(f"v_pk_add_f32 {vr(vSum,2)}, {vr(vSum,2)}, {vr(s+hf,2)}")
            if t == 0:
                e = S(16)
                for r in range(4): k.e(f"v_cndmask_b32 v{e+r}, 0, v{s+r}, {sr(MK[r],2)}")
                for r in range(4): k.e(f"v_cndmask_b32 v{s+r}, v{s+r}, 0, {sr(MK[r],2)}")
                k.e(f"v_cvt_pk_bf16_f32 v{P8}, v{e}, v{e+1}\nv_cvt_pk_bf16_f32 v{P8+1}, v{e+2}, v{e+3}")
        p = S(2*u)
        for x in range(4): k.e(f"v_cvt_pk_bf16_f32 v{p+x}, v{p+2*x}, v{p+2*x+1}")
        for db in range(2):
            if u == 0:
                k.need_lgkm({("V", db, 16)})
                k.e(f"v_mfma_f32_16x16x32_bf16 {vr(O0+4*db,4)}, {vr((VF0,VF1)[db]+32,4)}, {vr(P8,4)}, 0")
            else:
                k.e(f"v_mfma_f32_16x16x32_bf16 {vr(O0+4*db,4)}, {vr((VF0,VF1)[db]+4*(u-1),4)}, {vr(S(2*u-2),4)}, {vr(O0+4*db,4)}")
        if u in (2, 5): hook(k, 2 + (u == 5))
    while kq: k_read(k, kq.pop(0))
    k.e(f"v_add_f32 v{vSum}, v{vSum}, v{vSum+1}")
    for db in range(2):
        k.e(f"v_mfma_f32_16x16x32_bf16 {vr(O0+4*db,4)}, {vr((VF0,VF1)[db]+28,4)}, {vr(S(14),4)}, {vr(O0+4*db,4)}")
    for p in ("v_permlane16_swap_b32", "v_permlane32_swap_b32"):
        k.e(f"v_mov_b32 v{vT}, v{vSum}\n{p} v{vSum}, v{vT}\nv_add_f32 v{vSum}, v{vSum}, v{vT}")
    k.e(f"v_rcp_f32 v{vSum}, v{vSum}")
    for x in range(4): k.e(f"v_pk_mul_f32 {vr(O0+2*x,2)}, {vr(O0+2*x,2)}, {vr(vSum,2)} op_sel_hi:[1,0]")
    for x in range(4): k.e(f"v_cvt_pk_bf16_f32 v{S(16)+x}, v{O0+2*x}, v{O0+2*x+1}")
    for hf in range(2):
        k.vmem(f"buffer_store_dwordx2 {vr(S(16)+2*hf,2)}, v{vO8}, {sr(sWS,4)}, s{sOo} offen offset:{hf*512} sc1", "O")
    k.e(f"s_add_u32 s{sOo}, s{sOo}, {144*1024}")

def wg_flag(k, base, vt):
    sk = lab(k, "wf")
    k.e(f"s_cmp_lg_u32 s{sW}, 0\ns_cbranch_scc1 {sk}")
    k.e(f"s_lshl_b32 s{sU}, s{sMb}, 7\ns_lshl_b32 s{sV}, s{sH}, 2\ns_add_u32 s{sU}, s{sU}, s{sV}\ns_add_u32 s{sU}, s{sU}, {hex(WS_F+base)}")
    flag_store(k, vt, sU)
    k.label(sk)

def phase_c(k):
    k.e(f"v_lshlrev_b32 v{vO8}, 3, v0")
    k.e(f"s_lshl_b32 s31, s{sW}, 1\ns_lshl_b32 s{sOo}, s{sMb}, 4\ns_add_u32 s{sOo}, s{sOo}, s31\ns_mul_i32 s{sOo}, s{sOo}, 144")
    k.e(f"s_add_u32 s{sOo}, s{sOo}, s{sH}\ns_add_u32 s{sOo}, s{sOo}, 112\ns_lshl_b32 s{sOo}, s{sOo}, 10")
    k.e(f"s_sub_u32 s{sN}, 16, s31\ns_cmp_eq_u32 s{sMb}, 0\ns_cselect_b32 s{sN}, s{sN}, 0")
    k.e(f"s_lshl_b32 s31, s{sW}, 11\ns_add_u32 s34, s31, {L_K}\nv_add_u32 v{vKa}, s34, v{vO8}")
    k.e(f"s_add_u32 s34, s31, {L_Q}\nv_lshlrev_b32 v{vQa}, 4, v0\nv_add_u32 v{vQa}, s34, v{vQa}")
    k.e(f"s_lshl_b32 s31, s{sW}, 10\ns_add_u32 s34, s31, {L_V}\nv_add_u32 v{vVa}, s34, v{vO8}")
    k.e(f"v_and_b32 v{vM}, 15, v0\nv_lshrrev_b32 v{vT}, 4, v0\nv_lshlrev_b32 v{vT}, 2, v{vT}")
    for r in range(4):
        k.e(f"v_cmp_le_u32 {sr(MK[r],2)}, v{vT}, v{vM}")
        if r < 3: k.e(f"v_add_u32 v{vT}, 1, v{vT}")
    k.e(f"v_mov_b32 v{vC}, {f32hex(math.log2(math.e) / math.sqrt(32.0))}")
    for r in (VF0 + 34, VF0 + 35, VF1 + 34, VF1 + 35, P8 + 2, P8 + 3): k.e(f"v_mov_b32 v{r}, 0")

def phase_c2(k):
    k.ds(f"ds_read_b128 {vr(QC,4)}, v{vQa}", "Q")
    for t in range(17): k_read(k, t)
    def hook0(k, n):
        if n == Opt.hhook:
            k.e("s_waitcnt vmcnt(0)\ns_barrier"); k.vm = []
            wg_flag(k, F_H, vT)
    attn_block(k, 0, hook0)
    attn_block(k, 1, lambda k, n: None)
    stamp(k, 6)

g2Hs, g2Bs, g2Xs, g2Os = 24, 16, 8, 12
g2KA, g2KB, g2MA, g2MB, g2Mt, g2Nt, g2Half = 87, 88, 89, 92, 20, 21, 22
g2Wr, g2Rd, g2D, g2Loop, g2T2, g2w = 28, 29, 30, 31, 32, 33
g2DB = 8
g2L16, g2A, g2X, g2B = 12, 1, 3, 4
FR0, SETSZ, ACC2, XR = 16, 64, 144, 208
SLOT = 32768
def afr2(p, i, kk): return FR0 + p * SETSZ + (i * 2 + kk) * 4
def bfr2(p, b, kk): return FR0 + p * SETSZ + 32 + (b * 2 + kk) * 4
def acc2(i, b): return ACC2 + (i * 4 + b) * 4

def g2_ids(k):
    k.e(f"s_and_b32 s{sU}, s2, 7\ns_lshr_b32 s{sV}, s2, 3\ns_and_b32 s{g2Half}, s{sU}, 1")
    k.e(f"s_lshr_b32 s{g2Mt}, s{sU}, 1\ns_lshl_b32 s{g2Mt}, s{g2Mt}, 2\ns_and_b32 s{sU}, s{sV}, 3\ns_add_u32 s{g2Mt}, s{g2Mt}, s{sU}\ns_lshr_b32 s{g2Nt}, s{sV}, 2")

def g2_loader_setup(k):
    g2_ids(k)
    k.e(f"s_and_b32 s{sU}, s{sW}, 3")
    k.e(f"s_lshl_b32 s{g2KA}, s{g2Mt}, 3\ns_lshl_b32 s{sV}, s{sU}, 1\ns_add_u32 s{g2KA}, s{g2KA}, s{sV}\ns_mul_i32 s{g2KA}, s{g2KA}, 144")
    k.e(f"s_mul_i32 s{sV}, s{g2Half}, 72\ns_add_u32 s{g2KA}, s{g2KA}, s{sV}\ns_lshl_b32 s{g2KA}, s{g2KA}, 10")
    k.e(f"s_mul_i32 s{g2KB}, s{g2Half}, {36*64*2048}")
    k.e(f"s_lshl_b32 s{g2MA}, s{sU}, 12\ns_lshl_b32 s{g2MB}, s{sU}, 10\ns_add_u32 s{g2MB}, s{g2MB}, 16384")
    k.e(f"v_lshrrev_b32 v{g2DB}, 4, v0\nv_and_b32 v{g2DB+1}, 15, v0\ns_and_b32 s{sV}, s{sU}, 1\ns_lshl_b32 s{sV}, s{sV}, 2")
    k.e(f"v_add_u32 v{g2DB+2}, s{sV}, v{g2DB}\nv_lshlrev_b32 v{g2DB+2}, 1, v{g2DB+2}\nv_xor_b32 v{g2DB+1}, v{g2DB+1}, v{g2DB+2}")
    k.e(f"v_lshlrev_b32 v{g2DB+1}, 4, v{g2DB+1}\nv_lshl_add_u32 v{g2DB}, v{g2DB}, 11, v{g2DB+1}")
    k.e(f"s_lshl_b32 s{sU}, s{sU}, 13\ns_lshl_b32 s{sV}, s{g2Nt}, 8\ns_add_u32 s{sU}, s{sU}, s{sV}\nv_add_u32 v{g2DB}, s{sU}, v{g2DB}")
    for i in range(1, 4): k.e(f"v_add_u32 v{g2DB+i}, {i*16*2048}, v{g2DB}")
    k.e(f"v_lshlrev_b32 v{g2L16}, 4, v0")
    srd(k, g2Bs, pD, 3584 * 2048)

def g2_a_dma(base_sgpr_or_imm, tag):
    h = Opt.hsc
    return [(f"s_add_u32 m0, s{g2MA}, {base_sgpr_or_imm}", None),
            (f"buffer_load_dwordx4 v{g2L16}, {sr(g2Hs,4)}, s{g2KA} offen{h} lds", tag),
            (f"buffer_load_dwordx4 v{g2L16}, {sr(g2Hs,4)}, s{g2KA} offen offset:1024{h} lds", tag),
            (f"s_add_u32 s{sT}, s{g2KA}, {144*1024}\ns_add_u32 m0, m0, 2048", None),
            (f"buffer_load_dwordx4 v{g2L16}, {sr(g2Hs,4)}, s{sT} offen{h} lds", tag),
            (f"buffer_load_dwordx4 v{g2L16}, {sr(g2Hs,4)}, s{sT} offen offset:1024{h} lds", tag),
            (f"s_add_u32 s{g2KA}, s{g2KA}, 2048", None)]

def emit2(k, items):
    for text, tag in items:
        if tag is None: k.e(text)
        elif text.startswith("ds_"): k.ds(text, tag)
        else: k.vmem(text, tag)

def g2_step_dma(k, tag):
    emit2(k, g2_a_dma(f"s{g2Wr}", tag))
    for i in range(4):
        k.e(f"s_add_u32 m0, s{g2MB}, s{g2Wr}" if i == 0 else "s_add_u32 m0, m0, 4096")
        k.vmem(f"buffer_load_dwordx4 v{g2DB+i}, {sr(g2Bs,4)}, s{g2KB} offen lds", tag)
    k.e(f"s_add_u32 s{g2KB}, s{g2KB}, {64*2048}\ns_add_u32 s{g2Wr}, s{g2Wr}, {SLOT}\ns_cmp_eq_u32 s{g2Wr}, {Opt.NS*SLOT}\ns_cselect_b32 s{g2Wr}, 0, s{g2Wr}")

def g2_loader(k):
    NS, N = Opt.NS, 36
    vF, vFd = 13, 14
    k.e(f"v_and_b32 v{vF}, 31, v0\nv_lshlrev_b32 v{vF}, 2, v{vF}\ns_lshr_b32 s{sU}, s{g2Mt}, 1\ns_lshl_b32 s{sU}, s{sU}, 7\nv_add_u32 v{vF}, s{sU}, v{vF}")
    k.e(f"s_mov_b32 s{sU}, {hex(WS_F+F_H)}")
    poll(k, vF, vFd, sU, "ph")
    stamp(k, 7)
    for st in range(2): emit2(k, g2_a_dma(st * SLOT, ("D", st)))
    k.e("s_barrier")
    k.e(f"s_mov_b32 s{g2Wr}, {2*SLOT}")
    for st in range(2, NS): g2_step_dma(k, ("D", st))
    k.need_vm({("D", 0)}); k.e("s_barrier")
    k.need_vm({("D", 1)})
    sw = 56 - 36 - NS
    k.e(f"s_mov_b32 s{g2Loop}, 0\ns_cmp_eq_u32 s{g2Half}, 0")
    k.e(csel(g2D, 1000, sw))
    k.e(f"s_mov_b32 s{sU}, {hex(WS_F+F_O)}")
    lp, ns, nf = lab(k, "ll"), lab(k, "lns"), lab(k, "lnf")
    k.label(lp)
    k.e("s_barrier")
    k.e(f"s_cmp_lg_u32 s{g2Loop}, s{g2D}\ns_cbranch_scc1 {ns}")
    k.e(f"v_cmp_ne_u32 vcc, s{sNon}, v{vFd}\ns_nop 1\ns_cbranch_vccz {nf}")
    save = list(k.vm)
    poll(k, vF, vFd, sU, "po")
    k.vm = save
    k.label(nf)
    k.e(f"s_mov_b32 s{g2Bs}, s{pWo}\ns_mov_b32 s{g2Bs+1}, s{pWo+1}\ns_mov_b32 s{g2Bs+2}, {1024*2048}\ns_mov_b32 s{g2KB}, 0")
    k.label(ns)
    g2_step_dma(k, ("D", NS))
    n2 = lab(k, "lnp")
    k.e(f"s_cmp_lg_u32 s{g2Loop}, {sw - NS}\ns_cbranch_scc1 {n2}")
    k.e(f"buffer_load_dword v{vFd}, v{vF}, {sr(sWS,4)}, s{sU} offen sc1")
    k.label(n2)
    k.need_vm({("D", 2)})
    k.e(f"s_add_u32 s{g2Loop}, s{g2Loop}, 1\ns_cmp_lg_u32 s{g2Loop}, {N - NS}\ns_cbranch_scc1 {lp}")
    for j in range(NS - 1):
        k.e("s_barrier")
        k.need_vm({("D", 3 + j)})

def g2_reads(p, tag):
    it = []
    for x in range(4):
        for kk in range(2):
            for hf in range(2): it.append((f"ds_read_b64 {vr(afr2(p,x,kk)+2*hf,2)}, v{g2A} offset:{(x*2+kk)*1024 + hf*512}", tag))
        for kk in range(2):
            for rd in range(2): it.append((f"ds_read_b64_tr_b16 {vr(bfr2(p,x,kk)+2*rd,2)}, v{g2B+x} offset:{(32*kk+16*rd)*256}", tag))
    return it

def g2_rot():
    NS = Opt.NS
    return [f"s_add_u32 s{g2Rd}, s{g2Rd}, {SLOT}\ns_mov_b32 s{g2D}, {SLOT}",
            f"s_cmp_eq_u32 s{g2Rd}, {NS*SLOT}\ns_cselect_b32 s{g2Rd}, 0, s{g2Rd}\ns_cmov_b32 s{g2D}, {hex((-(NS-1)*SLOT) & 0xffffffff)}",
            f"v_add_u32 v{g2A}, s{g2D}, v{g2A}"] + [f"v_add_u32 v{g2B+b}, s{g2D}, v{g2B+b}" for b in range(4)]

def g2_step(k, p, reads, extra=None):
    k.e("s_waitcnt lgkmcnt(0)"); k.lgkm = []
    if reads: k.e("s_barrier")
    seq = []
    for i in range(4):
        for n, b in enumerate(range(4) if i % 2 == 0 else range(3, -1, -1)):
            kks = (0, 1) if n % 2 == 0 else (1, 0)
            seq += [(i, b, kks[0]), (i, b, kks[1])]
    fill = {g: [] for g in range(32)}
    if reads:
        rd = g2_reads(1 - p, "R")
        for x, it in enumerate(rd): fill[(x * 27) // len(rd)].append(it)
        rot = g2_rot()
        fill[20].append((rot[0], None)); fill[22].append((rot[1], None))
        for x, t in enumerate(rot[2:]): fill[27 + x].append((t, None))
    for x, it in enumerate(extra or []): fill[(x * 32) // len(extra)].append(it)
    for g, (i, b, kk) in enumerate(seq):
        a = acc2(i, b)
        k.e(f"v_mfma_f32_16x16x32_bf16 {vr(a,4)}, {vr(bfr2(p,b,kk),4)}, {vr(afr2(p,i,kk),4)}, {vr(a,4)}")
        emit2(k, fill[g])

def g2_compute(k):
    g2_ids(k)
    k.e(f"s_lshr_b32 s{sU}, s{sW}, 1\ns_lshl_b32 s{sV}, s{sU}, 13\nv_lshlrev_b32 v{g2A}, 3, v0\nv_add_u32 v{g2A}, s{sV}, v{g2A}")
    k.e(f"v_lshlrev_b32 v{g2L16}, 4, v0")
    k.e(f"v_lshrrev_b32 v8, 2, v0\nv_and_b32 v9, 7, v8\nv_lshlrev_b32 v9, 1, v9\nv_bfe_u32 v10, v0, 1, 1\nv_xor_b32 v9, v9, v10")
    k.e(f"v_lshlrev_b32 v8, 8, v8\nv_and_b32 v10, 1, v0\nv_lshl_add_u32 v8, v10, 3, v8\nv_add_u32 v8, 16384, v8")
    k.e(f"s_and_b32 s{sV}, s{sW}, 1\ns_lshl_b32 s{sV}, s{sV}, 3")
    for b in range(4): k.e(f"s_add_u32 s{sT}, s{sV}, {2*b}\nv_xor_b32 v10, s{sT}, v9\nv_lshl_add_u32 v{g2B+b}, v10, 4, v8")
    k.e(f"v_and_b32 v8, 15, v0\nv_lshlrev_b32 v{g2X}, 11, v8\nv_bfe_u32 v8, v0, 4, 1\nv_lshl_add_u32 v{g2X}, v8, 5, v{g2X}\nv_lshrrev_b32 v8, 5, v0\nv_lshl_add_u32 v{g2X}, v8, 4, v{g2X}")
    k.e(f"s_lshl_b32 s{sU}, s{sU}, 6\ns_lshl_b32 s{g2T2}, s{g2Mt}, 7\ns_add_u32 s{g2T2}, s{g2T2}, s{sU}\ns_lshl_b32 s{sU}, s{g2Half}, 5\ns_add_u32 s{g2T2}, s{g2T2}, s{sU}\ns_lshl_b32 s{g2T2}, s{g2T2}, 11")
    k.e(f"s_lshl_b32 s{sU}, s{g2Nt}, 8\ns_lshl_b32 s{sV}, s{sV}, 4\ns_add_u32 s{g2T2}, s{g2T2}, s{sU}\ns_add_u32 s{g2T2}, s{g2T2}, s{sV}")
    srd(k, g2Xs, pX, 0x400000)
    srd(k, g2Os, pOut, 0x400000)
    for r in range(ACC2, ACC2 + 64): k.e(f"v_mov_b32 v{r}, 0")
    k.e(f"s_mov_b32 s{g2Rd}, 0\ns_mov_b32 s{g2Loop}, 0")
    k.e("s_waitcnt vmcnt(0)\ns_barrier"); k.vm = []
    wg_flag(k, F_O, 8)
    k.e("s_barrier")
    stamp(k, 8)
    emit2(k, g2_reads(0, "R"))
    for t in g2_rot(): k.e(t)
    lp = lab(k, "g2l")
    k.e(".p2align 6")
    k.label(lp)
    g2_step(k, 0, True); g2_step(k, 1, True)
    k.e(f"s_add_u32 s{g2Loop}, s{g2Loop}, 2\ns_cmp_lg_u32 s{g2Loop}, 34\ns_cbranch_scc1 {lp}")
    xl = []
    for i in range(2):
        xl.append((f"s_add_u32 s{sT}, s{g2T2}, {i*16*2048}", None))
        for pr in range(2): xl.append((f"buffer_load_dwordx4 {vr(XR+(i*2+pr)*4,4)}, v{g2X}, {sr(g2Xs,4)}, s{sT} offen offset:{pr*64}", "X"))
    g2_step(k, 0, True, extra=xl); g2_step(k, 1, False)
    stamp(k, 9)
    k.e(f"s_lshl_b32 s{sU}, s{g2Mt}, 3\ns_add_u32 s{sU}, s{sU}, s{g2Nt}\ns_lshl_b32 s{sU}, s{sU}, 3\ns_add_u32 s{sU}, s{sU}, s{sW}\ns_lshl_b32 s{sV}, s{g2Half}, 2")
    k.e(f"s_add_u32 s34, s{sU}, s{sV}\ns_xor_b32 s35, s34, 4")
    k.e(f"s_lshl_b32 s36, s34, 13\ns_add_u32 s36, s36, {hex(WS_P)}\ns_lshl_b32 s37, s35, 13\ns_add_u32 s37, s37, {hex(WS_P)}")
    k.e(f"s_lshl_b32 s34, s34, 7\ns_add_u32 s34, s34, {hex(WS_F+F_P)}\ns_lshl_b32 s35, s35, 7\ns_add_u32 s35, s35, {hex(WS_F+F_P)}")
    h1, fin = lab(k, "h1"), lab(k, "fin")
    k.e(f"v_mov_b32 v8, 0\ns_cmp_eq_u32 s{g2Half}, 1\ns_cbranch_scc1 {h1}")
    save = list(k.vm)
    for half in range(2):
        if half == 1:
            k.label(h1); k.vm = list(save)
        own, send = (0, 2) if half == 0 else (2, 0)
        PR = FR0
        if Opt.pbf16:
            for n in range(4):
                a = acc2(send + n // 2, 2 * (n % 2))
                for d in range(4): k.e(f"v_cvt_pk_bf16_f32 v{PR+4*n+d}, v{a+2*d}, v{a+2*d+1}")
                k.e(f"buffer_store_dwordx4 {vr(PR+4*n,4)}, v{g2L16}, {sr(g2Hs,4)}, s36 offen offset:{n*1024} sc1")
        else:
            for n in range(8):
                if n == 4: k.e("s_add_u32 s36, s36, 4096")
                k.e(f"buffer_store_dwordx4 {vr(acc2(send + n // 4, n % 4),4)}, v{g2L16}, {sr(g2Hs,4)}, s36 offen offset:{(n%4)*1024} sc1")
        k.e("s_waitcnt vmcnt(0)")
        flag_store(k, 9, 34)
        poll(k, 8, 9, 35, "pp")
        stamp(k, 10)
        PR = FR0 + 32
        nld = 4 if Opt.pbf16 else 8
        for n in range(nld):
            if n == 4: k.e("s_add_u32 s37, s37, 4096")
            k.vmem(f"buffer_load_dwordx4 {vr(PR+4*n,4)}, v{g2L16}, {sr(g2Hs,4)}, s37 offen offset:{(n%4)*1024} sc1", ("P", n))
        for i in range(2):
            for pr in range(2):
                a, b = acc2(own + i, 2 * pr), acc2(own + i, 2 * pr + 1)
                t = FR0 + ((i * 2 + pr) & 1) * 8
                if Opt.pbf16:
                    k.need_vm({("P", i * 2 + pr)})
                    q = PR + 4 * (i * 2 + pr)
                    for d in range(4): k.e(f"v_lshlrev_b32 v{t+2*d}, 16, v{q+d}\nv_and_b32 v{t+2*d+1}, 0xffff0000, v{q+d}")
                    for d in range(4): k.e(f"v_pk_add_f32 {vr(a+2*d,2)}, {vr(a+2*d,2)}, {vr(t+2*d,2)}")
                else:
                    k.need_vm({("P", i * 4 + 2 * pr + 1)})
                    q = PR + 4 * (i * 4 + 2 * pr)
                    for d in range(4): k.e(f"v_pk_add_f32 {vr(a+2*d,2)}, {vr(a+2*d,2)}, {vr(q+2*d,2)}")
                for r in range(4): k.e(f"v_permlane16_swap_b32 v{a+r}, v{b+r}")
                x = XR + (i * 2 + pr) * 4
                for d in range(4): k.e(f"v_lshlrev_b32 v{t+2*d}, 16, v{x+d}\nv_and_b32 v{t+2*d+1}, 0xffff0000, v{x+d}")
                for d in range(4): k.e(f"v_pk_add_f32 {vr(t+2*d,2)}, {vr(t+2*d,2)}, {vr(a+2*d,2)}")
                for d in range(4): k.e(f"v_cvt_pk_bf16_f32 v{x+d}, v{t+2*d}, v{t+2*d+1}")
                k.e(f"s_add_u32 s{sT}, s{g2T2}, {i*16*2048}")
                k.vmem(f"buffer_store_dwordx4 {vr(x,4)}, v{g2X}, {sr(g2Os,4)}, s{sT} offen offset:{pr*64}", "st")
        if half == 0: k.e(f"s_branch {fin}")
    k.label(fin)

def swap23(k, d, s, t):
    k.e(f"v_lshrrev_b32 v{t}, 1, v{s}\nv_xor_b32 v{t}, v{t}, v{s}\nv_and_b32 v{t}, 4, v{t}\nv_mul_u32_u24 v{t}, 3, v{t}\nv_xor_b32 v{d}, v{s}, v{t}")

def qkv_voff(k, d, vL, t0, t1, t2):
    k.e(f"v_mul_u32_u24 v{t0}, 5462, v{vL}\nv_lshrrev_b32 v{t0}, 16, v{t0}")
    k.e(f"v_mul_u32_u24 v{t1}, 12, v{t0}\nv_sub_u32 v{t1}, v{vL}, v{t1}")
    k.e(f"v_lshrrev_b32 v{t2}, 1, v{t0}\nv_and_b32 v{t2}, 2, v{t2}\nv_xor_b32 v{t1}, v{t1}, v{t2}")
    swap23(k, d, t0, t2)
    k.e(f"v_mul_u32_u24 v{d}, 6144, v{d}")
    k.e(f"v_lshrrev_b32 v{t2}, 2, v{t1}\nv_lshl_add_u32 v{d}, v{t2}, 11, v{d}")
    k.e(f"v_and_b32 v{t1}, 3, v{t1}\nv_lshl_add_u32 v{d}, v{t1}, 4, v{d}\nv_add_u32 v{d}, s{sNbS}, v{d}")

def gen_fused(name):
    uid[0] = 0
    k = Kern(name)
    k.e(header(name))
    end = "L_end"
    k.e(f"s_cmp_ge_u32 s2, 256\ns_cbranch_scc1 {end}")
    if Opt.perm == 1: k.e("s_and_b32 s3, s2, 7\ns_lshl_b32 s3, s3, 5\ns_lshr_b32 s2, s2, 3\ns_or_b32 s2, s2, s3")
    if Opt.perm == 2:
        for bit, mask in ((3, 5), (4, 3), (5, 6), (0, 24), (1, 40), (2, 48), (6, 21), (7, 42)):
            k.e(f"s_bitcmp1_b32 s2, {bit}\ns_cselect_b32 s3, {mask}, 0\ns_xor_b32 s2, s2, s3")
    if Opt.timing: k.e("s_memtime s[60:61]")
    k.e("s_load_dwordx4 s[4:7], s[0:1], 0\ns_load_dwordx8 s[48:55], s[0:1], 32\ns_load_dwordx4 s[56:59], s[0:1], 64")
    k.e(f"s_load_dwordx2 s[{pWo}:{pWo+1}], s[0:1], 16\ns_memrealtime s[100:101]")
    k.e(f"v_lshrrev_b32 v9, 6, v0\nv_and_b32 v0, 63, v0\nv_readfirstlane_b32 s{sW}, v9")
    k.e(f"s_and_b32 s{sH}, s2, 7\ns_lshl_b32 s{sH}, s{sH}, 2\ns_lshr_b32 s3, s2, 3\ns_and_b32 s3, s3, 3\ns_add_u32 s{sH}, s{sH}, s3")
    k.e(f"s_lshr_b32 s{sMb}, s2, 5\ns_lshr_b32 s{sWr}, s{sW}, 2\ns_and_b32 s{sWc_}, s{sW}, 3")
    sRA, sRB = sFl1, sFl2
    if Opt.rot:
        k.e(f"s_and_b32 s3, s{sH}, 1\ns_lshl_b32 s3, s3, 2\ns_xor_b32 s{sRA}, s{sW}, s3")
        k.e(f"s_and_b32 s3, s{sMb}, 1\ns_lshl_b32 s3, s3, 2\ns_xor_b32 s{sRB}, s{sW}, s3")
    else:
        k.e(f"s_mov_b32 s{sRA}, s{sW}\ns_mov_b32 s{sRB}, s{sW}")
    k.e(f"s_and_b32 s3, s{sW}, 1\ns_lshl_b32 s3, s3, 2")
    k.e(f"v_lshrrev_b32 v11, 4, v0\nv_add_u32 v11, s3, v11\nv_and_b32 v12, 7, v0\nv_xor_b32 v11, v11, v12\nv_lshlrev_b32 v11, 4, v11")
    k.e(f"v_lshrrev_b32 v12, 3, v0\nv_lshl_add_u32 v{vDA}, v12, 11, v11")
    k.e(f"s_lshl_b32 s{sKA}, s{sMb}, 19\ns_lshl_b32 s3, s{sRA}, 14\ns_add_u32 s{sKA}, s{sKA}, s3\ns_lshl_b32 s{sMA}, s{sRA}, 10")
    k.e(f"s_mov_b32 s{sX+2}, 0x400000\ns_mov_b32 s{sX+3}, 0x20000")
    k.e("s_waitcnt lgkmcnt(0)")
    k.e(f"s_mov_b32 s{sX}, s{pX}\ns_mov_b32 s{sX+1}, s{pX+1}")
    emit_items(k, dma_a(0, 0)); emit_items(k, dma_a(0, 1))
    k.e(f"s_lshl_b32 s{sNbS}, s{sH}, 6\ns_mul_i32 s{sNbG}, s{sH}, 224")
    k.e(f"s_lshl_b32 s3, s{sRB}, 10\ns_add_u32 s3, s3, {LDS_B}\ns_cmp_eq_u32 s{sRB}, 7")
    k.e(f"s_cselect_b32 s{sWa}, s{pQKV}, s{pG}\ns_cselect_b32 s{sWa+1}, s{pQKV+1}, s{pG+1}")
    k.e(f"s_cselect_b32 s{sWb}, s{pQKV}, s{pU}\ns_cselect_b32 s{sWb+1}, s{pQKV+1}, s{pU+1}")
    k.e(csel(sWa+2, 1024*6144, 1024*7168)); k.e(f"s_mov_b32 s{sWb+2}, s{sWa+2}\ns_mov_b32 s{sWa+3}, 0x20000\ns_mov_b32 s{sWb+3}, 0x20000")
    k.e(csel(sStep, 64*6144, 64*7168)); k.e(csel(sO[1], 16*6144, 32*7168))
    k.e(f"s_cselect_b32 s{sO[2]}, {32*6144}, 0"); k.e(csel(sO[3], 48*6144, 32*7168))
    k.e(f"s_cselect_b32 s{sM[0]}, {LDS_B+28672}, s3")
    k.e(csel(sM[1], 3072, 7168)); k.e(csel(sM[2], 6144, 14336)); k.e(csel(sM[3], 9216, 14336+7168))
    k.e(f"s_mov_b32 s{sKB}, 0\ns_mov_b32 s{sKQ}, 0")
    w7, w7d = lab(k, "w7"), lab(k, "w7d")
    k.e(f"s_cbranch_scc1 {w7}")
    k.e(f"s_lshl_b32 s3, s{sRB}, 6\nv_add_u32 v11, s3, v0\nv_mul_u32_u24 v12, 4682, v11\nv_lshrrev_b32 v12, 16, v12")
    k.e(f"v_mul_u32_u24 v13, 14, v12\nv_sub_u32 v13, v11, v13")
    swap23(k, vDB0, 12, 14)
    k.e(f"v_mul_u32_u24 v{vDB0}, 7168, v{vDB0}\nv_lshl_add_u32 v{vDB0}, v13, 4, v{vDB0}\nv_add_u32 v{vDB0}, s{sNbG}, v{vDB0}\ns_branch {w7d}")
    k.label(w7)
    qkv_voff(k, vDB0, 0, 12, 13, 14)
    k.label(w7d)
    for d in (1, 2, 3): k.e(f"s_add_u32 s{sM[d]}, s{sM[0]}, s{sM[d]}")
    for d in range(4): emit_items(k, dma_b(0, d))
    tab = 0
    for w, t in enumerate([2, 4, 5, 7, 8, 10, 11, 1]): tab |= t << (4 * w)
    k.e(f"s_lshl_b32 s3, s{sRB}, 2\ns_lshr_b32 s3, {hex(tab)}, s3\ns_and_b32 s3, s3, 15")
    k.e(f"s_lshl_b32 s{sM[4]}, s3, 10\ns_add_u32 s{sM[4]}, s{sM[4]}, {LDS_B+28672}\ns_lshl_b32 s3, s3, 6\nv_add_u32 v11, s3, v0")
    srd(k, sWc, pQKV, 1024 * 6144)
    qkv_voff(k, vDB1, 11, 12, 13, 14)
    emit_items(k, dma_b(0, 4))
    emit_items(k, dma_a(0, 2)); emit_items(k, dma_a(0, 3))
    srd(k, sWS, pWS, WS_BYTES)
    nn = lab(k, "nn")
    k.e(f"v_mov_b32 v{vNon}, 0\ns_or_b32 s3, s2, s{sW}\ns_cmp_lg_u32 s3, 0\ns_cbranch_scc1 {nn}")
    k.e(f"s_or_b32 s3, s100, 1\nv_mov_b32 v11, s3\nglobal_store_dword v{vNon}, v11, {sr(pDbg,2)} sc1")
    k.label(nn)
    k.e("v_and_b32 v11, 15, v0\nv_lshrrev_b32 v12, 4, v0")
    k.e("v_lshrrev_b32 v13, 1, v11\nv_xor_b32 v13, v13, v12\nv_lshlrev_b32 v13, 4, v13")
    k.e(f"v_lshl_add_u32 v{vA0}, v11, 7, v13\ns_lshl_b32 s3, s{sWr}, 14\nv_add_u32 v{vA0}, s3, v{vA0}\nv_xor_b32 v{vA1}, 64, v{vA0}")
    k.e("v_lshrrev_b32 v13, 1, v12\nv_lshlrev_b32 v13, 4, v13\nv_and_b32 v14, 1, v12\nv_lshl_add_u32 v13, v14, 2, v13")
    k.e("v_bfe_u32 v15, v0, 2, 2\nv_add_u32 v13, v13, v15\nv_and_b32 v15, 3, v0\nv_lshlrev_b32 v15, 3, v15")
    k.e(f"v_mul_u32_u24 v{vGU}, 224, v13\nv_add_u32 v{vGU}, v{vGU}, v15")
    k.e(f"v_mul_u32_u24 v{vQe}, 192, v13\nv_add_u32 v{vQe}, v{vQe}, v15\nv_add_u32 v{vQe}, {LDS_B+28672}, v{vQe}\nv_lshlrev_b32 v14, 5, v14")
    for r in range(ACC0, 256): k.e(f"v_mov_b32 v{r}, 0")
    k.e(f"s_mov_b32 s{sOne}, 0x3f803f80\ns_mov_b32 s{sStage}, 1")
    k.e(f"s_lshl_b32 s{sRow}, s{sMb}, 5\ns_add_u32 s{sRow}, s{sRow}, s{sH}\ns_lshl_b32 s{sRow}, s{sRow}, 3\ns_add_u32 s{sRow}, s{sRow}, s{sW}\ns_lshl_b32 s{sRow}, s{sRow}, 11")
    if Opt.timing:
        k.e(f"s_lshl_b32 s3, s2, 3\ns_add_u32 s3, s3, s{sW}\ns_lshl_b32 s3, s3, 6\ns_add_u32 s3, s3, {hex(WS_T)}\nv_mov_b32 v11, s100")
        k.e(f"buffer_store_dword v11, off, {sr(sWS,4)}, s3 offset:60")
    k.e(f"s_lshl_b32 s{sCs}, s{sMb}, 1\ns_add_u32 s{sFl2}, s{sCs}, 2\ns_add_u32 s{sCs}, s{sCs}, s{sWr}")
    k.e(f"s_cmp_eq_u32 s{sMb}, 7\ns_cmov_b32 s{sCs}, 99\ns_cmov_b32 s{sFl2}, 99")
    k.e(f"s_mov_b32 s{sFl1}, 2\ns_cmp_lg_u32 s{sW}, 0\ns_cmov_b32 s{sFl1}, 99\ns_cmov_b32 s{sFl2}, 99")
    k.e(f"s_and_b32 s3, s{sH}, 1")
    v1, join = lab(k, "v1"), lab(k, "join")
    k.e(f"s_cmp_eq_u32 s{sWc_}, 3\ns_cbranch_scc1 {v1}")
    save = (list(k.lgkm), list(k.vm))
    for var in (0, 1):
        if var == 1:
            k.label(v1)
            k.lgkm, k.vm = list(save[0]), list(save[1])
        if var == 0:
            k.e(f"s_lshl_b32 s{sU}, s{sWc_}, 1\ns_add_u32 s{sU}, s{sU}, s3")
            k.e(f"s_add_u32 s{sV}, s{sWc_}, 3\ns_lshl_b32 s{sNbS}, s{sV}, 6\ns_lshl_b32 s{sV}, s{sV}, 5\nv_xor_b32 v14, s{sV}, v14\nv_add_u32 v{vQe}, v{vQe}, v14")
        else:
            k.e(f"s_cmp_eq_u32 s3, 0\ns_cselect_b32 s{sU}, 6, 0")
            k.e(f"v_sub_u32 v{vQo}, v{vQe}, v14\nv_add_u32 v{vQe}, v{vQe}, v14")
        k.e(f"s_add_u32 s{sNbG}, s{sU}, 6\ns_lshl_b32 s{sNbG}, s{sNbG}, 6\ns_lshl_b32 s{sU}, s{sU}, 5\ns_add_u32 s{sU}, s{sU}, {LDS_B}\nv_add_u32 v{vGU}, s{sU}, v{vGU}")
        gen_main(k, var)
        if Opt.dummy:
            dl = lab(k, "dummy")
            k.e(f"s_mov_b32 s{sU}, {Opt.dummy}")
            for r in range(12, 24): k.e(f"v_mov_b32 v{r}, 0")
            k.label(dl)
            for n in range(40):
                t = 12 + 4 * ((n // 2) % 3)
                k.e(f"v_mfma_f32_16x16x32_bf16 {vr(t,4)}, {vr(bfr((n//2)%5,n%2),4)}, {vr(AF0+4*(n%8),4)}, {vr(t,4)}")
            k.e(f"s_sub_u32 s{sU}, s{sU}, 1\ns_cmp_lg_u32 s{sU}, 0\ns_cbranch_scc1 {dl}\ns_nop 7")
        stamp(k, 2)
        phase_b(k, var)
        phase_c(k)
        if Opt.hhook < 0:
            k.e("s_waitcnt vmcnt(0) lgkmcnt(0)\ns_barrier"); k.vm = []; k.lgkm = []
            wg_flag(k, F_H, vT)
        else:
            barrier(k, {"NKV"})
        if var == 0: k.e(f"s_branch {join}")
    k.label(join)
    k.lgkm, k.vm = [], []
    phase_c2(k)
    ld, done = lab(k, "ld"), lab(k, "done")
    k.e(f"s_cmp_ge_u32 s{sW}, 4\ns_cbranch_scc1 {ld}")
    g2_compute(k)
    k.e(f"s_branch {done}")
    k.label(ld)
    k.vm = []
    g2_loader(k)
    k.label(done)
    if Opt.timing:
        k.e("s_waitcnt vmcnt(0)")
        stamp(k, 11)
        k.e("s_memrealtime s[98:99]\ns_waitcnt lgkmcnt(0)")
        for n in range(1, 12): k.e(f"s_sub_u32 s{60+2*n}, s{60+2*n}, s60\nv_mov_b32 v{24+n}, s{60+2*n}")
        k.e(f"v_mov_b32 v24, 0\nv_mov_b32 v36, s98")
        k.e(f"s_lshl_b32 s3, s2, 3\ns_add_u32 s3, s3, s{sW}\ns_lshl_b32 s3, s3, 6\ns_add_u32 s3, s3, {hex(WS_T)}")
        for q in range(3): k.e(f"buffer_store_dwordx4 v[{24+4*q}:{27+4*q}], off, {sr(sWS,4)}, s3 offset:{16*q}")
        k.e(f"buffer_store_dword v36, off, {sr(sWS,4)}, s3 offset:48")
        if Opt.dbg:
            k.e(f"s_cmp_lg_u32 s2, 37\ns_cbranch_scc1 {end}\ns_cmp_lg_u32 s{sW}, 0\ns_cbranch_scc1 {end}")
            k.e(f"buffer_load_dword v37, off, {sr(sWS,4)}, s3 offset:60 sc1\ns_waitcnt vmcnt(0)\nv_sub_u32 v24, v36, v37\nv_mov_b32 v40, 0")
            for q in range(3): k.e(f"global_store_dwordx4 v40, v[{24+4*q}:{27+4*q}], {sr(pDbg,2)} offset:{16+16*q}")
    k.label(end)
    k.e("s_endpgm")
    return k.text(), descriptor(name, 256, 102, 256), f"; @launch grid=(256,1,1) block=(512,1,1) lds={LDS_BYTES}"
```

```python
import sys
from build import assemble
import fused
NAME = "parallel_sum__sliding_block__glu_gated_geglu__prompt_kernel"
def make(path, **kw):
    d = {k: getattr(fused.Opt, k) for k in kw}
    for k, v in kw.items(): setattr(fused.Opt, k, v)
    assemble([fused.gen_fused(NAME)], path)
    for k, v in d.items(): setattr(fused.Opt, k, v)
if __name__ == "__main__":
    make("f0.s")
    make("f0t.s", timing=True)
    make("f0m.s", dummy=32)
    make("f0mt.s", dummy=32, timing=True)
    make("f0n.s", dummy=64)
    make("f0nt.s", dummy=64, timing=True)
```

```python
import hazard
class Kern:
    def __init__(self, name):
        self.name = name
        self.L = []
        self.lgkm = []
        self.vm = []
        self.nl = self.nv = 0
        self.regtag = {}
    def e(self, s):
        for ln in s.split("\n"):
            ln = ln.strip()
            if ln: self.L.append(ln)
    def label(self, s): self.L.append(s + ":")
    def comment(self, s): self.L.append("; " + s)
    def ds(self, text, tag):
        self.L.append(text); self.lgkm.append(tag)
        self.nl += 1
        for r in hazard.I(text).w: self.regtag[r] = ("l", tag, self.nl)
    def vmem(self, text, tag):
        self.L.append(text); self.vm.append(tag)
        self.nv += 1
        for r in hazard.I(text).w: self.regtag[r] = ("v", tag, self.nv)
    def auto(self, text):
        i = hazard.I(text)
        hit = [self.regtag[r] for r in (i.r | i.w) if r in self.regtag]
        yl = min([self.nl - x for c, t, x in hit if c == "l"] or [99999])
        yv = min([self.nv - x for c, t, x in hit if c == "v"] or [99999])
        if yl < len(self.lgkm):
            n = min(yl, 15); self.L.append(f"s_waitcnt lgkmcnt({n})"); self.lgkm = self.lgkm[len(self.lgkm) - n:] if n else []
        if yv < len(self.vm):
            n = min(yv, 63); self.L.append(f"s_waitcnt vmcnt({n})"); self.vm = self.vm[len(self.vm) - n:] if n else []
    def need_lgkm(self, tags):
        idx = -1
        for i, t in enumerate(self.lgkm):
            if t in tags: idx = i
        if idx < 0: return
        n = len(self.lgkm) - 1 - idx
        n = min(n, 15)
        self.L.append(f"s_waitcnt lgkmcnt({n})")
        self.lgkm = self.lgkm[len(self.lgkm) - n:] if n else []
    def need_vm(self, tags, also_lgkm0=False):
        idx = -1
        for i, t in enumerate(self.vm):
            if t in tags: idx = i
        s = ""
        if idx >= 0:
            n = len(self.vm) - 1 - idx
            n = min(n, 63)
            s = f"vmcnt({n})"
            self.vm = self.vm[len(self.vm) - n:] if n else []
        if also_lgkm0 and self.lgkm:
            s = (s + " lgkmcnt(0)").strip()
            self.lgkm = []
        if s: self.L.append("s_waitcnt " + s)
    def wait_all(self):
        self.L.append("s_waitcnt vmcnt(0) lgkmcnt(0)")
        self.vm = []; self.lgkm = []
    def text(self): return "\n".join(self.L)

def header(name):
    return f""".globl {name}
.p2align 8
.type {name},@function
{name}:"""

def descriptor(name, vgpr, sgpr, accum):
    return f""".amdhsa_kernel {name}
  .amdhsa_next_free_vgpr {vgpr}
  .amdhsa_next_free_sgpr {sgpr}
  .amdhsa_accum_offset {accum}
  .amdhsa_group_segment_fixed_size 0
  .amdhsa_kernarg_size 80
  .amdhsa_user_sgpr_count 2
  .amdhsa_user_sgpr_kernarg_segment_ptr 1
  .amdhsa_system_sgpr_workgroup_id_x 1
  .amdhsa_float_denorm_mode_32 3
.end_amdhsa_kernel"""

def vr(a, n=1):
    return f"v{a}" if n == 1 else f"v[{a}:{a+n-1}]"
def sr(a, n=1):
    return f"s{a}" if n == 1 else f"s[{a}:{a+n-1}]"

def srd(k, d, b, nbytes):
    k.e(f"s_mov_b32 s{d}, s{b}")
    k.e(f"s_mov_b32 s{d+1}, s{b+1}")
    k.e(f"s_mov_b32 s{d+2}, {hex(nbytes)}")
    k.e(f"s_mov_b32 s{d+3}, 0x20000")

import struct
def f32hex(x):
    return hex(struct.unpack("<I", struct.pack("<f", x))[0])

WS_H = 0
WS_Q = 0x1200000
WS_K = 0x1600000
WS_V = 0x1A00000
WS_XN = 0x1E00000
WS_BYTES = 0x10000000
```

```python
import sys
from build import assemble
import fused
NAME = "parallel_sum__sliding_block__glu_gated_geglu__prompt_kernel"
def make(path, **kw):
    d = {k: getattr(fused.Opt, k) for k in kw}
    for k, v in kw.items(): setattr(fused.Opt, k, v)
    assemble([fused.gen_fused(NAME)], path)
    if fused.Opt.timing:
        t = open(path).read()
        open(path, "w").write("; stamps: " + " ".join(fused.Opt.stamps) + "\n" + t)
    for k, v in d.items(): setattr(fused.Opt, k, v)
if __name__ == "__main__":
    A = "ln at0 a0h4 hbar a1h4 g2go ln@ g2go@ g2loop@".split()
    P = dict(timing=True, stamps=A)
    make("f4at.s", **P)
    make("f4bt.s", cut=[(0, 4), (0, 1, 3, 4)], **P)
    make("f4ct.s", cut=[(0, 4), (0, 1, 3, 4)], awin=60, **P)
    make("f4dt.s", cut=[(0, 4), (0, 1, 3, 4)], awin=200, **P)
    make("f4et.s", cut=[(0, 4), (0, 1, 3, 4)], msum=False, pre5=False, **P)
    make("f4ft.s", cut=[(0, 4), (0, 1, 3, 4)], win=60, **P)
```

```python
from asmlib import *
import math
from sched import Rec, schedule

class Opt:
    timing = False
    hS = 1
    hE = 1
    c4 = False
    hackE = False
    pre5 = True
    pre4 = True
    pre3 = True
    soft = True
    g1a = ''
    g1b = ''
    idlex = None
    idle = None
    q5cut = 0
    q5pipe = True
    kfree = False
    q5 = False
    loopstats = True
    w2late = None
    gprio = 0
    ypos = (5, 29)
    xpos = (6, 4, 14)
    tagx = True
    q4 = False
    q4rd = 26
    hre = False
    g2map = 0
    krot = 0
    ofl = 19
    ov = False
    emb = (7, 7)
    lprio = 0
    twin = 400
    ownfirst = False
    osc = ''
    b2pf = 0
    kvget = 6
    lnspread = 16
    lnsum = 6
    quad = False
    qa = 1
    qb = 1
    lnw = 0
    wend = False
    dbgstart = False
    g2pd = 0
    g2pa = True
    g2rd = 27
    g2fix = ''
    vearly = 16
    aprio = (1, 4)
    sprio = True
    code0 = 64
    afirst = 4
    a1 = 4
    r7ool = False
    pfmid = 0
    pfbase = 0
    pfw = (None, None, None, None, None, 5)
    pfpro = 0
    xpfn = 2
    w2skip = 0
    pfst = (1, 2)
    pfpair = 2
    w2pf = True
    pfgap = 19
    hst = 'sc1'
    wsc = ''
    codepf = None
    warmattn = False
    awin = 100
    cut = [(0, 1, 2, 3, 4), (0, 1, 2, 3, 4)]
    win = 150
    hpace = 4
    hstart = 7
    w2hook = 1
    msum = True
    stamps = ["data0", "loop", "B1", "ln", "geglu", "attn", "Hrdy", "g2go", "g2loop", "xchg", "end"]
    phooks = (3,)
    fhook = 1
    rawfirst = 2
    dyn = 0
    tksc = ''
    dummy = 0
    perm = 0
    dbg = False
    nB1 = 3
    rot = True
    hsc = " sc1"
    NS = 5
    pbf16 = True
    kvbar = 2
    kvpoll = 4
    hhook = 4

WS_H, WS_K, WS_V = 0, 0x1600000, 0x1A00000
WS_P = 0x2200000
WS_ST = 0x2F00000
WS_CS = 0x2F10000
WS_F = 0x2F60000
F_ST, F_CS, F_KV, F_H, F_O, F_P = 0, 0x8000, 0x10000, 0x18000, 0x20000, 0x28000
WS_T = 0x3000000
LDS_B, BSLOT = 65536, 40960
L_K, L_V, L_Q, L_CO, L_CT, L_ID, L_DUMP = 65536, 98304, 131072, 147456, 151296, 152576, 152640
LDS_BYTES = 163840
sX, sWa, sWb, sWc, sWS = 8, 12, 16, 20, 24
sKA, sKB, sKQ, sStep = 28, 29, 30, 31
sO = [None, 32, 33, 34]
sM = [35, 36, 37, 38, 39]
sMA, sT, sStage, sW, sMb, sH, sWr, sWc_ = 40, 41, 42, 43, 44, 45, 46, 47
pX, pQKV, pG, pU, pD, pOut, pDbg, pWS, pWo = 4, 6, 48, 50, 52, 54, 56, 58, 84
sNon, sCs, sFl1, sFl2, sNbG, sNbS, sOne, sU, sV, sRow = 86, 87, 88, 89, 90, 91, 92, 93, 94, 95
sId2, sFl3 = 23, 99
sPf, sPfO = 96, 100
ACC0, BF0, AF0 = 96, 56, 24
vA0, vA1, vGU, vQe, vQo, vDA, vDB0, vDB1, vNon = 1, 2, 3, 4, 5, 6, 7, 8, 5
RAW, TMP = 10, 18
def acc(i, j): return ACC0 + (i * 5 + j) * 4
def bfr(j, kk): return BF0 + (j * 2 + kk) * 4
def afr(st, b, kk): return AF0 + ((st * 2 + b) * 2 + kk) * 4
NST = 16
uid = [0]
def lab(k, s):
    uid[0] += 1
    return f"L_{s}_{uid[0]}"

COLD = []
def ool(k, cond, body, name="o"):
    x, back = lab(k, name), lab(k, name + "b")
    k.e(f"{cond}\ns_cbranch_scc1 {x}")
    k.label(back)
    c = Kern("cold")
    c.label(x)
    body(c)
    c.e(f"s_branch {back}")
    COLD.extend(c.L)

def flush_cold(k):
    k.L.extend(COLD); del COLD[:]

def csel(d, a, b): return f"s_mov_b32 s{d}, {b}\ns_cmov_b32 s{d}, {a}"
def stamp(k, name):
    if Opt.timing and name in Opt.stamps:
        n = Opt.stamps.index(name) + 1
        k.e(f"s_memtime s[{60+2*n}:{61+2*n}]")
    if Opt.timing and name + "@" in Opt.stamps:
        n = Opt.stamps.index(name + "@") + 1
        k.e(f"s_memrealtime s[{60+2*n}:{61+2*n}]")

def a_read(k, stage, pair, b, kk):
    i = 2 * pair + b
    k.ds(f"ds_read_b128 {vr(afr(pair&1,b,kk),4)}, v{vA0 if kk == 0 else vA1} offset:{(stage&1)*32768 + i*2048}", ("A", stage, pair, b, kk))

def b_read(k, var, stage, j, kk, rd):
    sl = (stage & 1) * BSLOT
    ng = 4 if var == 0 else 2
    if j < ng: base, off = vGU, sl + (j & 1) * 14336 + (j >> 1) * 32 + (32 * kk + 8 * rd) * 224
    elif var == 0: base, off = vQe, sl + (32 * kk + 8 * rd) * 192
    else: base, off = (vQe if j % 2 == 0 else vQo), sl + (2, 3, 0)[j - 2] * 32 + (32 * kk + 8 * rd) * 192
    assert off < 65536
    k.ds(f"ds_read_b64_tr_b16 {vr(bfr(j,kk)+2*rd,2)}, v{base} offset:{off}", ("B", stage, j, kk, rd))

def dma_a(stage, which):
    t0 = [0, 16, 8, 24][which]
    r = []
    if t0: r.append(("s", f"s_add_u32 s{sT}, s{sKA}, {t0*16384}", None))
    r.append(("s", f"s_add_u32 m0, s{sMA}, {(stage&1)*32768 + t0*1024}", None))
    r.append(("v", f"buffer_load_dwordx4 v{vDA}, {sr(sX,4)}, s{sT if t0 else sKA} offen{Opt.g1a} lds", ("Alo" if which < 2 else "Ahi", stage)))
    return r

def dma_b(stage, d):
    r = []
    sl = (stage & 1) * BSLOT
    if d in (1, 2, 3): r.append(("s", f"s_add_u32 s{sT}, s{sKB}, s{sO[d]}", None))
    r.append(("s", f"s_add_u32 m0, s{sM[d]}, {sl}" if sl else f"s_mov_b32 m0, s{sM[d]}", None))
    so = {0: sKB, 4: sKQ}.get(d, sT)
    r.append(("v", f"buffer_load_dwordx4 v{vDB1 if d == 4 else vDB0}, {sr([sWa,sWa,sWb,sWb,sWc][d],4)}, s{so} offen{Opt.g1b} lds", ("B", stage)))
    return r

sKs, sWrB = 6, 7
def advance():
    if Opt.krot:
        return [("s", f"s_add_u32 s{sKs}, s{sKs}, 1\ns_add_u32 s{sKA}, s{sKA}, 128", None),
                ("s", f"s_add_u32 s{sKB}, s{sKB}, s{sStep}\ns_add_u32 s{sKQ}, s{sKQ}, {64*6144}", None),
                ("s", f"s_cmp_eq_u32 s{sKs}, 16\ns_cmov_b32 s{sKB}, 0\ns_cmov_b32 s{sKQ}, 0\ns_cmov_b32 s{sKA}, s{sWrB}", None)]
    return [("s", f"s_add_u32 s{sKA}, s{sKA}, 128", None),
            ("s", f"s_add_u32 s{sKB}, s{sKB}, s{sStep}", None),
            ("s", f"s_add_u32 s{sKQ}, s{sKQ}, {64*6144}", None)]

def emit_items(k, items):
    for kind, text, tag in items:
        if kind == "s": k.e(text)
        elif kind == "v": k.vmem(text, tag)
        elif kind == "f": text(k)

def pair_order():
    seq = []
    for j in range(5):
        bs = (0, 1) if j % 2 == 0 else (1, 0)
        seq += [(bs[0], j, 0), (bs[0], j, 1), (bs[1], j, 1), (bs[1], j, 0)]
    return seq

def reduce_list(op, v, t):
    L = []
    for mod in ("quad_perm:[1,0,3,2]", "quad_perm:[2,3,0,1]", "row_half_mirror", "row_mirror"):
        L.append(f"{op}_dpp v{v}, v{v}, v{v} {mod} row_mask:0xf bank_mask:0xf")
    for p in ("v_permlane16_swap_b32", "v_permlane32_swap_b32"):
        L += [f"v_mov_b32 v{t}, v{v}", f"{p} v{v}, v{t}", f"{op} v{v}, v{v}, v{t}"]
    return L

def stats_list(RAW, TMP):
    mu, sq, a, b = TMP, TMP + 1, TMP + 2, TMP + 3
    L = []
    for i in range(8):
        L.append(f"v_dot2_f32_bf16 v{mu}, v{RAW+i}, s{sOne}, {0 if i == 0 else vr(mu)}")
        L.append(f"v_dot2_f32_bf16 v{sq}, v{RAW+i}, v{RAW+i}, {0 if i == 0 else vr(sq)}")
    for x, y in zip(reduce_list("v_add_f32", mu, a), reduce_list("v_add_f32", sq, b)): L += [x, y]
    L += [f"v_mul_f32 v{mu}, {f32hex(-1/1024)}, v{mu}", f"v_mul_f32 v{sq}, {f32hex(1/1024)}, v{sq}",
          f"v_fma_f32 v{sq}, -v{mu}, v{mu}, v{sq}", f"v_max_f32 v{sq}, 0, v{sq}"]
    rnd = lambda r: [f"v_cvt_pk_bf16_f32 v{r}, v{r}, v{r}", f"v_lshlrev_b32 v{r}, 16, v{r}"]
    L += rnd(sq) + rnd(mu) + [f"v_add_f32 v{sq}, {f32hex(1e-5)}, v{sq}"] + rnd(sq) + [f"v_sqrt_f32 v{sq}, v{sq}"] + rnd(sq)
    return L

CA, SL = 12, 16
sRs = 48
def row_load(k):
    def body(c):
        c.e(f"s_lshl_b32 s{sRow}, s{sMb}, 5\ns_add_u32 s{sRow}, s{sRow}, s{sH}\ns_lshl_b32 s{sRow}, s{sRow}, 3\ns_add_u32 s{sRow}, s{sRow}, s{sW}\ns_lshl_b32 s{sRow}, s{sRow}, 11")
        c.e(f"v_lshlrev_b32 v14, 4, v0\nbuffer_load_dwordx4 v[10:13], v14, {sr(sX,4)}, s{sRow} offen\nbuffer_load_dwordx4 v[14:17], v14, {sr(sX,4)}, s{sRow} offen offset:1024")
    ool(k, f"s_cmp_eq_u32 s{sRs}, s{sStage}", body, "rw")

def row_block(k):
    def body(c):
        mu, sq, a, b = 18, 19, 20, 21
        r = Rec()
        for i in range(8):
            r.e(f"v_lshlrev_b32 v{a}, 16, v{10+i}\nv_and_b32 v{10+i}, 0xffff0000, v{10+i}")
            if i == 0: r.e(f"v_add_f32 v{mu}, v{a}, v10\nv_mul_f32 v{sq}, v{a}, v{a}\nv_mul_f32 v{b}, v10, v10")
            else: r.e(f"v_add_f32 v{mu}, v{mu}, v{a}\nv_fmac_f32 v{sq}, v{a}, v{a}\nv_add_f32 v{mu}, v{mu}, v{10+i}\nv_fmac_f32 v{b}, v{10+i}, v{10+i}")
        r.e(f"v_add_f32 v{sq}, v{sq}, v{b}")
        for x in stats_list(10, 18)[16:]: r.e(x)
        schedule(c, r)
        c.e(f"s_lshr_b32 s{sRow}, s{sRow}, 8\ns_add_u32 s{sRow}, s{sRow}, {hex(WS_ST)}\nbuffer_store_dwordx2 v[18:19], off, {sr(sWS,4)}, s{sRow} sc1")
    ool(k, f"s_cmp_eq_u32 s{sRs+1}, s{sStage}", body, "rs")

sCsB, sT13 = 50, 51
def colsum_block(k, stage, var, tail):
    if tail: cond = f"s_cmp_eq_u32 s{sT13}, s{sStage}" if stage < 14 else f"s_cmp_eq_u32 s{sWr}, 0"
    else: cond = f"s_cmp_eq_u32 s{(sCs, sCsB)[stage & 1]}, " + (f"{stage}" if stage < 2 else f"s{sStage}")
    ool(k, cond, lambda c: colsum_body(c, stage, var, tail), "cs")

def colsum_body(k, stage, var, tail):
    first = (stage == 3) if tail else (stage % 2 == 0)
    k.e(f"v_and_b32 v10, 15, v0\nv_mov_b32 v11, s{sOne}\nv_cmp_eq_u32 vcc, 0, v10\nv_cndmask_b32 v{SL}, 0, v11, vcc")
    for r in range(1, 4): k.e(f"v_mov_b32 v{SL+r}, v{SL}")
    for j in range(5):
        cur, nxt = SL + 4 * (j & 1), SL + 4 * ((j + 1) & 1)
        if j < 4:
            for r in range(4): k.e(f"v_mov_b32_dpp v{nxt+r}, v{cur+r} row_shr:1 row_mask:0xf bank_mask:0xf bound_ctrl:0")
        for kk in range(2):
            k.e(f"v_mfma_f32_16x16x32_bf16 {vr(CA,4)}, {vr(bfr(j,kk),4)}, {vr(cur,4)}, {0 if first and j + kk == 0 else vr(CA,4)}")
    if tail and stage < 15: return
    skip = lab(k, "cx")
    if first: k.e(f"s_cmp_lg_u32 s{sMb}, 6\ns_cbranch_scc1 {skip}")
    offs = [(sNbG, 0), (sNbG, 448), (sNbG, 64), (sNbG, 512), (sNbS, 0)] if var == 0 else [(sNbG, 0), (sNbG, 448), (None, 128), (None, 192), (None, 0)]
    k.e(f"v_mov_b32 v11, {L_DUMP - L_CO if tail else 0x7fff0000}")
    for j, (s_, o) in enumerate(offs):
        k.e(f"s_add_u32 s{sU}, s{s_}, {o}" if s_ is not None else f"s_mov_b32 s{sU}, {o}")
        k.e(f"v_cmp_eq_u32 vcc, {j}, v10\nv_mov_b32 v9, s{sU}\nv_cndmask_b32 v11, v11, v9, vcc")
    k.e(f"v_lshrrev_b32 v10, 4, v0\nv_lshl_add_u32 v11, v10, 4, v11")
    if tail:
        k.e(f"v_add_u32 v11, {L_CO}, v11\nds_write_b128 v11, {vr(CA,4)}")
    else:
        k.e(f"s_lshl_b32 s{sU}, s{sH}, 3\ns_add_u32 s{sU}, s{sU}, s{sMb}\ns_mul_i32 s{sU}, s{sU}, 1280\ns_add_u32 s{sU}, s{sU}, {hex(WS_CS)}")
        k.e(f"buffer_store_dwordx4 {vr(CA,4)}, v11, {sr(sWS,4)}, s{sU} offen sc1")
    k.label(skip)

def flag_store(k, vtmp, soff):
    k.e(f"v_mov_b32 v{vtmp}, s{sNon}")
    k.e(f"buffer_store_dword v{vtmp}, off, {sr(sWS,4)}, s{soff} sc1")

def flag_block(k, stage):
    def body(c):
        c.e(f"s_lshl_b32 s{sU}, s{sH}, 10\ns_lshl_b32 s{sV}, s{sMb}, 7\ns_add_u32 s{sU}, s{sU}, s{sV}\ns_add_u32 s{sU}, s{sU}, {hex(WS_F+F_CS)}")
        flag_store(c, 23, sU)
    ool(k, f"s_cmp_eq_u32 s{sFl2}, s{sStage}", body, "fl")

def stats_flag(k):
    def body(c):
        c.e(f"s_lshl_b32 s{sU}, s{sMb}, 12\ns_lshl_b32 s{sV}, s{sH}, 7\ns_add_u32 s{sU}, s{sU}, s{sV}\ns_add_u32 s{sU}, s{sU}, {hex(WS_F+F_ST)}")
        flag_store(c, 23, sU)
    ool(k, f"s_cmp_eq_u32 s{sFl1}, s{sStage}", body, "fs")

def spread(n, first, last): return [first + ((last - first) * i) // max(n - 1, 1) for i in range(n)]

def gen_pair(k, var, stage, pair, carry, mfma=True, valu=None, at=None):
    fill = {g: [] for g in range(24)}
    for g, it in carry.items(): fill[g] += it
    nst, npair = (stage, pair + 1) if pair < 3 else (stage + 1, 0)
    if nst < NST:
        g0 = 3 if pair == 0 else 0
        for n, (b, kk) in enumerate([(0, 0), (0, 1), (1, 1), (1, 0)]):
            fill[g0 + n].append(("f", (lambda kk_, b_: (lambda kn: a_read(kn, nst, npair, b_, kk_)))(kk, b), None))
    if pair == 3 and stage + 1 < NST:
        for j in range(5):
            for n, (kk, rd) in enumerate([(1, 0), (1, 1), (0, 0), (0, 1)]):
                fill[4 * j + 3 + n].append(("f", (lambda j_, kk_, rd_: (lambda kn: b_read(kn, var, stage + 1, j_, kk_, rd_)))(j, kk, rd), None))
    def place(items, g):
        sc = [x for x in items if x[0] == "s"]
        for n, x in enumerate(sc): fill[g - len(sc) + n].append(x)
        fill[g] += [x for x in items if x[0] == "v"]
    n1 = Opt.nB1
    ylist = [("a", 0), ("a", 1)] + [("b", d) for d in range(n1)]
    xlist = [("b", d) for d in range(n1, 5)] + [("a", 2), ("a", 3)]
    def mk(x, tgt): return dma_a(tgt, x[1]) if x[0] == "a" else dma_b(tgt, x[1])
    if stage == -1 or (Opt.quad and stage == 0 and pair == 0):
        pass
    elif stage == 0 and pair == 0:
        lst = ([("a", 0), ("a", 1)] if Opt.a1 < 2 else []) + [("b", d) for d in range(5)]
        if not Opt.a1: fill[0] += advance()
        for x, p in zip(lst, spread(len(lst), 2, 19)): place(mk(x, 1), p)
    elif stage == 0 and pair in (1, 2) and not Opt.quad:
        lst = ([("a", 2, 1), ("a", 3, 1)] if Opt.a1 < 4 else []) + [("raw",), ("adv",)] + [(x[0], x[1], 2) for x in ylist]
        for x, p in zip(lst, spread(len(lst), 4, 38)):
            if (p < 20) != (pair == 1): continue
            g = p % 20
            if x[0] == "adv": fill[g] += advance()
            elif x[0] == "raw":
                fill[g].append(("f", lambda k: ool(k, f"s_cmp_eq_u32 s{sW}, 0", lambda c: c.e(f"v_mov_b32 v{vNon}, 0\nglobal_load_dword v{vNon}, v{vNon}, {sr(pDbg,2)} offset:128 sc1"), "nl"), None))
            else: place(mk(x, x[2]), max(g, 2))
    elif pair in (1, 2):
        tgt = stage + 2
        if tgt < NST:
            if pair == 1:
                for n, it in enumerate(advance()): fill[n].append(it)
            for x, p in zip(ylist, spread(len(ylist), *Opt.ypos)):
                if pair == 1 and p < 20: place(mk(x, tgt), max(p, 2))
                if pair == 2 and p >= 20: place(mk(x, tgt), max(p - 20, 6))
    else:
        tgt = stage + 2 if pair == 3 else stage + 1
        if tgt < NST:
            n3 = 1 if len(xlist) > 2 else 0
            if pair == 3:
                for x in xlist[:n3]: place(mk(x, tgt), Opt.xpos[0])
            else:
                for x, p in zip(xlist[n3:], spread(len(xlist) - n3, Opt.xpos[1], Opt.xpos[2])): place(mk(x, tgt), p)
    if valu:
        for n, it in enumerate(valu): fill[(n * 20) // len(valu)].append(it)
    for g, fn in (at or []): fill[g].append(("f", fn, None))
    for g, (b, j, kk) in enumerate(pair_order()):
        if mfma:
            k.need_lgkm({("A", stage, pair, b, kk), ("B", stage, j, kk, 0), ("B", stage, j, kk, 1)})
            a = acc(2 * pair + b, j)
            k.e(f"v_mfma_f32_16x16x32_bf16 {vr(a,4)}, {vr(bfr(j,kk),4)}, {vr(afr(pair&1,b,kk),4)}, {0 if stage == 0 and g % 2 == 0 else vr(a,4)}")
        emit_items(k, fill[g])
    return {g - 20: fill[g] for g in range(20, 24) if fill[g]}

def barrier(k, tags):
    k.need_vm(tags, also_lgkm0=True)
    k.e("s_barrier")

def nonce_check(k):
    def body(c):
        lp, ok = lab(c, "nlp"), lab(c, "nok")
        c.e(f"s_mov_b32 s{sV}, 0")
        c.label(lp)
        c.e(f"v_readfirstlane_b32 s{sNon}, v{vNon}\ns_cmp_lg_u32 s{sNon}, 0\ns_cbranch_scc1 {ok}")
        c.e(f"v_mov_b32 v{vNon}, 0\nglobal_load_dword v{vNon}, v{vNon}, {sr(pDbg,2)} offset:128 sc1\ns_waitcnt vmcnt(0)")
        c.e(f"s_add_u32 s{sV}, s{sV}, 1\ns_cmp_lt_u32 s{sV}, 0x100000\ns_cbranch_scc1 {lp}")
        c.label(ok)
        c.e(f"v_mov_b32 v10, {L_ID}\nds_write_b32 v10, v{vNon}")
    ool(k, f"s_cmp_eq_u32 s{sW}, 0", body, "nc")

def nonce_read(k):
    k.e(f"v_mov_b32 v10, {L_ID}")
    k.ds("ds_read_b32 v10, v10", "NR")
def nonce_take(k):
    k.need_lgkm({"NR"})
    k.e(f"v_readfirstlane_b32 s{sNon}, v10")

def check_or_poll(k, vaddr, vdst, soff, name):
    k.e(f"v_cmp_ne_u32 vcc, s{sNon}, v{vdst}")
    ool(k, "s_cmp_lg_u64 vcc, 0", lambda c: poll(c, vaddr, vdst, soff, name), name)

sPfS, sPfA, sPfB, sPfC, sPfW = 101, 0, 1, 3, 94
def w_prefetch(k, late=True, xend=False):
    k.e(f"v_bfe_u32 v9, v0, 1, 2\nv_mul_u32_u24 v9, s{sPfA}, v9\nv_lshrrev_b32 v23, 3, v0\nv_min_u32 v23, s{sPfC}, v23")
    k.e(f"v_mul_u32_u24 v23, s{sPfB}, v23\nv_add3_u32 v9, v9, v23, 56\nv_and_b32 v23, 1, v0\ns_mov_b32 m0, {L_DUMP}\nv_lshl_add_u32 v9, v23, 7, v9")
    k.e(f"buffer_load_dwordx4 v9, {sr(sPf,4)}, s{sPfO} offen lds")
    k.e(f"s_add_u32 s{sPfO}, s{sPfO}, s{sPfS}")
    if late:
        k.e(f"s_lshl_b32 s{sU}, s2, 13\ns_add_u32 s{sU}, s{pWo}, s{sU}\ns_addc_u32 s{sV}, s{pWo+1}, 0\ns_cmp_eq_u32 s{sPfO}, 32768")
        k.e(f"s_cmov_b32 s{sPf}, s{sU}\ns_cmov_b32 s{sPf+1}, s{sV}\ns_cmov_b32 s{sPf+2}, 8192\ns_cmov_b32 s{sPfO}, 0\ns_cmov_b32 s{sPfS}, 65536")
    if xend:
        k.e(f"s_cmp_eq_u32 s{sPfS}, 256\ns_cmov_b32 s{sPf+2}, 0")
        if Opt.wend: k.e(f"s_cmp_gt_u32 s{sPfS}, 65536\ns_cmov_b32 s{sPf+2}, 0")

def pf_setup(k):
    k.e(f"s_lshr_b32 s{sU}, s2, 3\ns_and_b32 s{sV}, s2, 7\ns_mov_b32 s{sPf+3}, 0x20000")
    done = lab(k, "pfd")
    for role, w in enumerate(Opt.pfw):
        if w is None: continue
        nx = lab(k, "pfn")
        k.e(f"s_cmp_lg_u32 s{sW}, {w}\ns_cbranch_scc1 {nx}")
        if role < 3:
            st = 7168 if role < 2 else 6144
            p = (pG, pU, pQKV)[role]
            k.e(f"s_mov_b32 s{sPf}, s{p}\ns_mov_b32 s{sPf+1}, s{p+1}\ns_mov_b32 s{sPf+2}, {1024*st}")
            k.e(f"s_mul_i32 s{sPfO}, s{sU}, {4*st}\ns_mul_i32 s{sV}, s{sV}, {896 if role < 2 else 256}\ns_add_u32 s{sPfO}, s{sPfO}, s{sV}\ns_add_u32 s{sPfO}, s{sPfO}, {Opt.pfbase*64*st}")
            k.e(f"s_mov_b32 s{sPfS}, {128*st}\ns_mov_b32 s{sPfA}, {256 if role < 2 else 2048}\ns_mov_b32 s{sPfB}, {st}\ns_mov_b32 s{sPfC}, 3")
        elif role < 5:
            k.e(f"s_lshl_b32 s{sU}, s{sU}, 17\ns_add_u32 s{sU}, s{sU}, {(role-3)*65536}\ns_add_u32 s{sPf}, s{pX}, s{sU}\ns_addc_u32 s{sPf+1}, s{pX+1}, 0")
            k.e(f"s_mov_b32 s{sPf+2}, 65536\ns_mov_b32 s{sPfO}, 0\ns_mov_b32 s{sPfS}, 256\ns_mov_b32 s{sPfA}, 2048\ns_mov_b32 s{sPfB}, 8192\ns_mov_b32 s{sPfC}, 7")
        else:
            k.e(f"s_mul_i32 s{sU}, s2, 28672\ns_add_u32 s{sPf}, s{pD}, s{sU}\ns_addc_u32 s{sPf+1}, s{pD+1}, 0\ns_mov_b32 s{sPf+2}, 0")
            k.e(f"s_mov_b32 s{sPfO}, 0\ns_mov_b32 s{sPfS}, 0\ns_mov_b32 s{sPfA}, 256\ns_mov_b32 s{sPfB}, 1024\ns_mov_b32 s{sPfC}, 7")
        k.e(f"s_branch {done}")
        k.label(nx)
    k.e(f"s_mov_b32 s{sPf}, s{pD}\ns_mov_b32 s{sPf+1}, s{pD+1}\ns_mov_b32 s{sPf+2}, 0\ns_mov_b32 s{sPfO}, 0\ns_mov_b32 s{sPfS}, 0")
    k.e(f"s_mov_b32 s{sPfA}, 0\ns_mov_b32 s{sPfB}, 0\ns_mov_b32 s{sPfC}, 0")
    k.label(done)

def code_prefetch(k):
    here = lab(k, "pc")
    k.e("s_getpc_b64 s[48:49]")
    k.label(here)
    k.e(f"s_sub_u32 s48, s48, {here}-L_pf0\ns_subb_u32 s49, s49, 0")
    k.e(f"s_lshl_b32 s{sU}, s{sW}, 13\nv_lshlrev_b32 v10, 6, v0\nv_add_u32 v10, s{sU}, v10\nv_add_u32 v11, 4096, v10")
    k.e("v_min_u32 v10, L_end-L_pf0, v10\nv_min_u32 v11, L_end-L_pf0, v11")
    k.e("global_load_dword v10, v10, s[48:49]\nglobal_load_dword v11, v11, s[48:49]")

def gen_stage(k, var, stage, carry):
    at0 = [(19, lambda k: colsum_block(k, stage, var, True))] if stage == 15 else []
    carry = gen_pair(k, var, stage, 0, carry, at=at0)
    barrier(k, {("Ahi", stage)})
    stamp(k, f"Y{stage}")
    at1, at2, at3 = [], [], []
    if stage == 1:
        at3.append((1, nonce_check))
        at1.append((8, lambda k: k.e(f"s_cmp_eq_u32 s{sW}, {Opt.pfw[5]}\ns_cmov_b32 s{sPf+2}, 28672\ns_cmov_b32 s{sPfS}, 8192")))
    if Opt.quad and stage == 0:
        at1.append((5, lambda k: ool(k, f"s_cmp_eq_u32 s{sW}, 0", lambda c: c.e(f"v_mov_b32 v{vNon}, 0\nglobal_load_dword v{vNon}, v{vNon}, {sr(pDbg,2)} offset:128 sc1"), "nl")))
    if (Opt.quad or Opt.loopstats) and stage in (2, 3): at1 += [(2, row_block), (2, row_load)]
    if 2 <= stage < 14: at3.append((1, lambda k: flag_block(k, stage)))
    if stage in Opt.pfst:
        (at1, at2, at3)[Opt.pfpair - 1].append((Opt.pfgap, lambda k: ool(k, f"s_cmp_lt_u32 s{sPfO}, s{sPf+2}", w_prefetch, "pf")))
    if Opt.w2late and stage == Opt.w2late[0]:
        def burst(c):
            for n in range(5): w_prefetch(c)
        (at1, at2, at3)[Opt.w2late[1] - 1].append((Opt.w2late[2], lambda k: ool(k, f"s_cmp_lt_u32 s{sPfO}, s{sPf+2}", burst, "pb")))
    if stage == 3: at1.append((2, stats_flag))
    if stage == 14:
        at2 += [(13, ln_poll_issue), (19, ln_poll_check)] if False else []
        at1 += [(4, nonce_read), (12, nonce_take), (14, ln_poll_issue)]
        at3.append((3, ln_load))
    if stage == 15:
        at1.append((4, ln_own))
        at2.append((Opt.lnsum, ln_sum))
        at3.append((0, lambda k: ln_read(k, var)))
    if stage < 14: at2.append((19, lambda k: colsum_block(k, stage, var, False)))
    if stage in (3, 14): at2.append((19, lambda k: colsum_block(k, stage, var, True)))
    if stage == 14: at2.append((19, ln_poll_check))
    carry = gen_pair(k, var, stage, 1, carry, at=at1)
    carry = gen_pair(k, var, stage, 2, carry, at=at2)
    barrier(k, {("Alo", stage + 1), ("B", stage + 1), "SD", ("Ahi", 15 if stage == 14 else -1)})
    stamp(k, f"X{stage}")
    if 1 <= stage < 15: at3.append((2, lambda k: k.e(f"s_add_u32 s{sStage}, s{sStage}, 1")))
    carry = gen_pair(k, var, stage, 3, carry, at=at3)
    return carry

def gen_main(k, var):
    if Opt.quad:
        k.e("s_waitcnt vmcnt(9)")
        ool(k, f"s_cmp_lt_u32 s{sW}, 4", lambda c: c.e("s_waitcnt vmcnt(0)"), "q0")
        k.vm = [("B", 1)] * 4 + [("Alo", 1)] * 2 + [("B", 1)] + [("Ahi", 1)] * 2
        k.e("s_barrier")
    else: barrier(k, {("Alo", 0), ("B", 0)})
    stamp(k, "data0")
    carry = gen_pair(k, var, -1, 3, {}, mfma=False)
    carry = gen_stage(k, var, 0, carry)
    carry = gen_stage(k, var, 1, carry)
    def norm(base):
        f = lambda t: tuple((x - base) if n == 1 else x for n, x in enumerate(t))
        return [f(t) for t in k.lgkm], [f(t) for t in k.vm if t[0] not in ("ST", "PF")]
    k.vm = [t for t in k.vm if t[0] != "ST"]
    loop = lab(k, "loop")
    k.e(".p2align 6")
    k.label(loop)
    st0 = norm(2)
    c = gen_stage(k, var, 2, carry)
    c = gen_stage(k, var, 3, c)
    assert st0 == norm(4), (st0, norm(4))
    k.e(f"s_cmp_lg_u32 s{sStage}, 14\ns_cbranch_scc1 {loop}")
    sh = lambda t: tuple((x + 10) if n == 1 else x for n, x in enumerate(t))
    k.lgkm = [sh(t) for t in k.lgkm]; k.vm = [sh(t) for t in k.vm]
    c = gen_pair(Kern("tmp"), var, 13, 3, {}, mfma=False)
    c = gen_stage(k, var, 14, c)
    c = gen_stage(k, var, 15, c)
    assert not c

def poll(k, vaddr, vdst, soff, name):
    lp, ok = lab(k, name), lab(k, name + "ok")
    k.e(f"s_mov_b32 s{sV}, 0")
    k.label(lp)
    k.e(f"buffer_load_dword v{vdst}, v{vaddr}, {sr(sWS,4)}, s{soff} offen sc1\ns_waitcnt vmcnt(0)")
    k.e(f"v_cmp_ne_u32 vcc, s{sNon}, v{vdst}\ns_nop 1\ns_cbranch_vccz {ok}")
    k.e(f"s_sleep 1\ns_add_u32 s{sV}, s{sV}, 1\ns_cmp_lt_u32 s{sV}, 0x80000\ns_cbranch_scc1 {lp}")
    k.label(ok)
    k.vm = []

STA, CSR, KC = 24, 2, 60
vL8, vS8, OUT, GT = 76, 77, 78, 80

def g2_b_dma(step_slot, tag):
    it = []
    for i in range(4):
        it.append((f"s_add_u32 m0, s{g2MB}, {step_slot*32768}" if i == 0 else "s_add_u32 m0, m0, 4096", None))
        it.append((f"buffer_load_dwordx4 v{g2DB+i}, {sr(g2Bs,4)}, s{g2KB} offen{Opt.wsc} lds", tag))
    return it

PC, vCol = 10, 9
def ln_poll_issue(k):
    def body(c):
        c.e(f"v_cmp_gt_u32 vcc, 32, v0\nv_lshlrev_b32 v10, 7, v0\ns_lshl_b32 s{sU}, s{sMb}, 12\nv_add_u32 v11, s{sU}, v10")
        c.e(f"s_lshl_b32 s{sU}, s{sH}, 10\ns_add_u32 s{sU}, s{sU}, {F_CS - F_ST - 4096}\nv_min_u32 v10, {38*128}, v10\nv_add_u32 v10, s{sU}, v10")
        c.e(f"v_cndmask_b32 v{vDB0}, v10, v11, vcc\ns_mov_b32 s{sKB}, {hex(WS_F+F_ST)}")
        c.e(f"buffer_load_dword v{vDB1}, v{vDB0}, {sr(sWS,4)}, s{sKB} offen sc1")
    ool(k, f"s_cmp_eq_u32 s{sW}, {Opt.lnw}", body, "li")

def ln_poll_check(k):
    def body(c):
        ok = lab(c, "lok")
        c.e(f"s_waitcnt vmcnt(0)\nv_cmp_ne_u32 vcc, s{sNon}, v{vDB1}\ns_nop 1\ns_cbranch_vccz {ok}")
        poll(c, vDB0, vDB1, sKB, "pln")
        c.label(ok)
    ool(k, f"s_cmp_eq_u32 s{sW}, {Opt.lnw}", body, "lc")

def ln_load(k):
    k.e(f"s_mul_i32 s{sU}, s{sWc_}, 320\nv_min_u32 v{vCol}, 39, v0\nv_lshlrev_b32 v{vCol}, 3, v{vCol}\nv_add_u32 v{vCol}, s{sU}, v{vCol}\nv_lshlrev_b32 v{vDA}, 4, v0")
    k.e(f"s_mov_b32 s{sZ}, s{sWS}\ns_mov_b32 s{sZ+1}, s{sWS+1}\ns_mov_b32 s{sZ+3}, 0x20000")
    def body(c):
        c.e(f"s_mul_i32 s{sU}, s{sH}, {8*1280}\ns_add_u32 s{sU}, s{sU}, {hex(WS_CS)}")
        for n in range(7):
            if n and n % 3 == 0: c.e(f"s_add_u32 s{sU}, s{sU}, {3*1280}")
            c.e(f"buffer_load_dwordx2 {vr(PC+2*n,2)}, v{vCol}, {sr(sWS,4)}, s{sU} offen offset:{(n%3)*1280} sc1")
    ool(k, f"s_cmp_eq_u32 s{sWr}, 1", body, "pc")
    k.e(f"s_lshl_b32 s{sV}, s{sW}, 10\ns_lshl_b32 s{sU}, s{sMb}, 11\ns_add_u32 s{sU}, s{sU}, s{sV}\ns_add_u32 s{sU}, s{sU}, {hex(WS_ST)}")
    k.e(f"s_cmp_lt_u32 s{sW}, 2\ns_cselect_b32 s{sZ+2}, s{sWS+2}, 0\ns_cselect_b32 m0, s{sV}, {L_DUMP}")
    k.vmem(f"buffer_load_dwordx4 v{vDA}, {sr(sZ,4)}, s{sU} offen{Opt.hsc} lds", "SD")

def ln_own(k):
    k.e(f"v_add_u32 v{vDB0}, {L_CO}, v{vCol}")
    k.ds(f"ds_read_b64 v[6:7], v{vDB0}", "CO")

def ln_sum(k):
    k.need_lgkm({"CO"})
    def body(c):
        c.e("s_waitcnt vmcnt(0)")
        for x, y in ((0, 2), (4, 6), (8, 10), (12, -4), (0, 4), (8, 12), (0, 8)):
            for h_ in range(2): c.e(f"v_add_f32 v{PC+x+h_}, v{PC+x+h_}, v{PC+y+h_}")
        c.e(f"v_add_u32 v{vCol}, {L_CT}, v{vCol}\nds_write_b64 v{vCol}, {vr(PC,2)}")
    ool(k, f"s_cmp_eq_u32 s{sWr}, 1", body, "ps")

def ln_read(k, var):
    t = 22
    k.e(f"v_and_b32 v1, 15, v0\nv_lshlrev_b32 v1, 3, v1\ns_lshl_b32 s{sU}, s{sWr}, 10\nv_add_u32 v1, s{sU}, v1")
    for i in range(8): k.ds(f"ds_read_b64 {vr(STA+2*i,2)}, v1 offset:{i*128}", "STA")
    k.e(f"v_lshrrev_b32 v{t}, 4, v0\nv_lshlrev_b32 v{t}, 4, v{t}\nv_add_u32 v{t}, {L_CT}, v{t}\nv_add_u32 v{t+1}, s{sNbG}, v{t}")
    if var == 0:
        k.e(f"v_add_u32 v{t}, s{sNbS}, v{t}")
        rd = [(t + 1, 0), (t + 1, 448), (t + 1, 64), (t + 1, 512), (t, 0)]
    else:
        rd = [(t + 1, 0), (t + 1, 448), (t, 128), (t, 192), (t, 0)]
    for j, (a, o) in enumerate(rd): k.ds(f"ds_read_b128 {vr(CSR+4*j,4)}, v{a} offset:{o}", "CS")

def w2_early(k):
    skip = lab(k, "w2")
    k.e(f"s_mov_b32 s{sId2}, s2\ns_cmp_lt_u32 s{sW}, 4\ns_cbranch_scc1 {skip}")
    g2_loader_setup(k)
    for st in range(2):
        for text, tag in g2_b_dma(st, None): k.e(text)
        k.e(f"s_add_u32 s{g2KB}, s{g2KB}, {64*2048}")
    k.label(skip)

def center(k, i, j):
    a = acc(i, j)
    for hf in (0, 2):
        k.e(f"v_pk_fma_f32 {vr(a+hf,2)}, {vr(CSR+4*j+hf,2)}, {vr(STA+2*i,2)}, {vr(a+hf,2)} op_sel_hi:[1,0,1]")

RR = 68
def bc(r):
    return vr(r & ~1, 2), r & 1

def geglu(k, i, pairs, outs):
    c0 = -2.0 * math.log2(math.e) * math.sqrt(2.0 / math.pi)
    R = RR + i
    C0 = KC + 4 * (i & 1); C1, S2 = C0 + 1, C0 + 2
    k.e(f"v_mul_f32 v{S2}, v{STA+2*i+1}, v{STA+2*i+1}")
    k.e(f"v_mul_f32 v{C0}, {f32hex(c0)}, v{R}\nv_mul_f32 v{C1}, v{R}, v{R}\nv_mul_f32 v{C1}, {f32hex(0.044715)}, v{C1}\nv_mul_f32 v{C1}, v{C1}, v{C0}")
    for jg, ju in pairs: center(k, i, jg); center(k, i, ju)
    P = []
    for x, (jg, ju) in enumerate(pairs):
        for hf in range(2): P.append((acc(i, jg) + 2 * hf, acc(i, ju) + 2 * hf, GT + ((i & 1) * 4 + x * 2 + hf) * 2, outs[x] + hf))
    for g, u, t, o in P:
        k.e(f"v_pk_mul_f32 {vr(t,2)}, {vr(g,2)}, {vr(g,2)}")
        k.e(f"v_pk_fma_f32 {vr(t,2)}, {vr(t,2)}, {vr(C0,2)}, {vr(C0,2)} op_sel:[0,1,0] op_sel_hi:[1,1,0]")
        k.e(f"v_pk_mul_f32 {vr(t,2)}, {vr(t,2)}, {vr(g,2)}")
        k.e(f"v_exp_f32 v{t}, v{t}\nv_exp_f32 v{t+1}, v{t+1}\nv_pk_mul_f32 {vr(g,2)}, {vr(g,2)}, {vr(u,2)}")
        k.e(f"v_pk_fma_f32 {vr(t,2)}, {vr(t,2)}, {vr(S2,2)}, {vr(S2,2)} op_sel_hi:[1,0,0]")
        k.e(f"v_rcp_f32 v{t}, v{t}\nv_rcp_f32 v{t+1}, v{t+1}")
        k.e(f"v_pk_mul_f32 {vr(g,2)}, {vr(g,2)}, {vr(t,2)}")
        k.e(f"v_cvt_pk_bf16_f32 v{o}, v{g}, v{g+1}")

def single(k, i, j, o=None):
    a = acc(i, j)
    o = a if o is None else o
    center(k, i, j)
    p, sel = bc(RR + i)
    for hf in (0, 2): k.e(f"v_pk_mul_f32 {vr(a+hf,2)}, {vr(a+hf,2)}, {p} op_sel:[0,{sel}] op_sel_hi:[1,{sel}]")
    k.e(f"v_cvt_pk_bf16_f32 v{o}, v{a}, v{a+1}\nv_cvt_pk_bf16_f32 v{o+1}, v{a+2}, v{a+3}")
    return o

sHo, sSo, sSs, sZ = 42, 29, 30, 12
def phase_b(k, var):
    k.need_lgkm({"CS"})
    stamp(k, "ln")
    vLd = 40
    hq[0] = 0; hv[0] = var
    k.e(f"v_lshlrev_b32 v{vL8}, 3, v0")
    k.e(f"s_lshl_b32 s31, s{sMb}, 4\ns_lshl_b32 s32, s{sWr}, 3\ns_add_u32 s31, s31, s32")
    k.e(f"s_lshr_b32 s33, s{sH}, 1\ns_mul_i32 s33, s33, 7\ns_and_b32 s34, s{sH}, 1")
    if var == 0: k.e(f"s_lshl_b32 s35, s34, 2\ns_add_u32 s33, s33, s35\ns_add_u32 s33, s33, s{sWc_}")
    else: k.e("s_add_u32 s33, s33, 3")
    k.e(f"s_mul_i32 s{sHo}, s31, 144\ns_add_u32 s{sHo}, s{sHo}, s33\ns_lshl_b32 s{sHo}, s{sHo}, 10")
    if var == 1: k.e(f"s_lshl_b32 s34, s34, 3\ns_add_u32 s{sHo}, s{sHo}, s34")
    k.e(f"s_mov_b32 s{sZ}, s{pWS}\ns_mov_b32 s{sZ+1}, s{pWS+1}\ns_mov_b32 s{sZ+3}, 0x20000\ns_cmp_eq_u32 s{sMb}, 7\ns_cselect_b32 s{sZ+2}, 0, s{sWS+2}")
    k.e(f"s_lshl_b32 s35, s{sH}, 7\ns_add_u32 s35, s35, s31\ns_lshl_b32 s35, s35, 10")
    if var == 0:
        k.e(f"s_lshl_b32 s37, s{sH}, 1\ns_add_u32 s37, s37, s{sWc_}\ns_sub_u32 s37, s37, 1\ns_lshl_b32 s37, s37, 16\ns_lshl_b32 s38, s31, 9\ns_add_u32 s37, s37, s38\ns_add_u32 s{sSo}, s37, {hex(WS_V)}")
        k.e(f"s_lshl_b32 s38, s32, 10\ns_add_u32 s38, s38, {L_Q + 8}")
        k.e(f"s_lshl_b32 s39, s{sWc_}, 14\ns_lshl_b32 s40, s32, 9\ns_add_u32 s39, s39, s40\ns_add_u32 s39, s39, {L_V - 16384 + 8192}")
        k.e(f"v_and_b32 v{vS8}, 15, v0\nv_lshlrev_b32 v{vS8}, 5, v{vS8}\nv_lshrrev_b32 v{vLd}, 4, v0\nv_lshl_add_u32 v{vS8}, v{vLd}, 3, v{vS8}\nv_lshlrev_b32 v{vLd}, 4, v0")
        k.e(f"s_cmp_eq_u32 s{sWc_}, 0\ns_cselect_b32 s38, s38, s39\ns_cmov_b32 s{sZ+2}, 0")
        k.e(csel(sSs, 1024, 512))
        k.e(f"s_cselect_b64 vcc, -1, 0\nv_cndmask_b32 v{vLd}, v{vS8}, v{vLd}, vcc\nv_add_u32 v{vLd}, s38, v{vLd}")
    else:
        k.e(f"s_add_u32 s{sSo}, s35, {hex(WS_K)}\nv_lshlrev_b32 v{vS8}, 4, v0")
        k.e(f"s_lshl_b32 s38, s32, 10\ns_add_u32 s39, s38, {L_K + 16*1024}\nv_add_u32 v{vLd}, s39, v{vS8}")
        k.e(f"s_add_u32 s39, s38, {L_Q}\nv_add_u32 v{vLd+1}, s39, v{vS8}")
    k.e(f"v_lshlrev_b32 v{(vHa0,vHb0)[var]}, 4, v0\nv_mov_b32 v{(vHb0,vHa0)[var]}, 0x7fff0000\ns_add_u32 s{sHo}, s{sHo}, {7*144*1024}")
    if Opt.sprio: k.e("s_setprio 2")
    r = Rec()
    for i in range(8): r.e(f"v_rcp_f32 v{RR+2*(i//2)+(i&1)}, v{STA+2*i+1}")
    for i in range(8):
        if var == 0:
            o = single(r, i, 4)
            r.ds(f"ds_write_b64 v{vLd}, {vr(o,2)}", "W")
            r.vmem(f"buffer_store_dwordx2 {vr(o,2)}, v{vS8}, {sr(sZ,4)}, s{sSo} offen sc1", "KV")
            r.e(f"s_add_u32 s{sSo}, s{sSo}, s{sSs}\nv_add_u32 v{vLd}, s{sSs}, v{vLd}")
        else:
            o = single(r, i, 2); single(r, i, 3, o + 2)
            r.ds(f"ds_write_b128 v{vLd}, {vr(o,4)} offset:{i*1024}", "W")
            r.vmem(f"buffer_store_dwordx4 {vr(o,4)}, v{vS8}, {sr(sZ,4)}, s{sSo} offen sc1", "KV")
            r.e(f"s_add_u32 s{sSo}, s{sSo}, 1024")
    if var == 1:
        for i in range(8):
            o = single(r, i, 4)
            r.ds(f"ds_write_b64 v{vLd+1}, {vr(o,2)} offset:{i*1024}", "W")
    schedule(k, r, window=Opt.win)
    if Opt.sprio: k.e("s_setprio 0")
    stamp(k, "single")
    r = Rec()
    for n, i in enumerate(range(7, -1, -1)):
        o = HOLD + 4 * i
        if var == 0: geglu(r, i, [(0, 1), (2, 3)], [o, o + 2])
        else: geglu(r, i, [(0, 1)], [o])
        if n >= Opt.hstart:
            for x in range(Opt.hpace):
                if hq[0] < 2 * (n + 1): h_store(r)
        if n in (Opt.kvbar, Opt.kvpoll, Opt.kvget, 7):
            schedule(k, r, window=Opt.win)
            r = Rec()
        if n == Opt.kvbar:
            stamp(k, "kvb0")
            barrier(k, {"KV"})
            stamp(k, "kvb1")
            wg_flag(k, F_KV, vLd)
        if n == Opt.kvpoll: kv_flag_load(k)
        if n == Opt.kvget:
            stamp(k, "kvp0")
            fetch_kv(k)
    stamp(k, "geglu")

HOLD, vHa, vHb = 224, 14, 15
vHa0, vHb0, vFK = 42, 43, 44
hq = [0]
hv = [None]
def h_store(k):
    n = hq[0]
    if n >= 16: return
    hq[0] += 1
    i, hf = 7 - n // 2, n % 2
    if hv[0] in (None, hf):
        va, vb = (vHa, vHb) if hv[0] is None else (vHa0, vHb0)
        if hf == 0: k.vmem(f"buffer_store_dwordx4 {vr(HOLD+4*i,4)}, v{va}, {sr(sWS,4)}, s{sHo} offen {Opt.hst}", "H")
        else: k.vmem(f"buffer_store_dwordx2 {vr(HOLD+4*i,2)}, v{vb}, {sr(sWS,4)}, s{sHo} offen {Opt.hst}", "H")
    if hf: k.e(f"s_sub_u32 s{sHo}, s{sHo}, {144*1024}")

vFKd = 185
def kv_flag_load(k):
    k.e(f"s_lshl_b32 s35, s{sMb}, 12\ns_lshl_b32 s{sV}, s{sH}, 7\ns_add_u32 s35, s35, s{sV}\ns_add_u32 s35, s35, {hex(WS_F+F_KV-4096)}")
    k.vmem(f"buffer_load_dword v{vFKd}, off, {sr(sWS,4)}, s35 sc1", "FK")

def fetch_kv(k):
    t = 45
    n = len(k.vm) - 1 - k.vm.index("FK")
    def body(c):
        ok = lab(c, "kvok")
        c.e(f"s_cmp_eq_u32 s{sMb}, 0\ns_cselect_b32 s{sZ+2}, 0, s{sWS+2}\ns_cbranch_scc1 {ok}")
        c.e(f"s_waitcnt vmcnt({n})\nv_cmp_ne_u32 vcc, s{sNon}, v{vFKd}\nv_mov_b32 v{t}, 0\ns_nop 0\ns_cbranch_vccz {ok}")
        poll(c, t, vFKd, 35, "pkv")
        c.label(ok)
        c.e(f"v_lshlrev_b32 v{t}, 4, v0\ns_lshl_b32 s33, s{sW}, 12")
        c.e(f"s_lshl_b32 s31, s{sH}, 7\ns_lshl_b32 s32, s{sMb}, 4\ns_add_u32 s31, s31, s32\ns_lshl_b32 s31, s31, 10\ns_add_u32 s31, s31, s33\ns_add_u32 s31, s31, {hex(WS_K - 16*1024)}")
        c.e(f"s_lshr_b32 s34, s{sW}, 1\ns_lshl_b32 s32, s{sH}, 1\ns_add_u32 s32, s32, s34\ns_lshl_b32 s32, s32, 16\ns_lshl_b32 s36, s{sMb}, 13\ns_add_u32 s32, s32, s36")
        c.e(f"s_and_b32 s36, s33, 4096\ns_add_u32 s32, s32, s36\ns_add_u32 s32, s32, {hex(WS_V - 8192)}\ns_lshl_b32 s34, s34, 14\ns_add_u32 s34, s34, s36")
        for so, mo, base in ((31, 33, L_K), (32, 34, L_V)):
            c.e(f"s_add_u32 m0, s{mo}, {base}")
            for q in range(4): c.e(f"buffer_load_dwordx4 v{t}, {sr(sZ,4)}, s{so} offen offset:{q*1024}{Opt.hsc} lds")
    ool(k, f"s_cmp_lt_u32 s{sW}, 4", body, "kv")
    k.vm.append("NKV")

KV, V16, K16, S0, P8, QC, O0, ONES, LS = 16, 80, 88, 92, 160, 164, 168, 176, 180
vKa, vVa, vM, vT, vC, vNeg, vSum, vQa, vO8 = 2, 3, 5, 6, 184, 186, 188, 4, 7
vRc = 186
sN, sOo = 34, 35
Q2 = 192
MK = [96, 98, 100, 32]
def S(t): return S0 + 4 * t
def kreg(t): return K16 if t == 16 else KV + 4 * t
V2 = 192
def vreg(db, t, blk=0):
    if blk and Opt.pre5: return V2 + 32 * db + 2 * t
    return (V16 + 4 * db) if t == 16 else KV + 8 * (t >> 1) + 4 * db + 2 * (t & 1)
def k_read(k, t):
    k.ds(f"ds_read_b128 {vr(kreg(t),4)}, v{vKa} offset:{t*1024}", ("K", t))
def v_read(k, db, t, blk=0):
    d = vreg(db, t) if t == 16 else vreg(db, t, blk)
    k.ds(f"ds_read_b64_tr_b16 {vr(d,2)}, v{vVa} offset:{db*16384 + t*512}", ("V", t >> 1))

def attn_block(kk, blk, hook0):
    k = Rec()
    def hook(k, n):
        if Opt.aprio == (blk, n): k.e("s_setprio 0")
        if n in Opt.cut[min(blk, 1)]:
            schedule(kk, k, window=Opt.awin)
            k.ops = []
            if Opt.warmattn:
                sk = lab(kk, "wa")
                kk.e(f"s_cmp_eq_u32 s95, 1\ns_cbranch_scc1 {sk}")
            hook0(kk, n)
            if Opt.warmattn: kk.label(sk)
    mf = lambda d, a_, b_, c: k.e(f"v_mfma_f32_16x16x32_bf16 {vr(d,4)}, {vr(a_,4)}, {vr(b_,4)}, {c}")
    early = Opt.pre5 and blk == 1
    def v_all(lo, hi):
        for u in range(lo, 0 if early else hi):
            for db in range(2):
                for tt in (2 * u, 2 * u + 1): v_read(k, db, tt)
    pre = blk == 0 or (Opt.ov and blk == 1)
    if blk >= 1: kk.need_lgkm({("K", 13)})
    for t in range(17):
        mf(S(t), kreg(t), QC, 0)
        if t == 16 - Opt.vearly and not early:
            for db in range(2): v_read(k, db, 16)
        if t > 16 - Opt.vearly and t % 2 == 1: v_all((t - 17 + Opt.vearly) // 2, (t - 17 + Opt.vearly) // 2 + 1)
        if t % 4 == 3:
            for x in range(Opt.hS): h_store(k)
    k.e(f"v_add_u32 v{vKa}, 1024, v{vKa}")
    if blk == 0:
        k.ds(f"ds_read_b128 {vr(QC,4)}, v{vQa} offset:1024", "Q")
        if Opt.ov: k.ds(f"ds_read_b128 {vr(Q2,4)}, v{vQa} offset:2048", "Q")
    elif pre:
        for r in range(4): k.e(f"v_mov_b32 v{QC+r}, v{Q2+r}")
    if pre: k_read(k, 16)
    hook(k, 0)
    def mask(c):
        md = lab(c, "maskd")
        c.e("s_nop 7")
        for t in range(16):
            for r in range(4): c.e(f"v_mov_b32 v{S(t)+r}, {f32hex(-1e30)}")
            if t < 15: c.e(f"s_cmp_eq_u32 s{sN}, {t+1}\ns_cbranch_scc1 {md}")
        c.label(md)
        c.e(f"s_sub_u32 s{sN}, s{sN}, 1")
    ool(kk, f"s_cmp_lg_u32 s{sN}, 0", mask, "mk")
    v_all(Opt.vearly // 2, 8)
    k.e(f"v_add_u32 v{vVa}, 512, v{vVa}")
    vals = [S(t) + r for t in range(1, 16) for r in range(4)]
    M4 = [vM, vT, vNeg, vNeg + 1]
    for x in range(4): k.e(f"v_max3_f32 v{M4[x]}, v{vals[3*x]}, v{vals[3*x+1]}, v{vals[3*x+2]}")
    rest = vals[12:]
    for n in range(0, len(rest), 2):
        d = M4[(n // 2) % 4]
        k.e(f"v_max3_f32 v{d}, v{d}, v{rest[n]}, v{rest[n+1]}")
        if n == 24: h_store(k)
    for r in range(4): k.e(f"v_cndmask_b32 v{S(0)+r}, v{S(0)+r}, v{S(16)+r}, {sr(MK[r],2)}")
    k.e(f"v_max3_f32 v{vM}, v{vM}, v{S(0)}, v{S(0)+1}\nv_max3_f32 v{vT}, v{vT}, v{S(0)+2}, v{S(0)+3}")
    k.e(f"v_max3_f32 v{vM}, v{vM}, v{vNeg}, v{vNeg+1}\nv_max_f32 v{vM}, v{vM}, v{vT}")
    for p in ("v_permlane16_swap_b32", "v_permlane32_swap_b32"):
        k.e(f"v_mov_b32 v{vT}, v{vM}\n{p} v{vM}, v{vT}\nv_max_f32 v{vM}, v{vM}, v{vT}")
    k.e(f"v_mul_f32 v{vNeg}, v{vC}, v{vM}\nv_sub_f32 v{vNeg}, 0, v{vNeg}")
    hook(k, 1)
    def A(t):
        for hf in (0, 2): k.e(f"v_pk_fma_f32 {vr(S(t)+hf,2)}, {vr(S(t)+hf,2)}, {vr(vC,2)}, {vr(vNeg,2)} op_sel_hi:[1,0,0]")
    def B(t):
        for r in range(4): k.e(f"v_exp_f32 v{S(t)+r}, v{S(t)+r}")
    def pv(vt, p, first):
        for db in range(2): mf(O0 + 4 * db, vt(db), p, 0 if first else vr(O0 + 4 * db, 4))
        if Opt.msum: mf(LS, ONES, p, 0 if first else vr(LS, 4))
    def C(t):
        s_ = S(t)
        if not Opt.msum:
            for hf in (0, 2):
                if t == 0: k.e(f"v_mov_b32 v{vSum+hf}, v{s_+hf}\nv_mov_b32 v{vSum+hf+1}, v{s_+hf+1}")
                else: k.e(f"v_pk_add_f32 {vr(vSum+hf,2)}, {vr(vSum+hf,2)}, {vr(s_+hf,2)}")
        if t == 0:
            e = S(16)
            for r in range(4): k.e(f"v_cndmask_b32 v{e+r}, 0, v{s_+r}, {sr(MK[r],2)}")
            for r in range(4): k.e(f"v_cndmask_b32 v{s_+r}, v{s_+r}, 0, {sr(MK[r],2)}")
            k.e(f"v_cvt_pk_bf16_f32 v{P8}, v{e}, v{e+1}\nv_cvt_pk_bf16_f32 v{P8+1}, v{e+2}, v{e+3}")
        p = S(t & ~1) + 2 * (t & 1)
        k.e(f"v_cvt_pk_bf16_f32 v{p}, v{s_}, v{s_+1}\nv_cvt_pk_bf16_f32 v{p+1}, v{s_+2}, v{s_+3}")
    def D(u):
        k.need_lgkm({("V", u)})
        pv(lambda db: vreg(db, 2 * u, blk), S(2 * u), False)
        if pre:
            k_read(k, 2 * u); k_read(k, 2 * u + 1)
        if Opt.pre5 and blk == 0:
            x = 2 * u
            for y in (x, x + 1):
                db, t0 = divmod(y * 2, 16)
                if db == 1:
                    while hq[0] < 16: h_store(k)
                v_read(k, db, t0, 1); v_read(k, db, t0 + 1, 1)
    A(0); A(1); B(0)
    for t in range(1, 18):
        if t + 1 < 16: A(t + 1)
        if t < 16: B(t)
        if t == 2:
            k.need_lgkm({("V", 8)})
            pv(lambda db: V16 + 4 * db, P8, True)
            if Opt.pre5 and blk == 0:
                for db in range(2): v_read(k, db, 16)
        if t >= 3 and t % 2 == 1: D((t - 3) // 2)
        if t - 1 < 16: C(t - 1)
        if t % 2 == 0:
            for x in range(Opt.hE): h_store(k)
        if t in (6, 12): hook(k, 2 + (t == 12))
    if Opt.msum:
        k.e(f"v_rcp_f32 v{vRc}, v{LS}")
    else:
        k.e(f"v_pk_add_f32 {vr(vSum,2)}, {vr(vSum,2)}, {vr(vSum+2,2)}\nv_add_f32 v{vSum}, v{vSum}, v{vSum+1}")
        for p in ("v_permlane16_swap_b32", "v_permlane32_swap_b32"):
            k.e(f"v_mov_b32 v{vT}, v{vSum}\n{p} v{vSum}, v{vT}\nv_add_f32 v{vSum}, v{vSum}, v{vT}")
        k.e(f"v_rcp_f32 v{vRc}, v{vSum}")
    while hq[0] < 16: h_store(k)
    for x in range(4): k.e(f"v_pk_mul_f32 {vr(O0+2*x,2)}, {vr(O0+2*x,2)}, {vr(vRc,2)} op_sel_hi:[1,0]")
    for x in range(4): k.e(f"v_cvt_pk_bf16_f32 v{S(16)+x}, v{O0+2*x}, v{O0+2*x+1}")
    hook(k, 4)
    kk.vmem(f"buffer_store_dwordx4 {vr(S(16),4)}, v{vO8}, {sr(sWS,4)}, s{sOo} offen {Opt.hst}", "O")
    kk.e(f"s_add_u32 s{sOo}, s{sOo}, {144*1024}")

def wg_flag(k, base, vt):
    sk = lab(k, "wf")
    k.e(f"s_cmp_lg_u32 s{sW}, 0\ns_cbranch_scc1 {sk}")
    k.e(f"s_lshl_b32 s{sU}, s{sMb}, 12\ns_lshl_b32 s{sV}, s{sH}, 7\ns_add_u32 s{sU}, s{sU}, s{sV}\ns_add_u32 s{sU}, s{sU}, {hex(WS_F+base)}")
    flag_store(k, vt, sU)
    k.label(sk)

def phase_c(k):
    k.e(f"v_mov_b32 v{vHa}, v{vHa0}\nv_mov_b32 v{vHb}, v{vHb0}")
    k.e(f"v_lshlrev_b32 v{vO8}, 4, v0\nv_lshlrev_b32 v{vVa}, 3, v0")
    if Opt.ov: k.e(f"s_mul_i32 s31, s{sW}, 3\ns_sub_u32 s31, s31, 8\ns_cmp_lt_u32 s{sW}, 4\ns_cmov_b32 s31, s{sW}")
    else: k.e(f"s_lshl_b32 s31, s{sW}, 1")
    k.e(f"s_lshl_b32 s{sOo}, s{sMb}, 4\ns_add_u32 s{sOo}, s{sOo}, s31\ns_mul_i32 s{sOo}, s{sOo}, 144")
    k.e(f"s_add_u32 s{sOo}, s{sOo}, s{sH}\ns_add_u32 s{sOo}, s{sOo}, 112\ns_lshl_b32 s{sOo}, s{sOo}, 10")
    k.e(f"s_sub_u32 s{sN}, 16, s31\ns_cmp_eq_u32 s{sMb}, 0\ns_cselect_b32 s{sN}, s{sN}, 0")
    k.e(f"s_lshl_b32 s31, s31, 10\ns_add_u32 s36, s31, {L_K}\nv_lshlrev_b32 v{vQa}, 4, v0\nv_add_u32 v{vKa}, s36, v{vQa}")
    k.e(f"s_add_u32 s36, s31, {L_Q}\nv_add_u32 v{vQa}, s36, v{vQa}")
    if Opt.aprio is not None:
        sk = lab(k, "ap")
        k.e(f"s_cmp_lt_u32 s{sW}, 4\ns_cbranch_scc1 {sk}\ns_setprio 1")
        k.label(sk)
    k.e(f"s_lshr_b32 s31, s31, 1\ns_add_u32 s36, s31, {L_V}\nv_add_u32 v{vVa}, s36, v{vVa}")
    k.e(f"v_and_b32 v{vM}, 15, v0\nv_lshrrev_b32 v{vT}, 4, v0\nv_lshlrev_b32 v{vT}, 2, v{vT}")
    for r in range(4):
        k.e(f"v_cmp_le_u32 {sr(MK[r],2)}, v{vT}, v{vM}")
        if r < 3: k.e(f"v_add_u32 v{vT}, 1, v{vT}")
    k.e(f"v_mov_b32 v{vC}, {f32hex(math.log2(math.e) / math.sqrt(32.0))}")
    for r in (V16 + 2, V16 + 3, V16 + 6, V16 + 7, P8 + 2, P8 + 3): k.e(f"v_mov_b32 v{r}, 0")
    for r in range(4): k.e(f"v_mov_b32 v{ONES+r}, 0x3f803f80")

sGo = 36
def g2_start_hooks(k, n):
    vF, vFd = 13, 1
    def issue(c):
        stamp(c, "Hrdy")
        if Opt.q5:
            for text, tag in q5_a_dma(0, None): c.e(text)
            if Opt.kfree:
                for text, tag in q5_b_dma(QS, None) + q5_a_dma(QS, None): c.e(text)
        for st in ((0, 1, 4, 2, 3) if Opt.pre5 else (0, 1, 4, 2) if Opt.pre4 else (0, 1, 4) if Opt.pre3 else range(0 if Opt.q5 else 1 if Opt.q4 else 2)):
            for text, tag in g2_a_dma(st * SLOT, None): c.e(text)
        c.e(f"s_mov_b32 s{sGo}, 1")
    if n == Opt.w2hook:
        k.e(f"s_mov_b32 s{sId2}, s2\ns_lshr_b32 s{sGo}, s{sW}, 2\ns_xor_b32 s{sGo}, s{sGo}, 1")
        if Opt.q4: k.e(f"s_mov_b32 s{sGo}, 0")
        def body(c):
            if Opt.q4:
                q4_setup(c)
                for text, tag in q4_b_dma(0, None): c.e(text)
            elif Opt.q5:
                q5_setup(c)
                for text, tag in q5_b_dma(0, None): c.e(text)
            else:
                g2_loader_setup(c)
                for st in ((0, 1, 4, 2, 3) if Opt.pre5 else (0, 1, 4, 2) if Opt.pre4 else (0, 1, 4) if Opt.pre3 else (0, 1)):
                    for text, tag in g2_b_dma(st, None): c.e(text)
                    c.e(f"s_add_u32 s{g2KB}, s{g2KB}, {64*2048}")
            c.e(f"v_and_b32 v{vF}, 31, v0\ns_lshr_b32 s{sU}, s{g2Mt}, {0 if Opt.q4 or Opt.q5 else 1}\ns_lshl_b32 s{sU}, s{sU}, 5\nv_add_u32 v{vF}, s{sU}, v{vF}")
            c.e(f"s_lshl_b32 s{sU}, s{sMb}, 5\ns_add_u32 s{sU}, s{sU}, s{sH}\nv_cmp_eq_u32 vcc, s{sU}, v{vF}\nv_lshlrev_b32 v{vF}, 7, v{vF}")
            c.e(f"v_add_u32 v{vFd}, {F_H - F_KV}, v{vF}\nv_cndmask_b32 v{vF2}, v{vFd}, v{vF}, vcc")
        ool(k, f"s_cmp_eq_u32 s{sGo}, 0", body, "w2")
    load = f"s_mov_b32 s{sU}, {hex(WS_F+F_KV)}\nbuffer_load_dword v{vFd}, v{vF2}, {sr(sWS,4)}, s{sU} offen sc1"
    if n == Opt.fhook: ool(k, f"s_cmp_eq_u32 s{sGo}, 0", lambda c: c.e(load), "hl")
    if n in Opt.phooks:
        younger = len(k.vm)
        def body(c):
            no, bk = lab(c, "hno"), lab(c, "hbk")
            c.e(f"s_waitcnt vmcnt(0)\nv_cmp_ne_u32 vcc, s{sNon}, v{vFd}\ns_nop 1\ns_cbranch_vccnz {no}")
            issue(c)
            c.e(f"s_branch {bk}")
            c.label(no)
            c.e(load)
            c.label(bk)
        ool(k, f"s_cmp_eq_u32 s{sGo}, 0", body, "hp")
    if n == 4:
        def body(c):
            ok = lab(c, "hok")
            c.e(f"s_waitcnt vmcnt(0)\nv_cmp_ne_u32 vcc, s{sNon}, v{vFd}\ns_nop 1\ns_cbranch_vccz {ok}")
            poll(c, vF2, vFd, sU, "ph")
            c.label(ok)
            issue(c)
        ool(k, f"s_cmp_eq_u32 s{sGo}, 0", body, "hg")
vF2 = 15

def phase_c2(k):
    hv[0] = None
    stamp(k, "at0")
    k.ds(f"ds_read_b128 {vr(QC,4)}, v{vQa}", "Q")
    for t in range(17): k_read(k, t)
    def hook0(k, n):
        stamp(k, f"a0h{n}")
        if n == Opt.hhook:
            assert hq[0] == 16
            k.need_lgkm({"Q"})
            if Opt.pre4:
                assert n == 4
                k.need_lgkm({("K", 15), ("V", 7)})
            k.e("s_waitcnt vmcnt(0)"); stamp(k, "hdrain"); k.e("s_barrier"); k.vm = []
            stamp(k, "hbar")
            wg_flag(k, F_H, vT)
            if Opt.hre:
                k.e(f"v_lshrrev_b32 v197, 3, v0\nv_add_u32 v197, 1, v197\nv_mul_u32_u24 v197, {144*1024}, v197\nv_and_b32 v198, 7, v0\nv_lshl_add_u32 v197, v198, 7, v197\nv_add_u32 v197, 56, v197")
                k.e(f"s_and_b32 s{sU}, s{sHo}, 0xfffffc00\nbuffer_load_dwordx4 v[200:203], v197, {sr(sWS,4)}, s{sU} offen")
        if Opt.ov: g2_start_hooks(k, n)
    attn_block(k, 0, hook0)
    if not Opt.ov:
        def hook1(k, n):
            stamp(k, f"a1h{n}")
            if Opt.q5 and Opt.kfree and n == 1: k.e("s_barrier")
            g2_start_hooks(k, n)
        attn_block(k, 1, hook1)
    stamp(k, "attn")

g2Hs, g2Bs, g2Xs, g2Os = 24, 16, 8, 12
g2KA, g2KB, g2MA, g2MB, g2Mt, g2Nt, g2Half = 87, 88, 89, 92, 20, 21, 22
g2Wr, g2Rd, g2D, g2Loop, g2T2, g2w = 28, 29, 30, 31, 32, 33
g2DB = 8
g2L16, g2A, g2X, g2B, g2A2 = 12, 1, 3, 4, 2
FR0, SETSZ, ACC2, XR = 16, 64, 144, 208
SLOT = 32768
def afr2(p, i, kk): return FR0 + p * SETSZ + (i * 2 + kk) * 4
def bfr2(p, b, kk): return FR0 + p * SETSZ + 32 + (b * 2 + kk) * 4
def acc2(i, b): return ACC2 + (i * 4 + b) * 4

def g2_ids(k):
    if Opt.g2map == 1:
        k.e(f"s_and_b32 s{sU}, s{sId2}, 7\ns_lshr_b32 s{sV}, s{sId2}, 3\ns_and_b32 s{g2Half}, s{sU}, 1")
        k.e(f"s_lshr_b32 s{g2Mt}, s{sU}, 2\ns_lshl_b32 s{g2Mt}, s{g2Mt}, 3\ns_bfe_u32 s{g2Nt}, s{sU}, 0x10001\ns_lshl_b32 s{g2Nt}, s{g2Nt}, 2")
        k.e(f"s_and_b32 s{sU}, s{sV}, 7\ns_add_u32 s{g2Mt}, s{g2Mt}, s{sU}\ns_lshr_b32 s{sV}, s{sV}, 3\ns_add_u32 s{g2Nt}, s{g2Nt}, s{sV}")
        return
    k.e(f"s_and_b32 s{sU}, s{sId2}, 7\ns_lshr_b32 s{sV}, s{sId2}, 3\ns_and_b32 s{g2Half}, s{sU}, 1")
    k.e(f"s_lshr_b32 s{g2Mt}, s{sU}, 1\ns_lshl_b32 s{g2Mt}, s{g2Mt}, 2\ns_and_b32 s{sU}, s{sV}, 3\ns_add_u32 s{g2Mt}, s{g2Mt}, s{sU}\ns_lshr_b32 s{g2Nt}, s{sV}, 2")

def g2_loader_setup(k):
    g2_ids(k)
    k.e(f"s_and_b32 s{sU}, s{sW}, 3")
    k.e(f"s_lshl_b32 s{g2KA}, s{g2Mt}, 3\ns_lshl_b32 s{sV}, s{sU}, 1\ns_add_u32 s{g2KA}, s{g2KA}, s{sV}\ns_mul_i32 s{g2KA}, s{g2KA}, 144")
    hs = 28 if Opt.ov else 36
    k.e(f"s_mul_i32 s{sV}, s{g2Half}, {2*hs}\ns_add_u32 s{g2KA}, s{g2KA}, s{sV}\ns_lshl_b32 s{g2KA}, s{g2KA}, 10")
    k.e(f"s_mul_i32 s{g2KB}, s{g2Half}, {hs*64*2048}")
    k.e(f"s_lshl_b32 s{g2MA}, s{sU}, 12\ns_lshl_b32 s{g2MB}, s{sU}, 10\ns_add_u32 s{g2MB}, s{g2MB}, 16384")
    k.e(f"v_lshrrev_b32 v{g2DB}, 4, v0\nv_and_b32 v{g2DB+1}, 15, v0\ns_and_b32 s{sV}, s{sU}, 1\ns_lshl_b32 s{sV}, s{sV}, 2")
    k.e(f"v_add_u32 v{g2DB+2}, s{sV}, v{g2DB}\nv_lshlrev_b32 v{g2DB+2}, 1, v{g2DB+2}\nv_xor_b32 v{g2DB+1}, v{g2DB+1}, v{g2DB+2}")
    k.e(f"v_lshlrev_b32 v{g2DB+1}, 4, v{g2DB+1}\nv_lshl_add_u32 v{g2DB}, v{g2DB}, 11, v{g2DB+1}")
    k.e(f"s_lshl_b32 s{sU}, s{sU}, 13\ns_lshl_b32 s{sV}, s{g2Nt}, 8\ns_add_u32 s{sU}, s{sU}, s{sV}\nv_add_u32 v{g2DB}, s{sU}, v{g2DB}")
    for i in range(1, 4): k.e(f"v_add_u32 v{g2DB+i}, {i*16*2048}, v{g2DB}")
    k.e(f"v_lshlrev_b32 v{g2L16}, 4, v0")
    srd(k, g2Bs, pD, 3584 * 2048)

def g2_a_dma(base_sgpr_or_imm, tag):
    h = Opt.hsc
    return [(f"s_add_u32 m0, s{g2MA}, {base_sgpr_or_imm}", None),
            (f"buffer_load_dwordx4 v{g2L16}, {sr(g2Hs,4)}, s{g2KA} offen{h} lds", tag),
            (f"buffer_load_dwordx4 v{g2L16}, {sr(g2Hs,4)}, s{g2KA} offen offset:1024{h} lds", tag),
            (f"s_add_u32 s{sT}, s{g2KA}, {144*1024}\ns_add_u32 m0, m0, 2048", None),
            (f"buffer_load_dwordx4 v{g2L16}, {sr(g2Hs,4)}, s{sT} offen{h} lds", tag),
            (f"buffer_load_dwordx4 v{g2L16}, {sr(g2Hs,4)}, s{sT} offen offset:1024{h} lds", tag),
            (f"s_add_u32 s{g2KA}, s{g2KA}, {0 if 'a' in Opt.g2fix else 2048}", None)]

def emit2(k, items):
    for text, tag in items:
        if tag is None: k.e(text)
        elif text.startswith("ds_"): k.ds(text, tag)
        else: k.vmem(text, tag)

def nxt_slot(d, x):
    return (f"s_add_u32 s{d}, s{x}, {SLOT}\ns_cmp_eq_u32 s{x}, {SLOT}\ns_cmov_b32 s{d}, {4*SLOT}\ns_cmp_eq_u32 s{x}, {4*SLOT}\ns_cmov_b32 s{d}, {2*SLOT}"
            f"\ns_cmp_eq_u32 s{x}, {3*SLOT}\ns_cmov_b32 s{d}, 0")

def g2_step_dma(k, tag, three=False):
    if 'A' not in Opt.g2fix: emit2(k, g2_a_dma(f"s{g2Wr}", tag))
    for i in range(0 if 'B' in Opt.g2fix else 4):
        k.e(f"s_add_u32 m0, s{g2MB}, s{g2Wr}" if i == 0 else "s_add_u32 m0, m0, 4096")
        k.vmem(f"buffer_load_dwordx4 v{g2DB+i}, {sr(g2Bs,4)}, s{g2KB} offen{Opt.wsc} lds", tag)
    if Opt.pre3:
        k.e(f"s_add_u32 s{g2KB}, s{g2KB}, {64*2048}\n" + nxt_slot(sT, g2Wr) + f"\ns_mov_b32 s{g2Wr}, s{sT}")
        return
    k.e(f"s_add_u32 s{g2KB}, s{g2KB}, {0 if 'b' in Opt.g2fix else 64*2048}\ns_add_u32 s{g2Wr}, s{g2Wr}, {SLOT}\ns_cmp_eq_u32 s{g2Wr}, {Opt.NS*SLOT}\ns_cselect_b32 s{g2Wr}, 0, s{g2Wr}")
    if three: k.e(f"s_cmp_eq_u32 s{g2Wr}, {2*SLOT}\ns_cmov_b32 s{g2Wr}, {4*SLOT}")

g2Pf, g2PfO, g2PfS, vPf2 = 48, 0, 1, 15
def g2_pf_setup(k):
    k.e(f"s_and_b32 s{sU}, s{g2Mt}, 3\ns_lshl_b32 s{sU}, s{sU}, 15\ns_lshl_b32 s{sV}, s{g2Nt}, 8\ns_add_u32 s{sU}, s{sU}, s{sV}")
    k.e(f"v_bfe_u32 v16, v0, 1, 4\nv_lshlrev_b32 v16, 11, v16\nv_lshrrev_b32 v17, 5, v0\nv_lshl_add_u32 v16, v17, 17, v16\nv_and_b32 v17, 1, v0\nv_lshl_add_u32 v16, v17, 7, v16\nv_add_u32 v16, s{sU}, v16")
    k.e(f"s_mul_i32 s{sU}, s{g2Nt}, {144*1024}\nv_and_b32 v17, 31, v0\nv_lshlrev_b32 v17, 7, v17\nv_add_u32 v17, s{sU}, v17")
    k.e(f"s_cmp_eq_u32 s{sW}, 4\ns_cselect_b64 vcc, -1, 0\nv_cndmask_b32 v{vPf2}, v17, v16, vcc\nv_add_u32 v{vPf2}, 56, v{vPf2}")

def g2_pf(k):
    D = Opt.g2pd
    k.e(f"s_mul_i32 s{sV}, s{sW}, {2*144*1024}\ns_sub_u32 s{sV}, s{g2KA}, s{sV}\ns_add_u32 s{sV}, s{sV}, {8*144*1024 + D*2048}")
    k.e(f"s_add_u32 s{g2PfO}, s{g2KB}, {D*64*2048}\ns_cmp_eq_u32 s{sW}, 4\ns_cselect_b32 s{g2PfO}, s{g2PfO}, s{sV}")
    k.e(f"s_cselect_b32 s{g2Pf}, s{g2Bs}, s{g2Hs}\ns_cselect_b32 s{g2Pf+1}, s{g2Bs+1}, s{g2Hs+1}\ns_cselect_b32 s{g2Pf+2}, s{g2Bs+2}, s{g2PfS}\ns_mov_b32 s{g2Pf+3}, 0x20000")
    k.e(f"buffer_load_dwordx4 v[20:23], v{vPf2}, {sr(g2Pf,4)}, s{g2PfO} offen")

def g2_loader(k):
    NS, N = Opt.NS, 36
    assert NS == 5
    vF, vFd = 13, 1
    k.vm = [("D", 0)] * 4 + [("D", 1)] * 4 + ([("D", 2)] * 4 if Opt.pre3 else []) + ([("D", 3)] * 4 if Opt.pre4 else []) + ([("D", 4)] * 4 if Opt.pre5 else []) + [("O", 0)]
    if Opt.g2pd:
        g2_pf_setup(k)
        k.e(f"s_cmp_eq_u32 s{sW}, 5\ns_cselect_b32 s{g2PfS}, s{g2Hs+2}, 0")
        if not Opt.g2pa: k.e(f"s_mov_b32 s{g2PfS}, 0")
    if Opt.c4:
        k.need_vm({("D", 1)})
        k.e(f"s_barrier\ns_mov_b32 s{g2Wr}, 0\ns_mov_b32 s{g2Loop}, 0\ns_cmp_eq_u32 s{g2Half}, 0")
        k.e(csel(g2D, 1000, 14))
        k.e(f"s_mov_b32 s{sU}, {hex(WS_F+F_O)}\ns_waitcnt vmcnt(0)")
        lp = lab(k, "ll")
        k.label(lp)
        k.e("s_barrier")
        g2_step_dma(k, "D")
        def switch(c):
            ok = lab(c, "sok")
            c.e(f"v_cmp_ne_u32 vcc, s{sNon}, v{vFd}\ns_nop 1\ns_cbranch_vccz {ok}")
            poll(c, vF, vFd, sU, "po")
            c.label(ok)
            c.e(f"s_mov_b32 s{g2Bs}, s{pWo}\ns_mov_b32 s{g2Bs+1}, s{pWo+1}\ns_mov_b32 s{g2Bs+2}, {1024*2048}\ns_mov_b32 s{g2KB}, 0")
        ool(k, f"s_cmp_eq_u32 s{g2Loop}, s{g2D}", switch, "sw")
        ool(k, f"s_cmp_eq_u32 s{g2Loop}, 12", lambda c: c.e(f"buffer_load_dword v{vFd}, v{vF}, {sr(sWS,4)}, s{sU} offen sc1"), "of")
        g2_step_dma(k, "D")
        k.e(f"s_waitcnt vmcnt(8)\ns_add_u32 s{g2Loop}, s{g2Loop}, 2\ns_cmp_lg_u32 s{g2Loop}, 30\ns_cbranch_scc1 {lp}")
        k.e("s_barrier")
        g2_step_dma(k, "D")
        k.e("s_waitcnt vmcnt(0)\ns_barrier")
        return
    k.need_vm({("D", 0)})
    k.e("s_barrier")
    k.e(f"s_mov_b32 s{g2Wr}, {2*SLOT}")
    if Opt.pre3:
        if Opt.pre4: k.e(f"s_mov_b32 s{g2Wr}, {0 if Opt.pre5 else 3*SLOT}")
        for st in range(5 if Opt.pre5 else 4 if Opt.pre4 else 3, 5): g2_step_dma(k, ("D", st))
        k.need_vm({("D", 2) if Opt.pre4 else ("O", 0)}); k.e("s_barrier")
        g2_step_dma(k, ("D", 5))
        k.need_vm({("D", 4), ("O", 0)})
        k.vm = [("D", 3)] * 8
    else:
        for st in range(2, 4): g2_step_dma(k, ("D", st))
    if Opt.pre3: pass
    elif Opt.soft:
        k.need_vm({("O", 0)}); k.e("s_barrier")
        g2_step_dma(k, ("D", 4)); g2_step_dma(k, ("D", 5))
        k.need_vm({("D", 2)}); k.e("s_barrier")
        k.need_vm({("D", 4)})
        k.vm = [("D", 3)] * 8
    else: k.need_vm({("D", 2)})
    k.e(f"s_mov_b32 s{g2Loop}, {2 if Opt.soft or Opt.pre3 else 0}\ns_cmp_eq_u32 s{g2Half}, 0")
    k.e(csel(g2D, 1000, 16))
    k.e(f"s_mov_b32 s{sU}, {hex(WS_F+F_O)}")
    lp, ns, nf = lab(k, "ll"), lab(k, "lns"), lab(k, "lnf")
    k.label(lp)
    k.e("s_barrier")
    k.e(f"s_cmp_lg_u32 s{g2Loop}, s{g2D}\ns_cbranch_scc1 {ns}")
    k.e(f"v_cmp_ne_u32 vcc, s{sNon}, v{vFd}\ns_nop 1\ns_cbranch_vccz {nf}")
    save = list(k.vm)
    poll(k, vF, vFd, sU, "po")
    k.vm = save
    k.label(nf)
    k.e(f"s_mov_b32 s{g2Bs}, s{pWo}\ns_mov_b32 s{g2Bs+1}, s{pWo+1}\ns_mov_b32 s{g2Bs+2}, {1024*2048}\ns_mov_b32 s{g2KB}, 0")
    k.label(ns)
    if Opt.g2pd:
        k.e(f"s_add_u32 s{sV}, s{g2Loop}, {Opt.g2pd + 2}\ns_cmp_gt_u32 s{sV}, s{g2D}\ns_cmov_b32 s{g2PfS}, 0\ns_cmp_gt_u32 s{sV}, 32\ns_cmov_b32 s{g2PfS}, 0")
        g2_pf(k)
    g2_step_dma(k, ("D", 4))
    n2 = lab(k, "lnp")
    k.e(f"s_cmp_lg_u32 s{g2Loop}, 12\ns_cbranch_scc1 {n2}")
    k.e(f"buffer_load_dword v{vFd}, v{vF}, {sr(sWS,4)}, s{sU} offen sc1")
    k.label(n2)
    g2_step_dma(k, ("D", 5))
    k.need_vm({("D", 4)})
    k.e(f"s_add_u32 s{g2Loop}, s{g2Loop}, 2\ns_cmp_lg_u32 s{g2Loop}, 32\ns_cbranch_scc1 {lp}")
    k.e("s_barrier\ns_waitcnt vmcnt(0)\ns_barrier")

def g2_loader_ov(k):
    import hazard, sched
    E = sum(Opt.emb)
    assert E % 3 == 2
    vF, vFd = 13, 1
    k.e(f"s_setprio {Opt.lprio}\ns_waitcnt vmcnt(5) lgkmcnt(0)\ns_barrier")
    lg = list(k.lgkm)
    k.lgkm = []
    k.e(f"s_mov_b32 s{g2Wr}, {4*SLOT}")
    g2_step_dma(k, "D", True)
    for blk, ne in ((1, Opt.emb[0]), (2, Opt.emb[1])):
        t = Kern("tmp"); t.lgkm, t.nl, t.regtag = list(k.lgkm), k.nl, dict(k.regtag)
        attn_block(t, blk, lambda k, n: None)
        cost = [sched.cost(hazard.I(x)) if hazard.is_instr(x) else 0 for x in t.L]
        tot = sum(cost); acc_ = 0; nxt = 0
        for x, (ln, c) in enumerate(zip(t.L, cost)):
            if nxt < ne and acc_ >= tot * nxt / ne and ln.startswith("v_") and (x == 0 or not t.L[x-1].startswith("s_cmp")):
                k.e("s_waitcnt vmcnt(8)\ns_barrier")
                g2_step_dma(k, "D", True)
                nxt += 1
            k.L.append(ln); acc_ += c
        assert nxt == ne
        k.lgkm, k.nl, k.regtag = t.lgkm, t.nl, t.regtag
    stamp(k, "a1h4")
    k.e(f"s_setprio 0\ns_waitcnt vmcnt(8)\ns_barrier\ns_mov_b32 s{g2Wr}, {2*SLOT}")
    for st in range(3): g2_step_dma(k, "D")
    k.e(f"s_mov_b32 s{g2Loop}, {E+1}\ns_mov_b32 s{sU}, {hex(WS_F+F_O)}")
    lp = lab(k, "ll")
    k.label(lp)
    k.e("s_waitcnt vmcnt(24)\ns_barrier")
    def switch(c):
        ok = lab(c, "sok")
        c.e(f"s_waitcnt vmcnt({8 * (22 - Opt.ofl)})\nv_cmp_ne_u32 vcc, s{sNon}, v{vFd}\ns_nop 1\ns_cbranch_vccz {ok}")
        poll(c, vF, vFd, sU, "po")
        c.label(ok)
        c.e(f"s_mov_b32 s{g2Bs}, s{pWo}\ns_mov_b32 s{g2Bs+1}, s{pWo+1}\ns_mov_b32 s{g2Bs+2}, {1024*2048}\ns_lshl_b32 s{g2KB}, s{g2Half}, 20")
        c.e(f"s_cmp_eq_u32 s{g2Half}, 0\n" + csel(sV, 56 * 1024, 16 * 1024) + f"\ns_add_u32 s{g2KA}, s{g2KA}, s{sV}")
    ool(k, f"s_cmp_eq_u32 s{g2Loop}, 23", switch, "sw")
    g2_step_dma(k, "D")
    ool(k, f"s_cmp_eq_u32 s{g2Loop}, {Opt.ofl}", lambda c: c.e(f"buffer_load_dword v{vFd}, v{vF}, {sr(sWS,4)}, s{sU} offen sc1"), "of")
    k.e(f"s_add_u32 s{g2Loop}, s{g2Loop}, 1\ns_cmp_lg_u32 s{g2Loop}, 31\ns_cbranch_scc1 {lp}")
    for n in (24, 16, 8, 0): k.e(f"s_waitcnt vmcnt({n})\ns_barrier")

def g2_reads(p, tag):
    A = lambda x, kk: (f"ds_read_b128 {vr(afr2(p,x,kk),4)}, v{(g2A, g2A2)[x >> 1]} offset:{((x&1)*2+kk)*1024}", tag)
    B = lambda x, kk: [(f"ds_read_b64_tr_b16 {vr(bfr2(p,x,kk)+2*rd,2)}, v{g2B+x} offset:{(32*kk+16*rd)*256}", tag) for rd in range(2)]
    it = [A(0, 0)] + B(0, 0) + [A(0, 1)] + B(0, 1) + B(1, 1) + B(1, 0) + B(2, 0) + B(2, 1) + B(3, 1) + B(3, 0)
    for x in range(1, 4): it += [A(x, 0), A(x, 1)]
    return it

def g2_rot():
    NS = Opt.NS
    if Opt.pre3:
        return [nxt_slot(39, g2Rd), f"s_sub_u32 s{g2D}, s39, s{g2Rd}\ns_mov_b32 s{g2Rd}, s39",
                f"v_add_u32 v{g2A}, s{g2D}, v{g2A}\nv_add_u32 v{g2A2}, s{g2D}, v{g2A2}"] + [f"v_add_u32 v{g2B+b}, s{g2D}, v{g2B+b}" for b in range(4)]
    if Opt.ov:
        E = sum(Opt.emb)
        return [f"s_cmp_ge_u32 s{g2Loop}, {E}\n" + csel(39, 2 * SLOT, 4 * SLOT) + f"\ns_add_u32 s{g2D}, s{g2Rd}, {SLOT}",
                f"s_cmp_eq_u32 s{g2D}, {2*SLOT}\ns_cmov_b32 s{g2D}, s39\ns_cmp_eq_u32 s{g2D}, {5*SLOT}\ns_cmov_b32 s{g2D}, 0\ns_sub_u32 s39, s{g2D}, s{g2Rd}\ns_mov_b32 s{g2Rd}, s{g2D}\ns_mov_b32 s{g2D}, s39",
                f"v_add_u32 v{g2A}, s{g2D}, v{g2A}\nv_add_u32 v{g2A2}, s{g2D}, v{g2A2}"] + [f"v_add_u32 v{g2B+b}, s{g2D}, v{g2B+b}" for b in range(4)]
    return [f"s_add_u32 s{g2Rd}, s{g2Rd}, {SLOT}\ns_mov_b32 s{g2D}, {SLOT}",
            f"s_cmp_eq_u32 s{g2Rd}, {NS*SLOT}\ns_cselect_b32 s{g2Rd}, 0, s{g2Rd}\ns_cmov_b32 s{g2D}, {hex((-(NS-1)*SLOT) & 0xffffffff)}",
            f"v_add_u32 v{g2A}, s{g2D}, v{g2A}\nv_add_u32 v{g2A2}, s{g2D}, v{g2A2}"] + [f"v_add_u32 v{g2B+b}, s{g2D}, v{g2B+b}" for b in range(4)]

def g2_step(k, p, reads, extra=None, after=None, zero=False, bar=False):
    if p == 0 or Opt.ov or bar:
        k.e("s_waitcnt lgkmcnt(0)\ns_barrier"); k.lgkm = []
    seq = []
    for i in range(4):
        for n, b in enumerate(range(4) if i % 2 == 0 else range(3, -1, -1)):
            kks = (0, 1) if n % 2 == 0 else (1, 0)
            seq += [(i, b, kks[0]), (i, b, kks[1])]
    fill = {g: [] for g in range(32)}
    if reads:
        rd = g2_reads(1 - p, "R")
        for x, it in enumerate(rd): fill[(x * Opt.g2rd) // len(rd)].append(it)
        rot = g2_rot()
        fill[20].append((rot[0], None)); fill[22].append((rot[1], None))
        for x, t in enumerate(rot[2:]): fill[27 + x].append((t, None))
    for x, it in enumerate(extra or []): fill[(x * 32) // len(extra)].append(it)
    for g, (i, b, kk) in enumerate(seq):
        a = acc2(i, b)
        t = f"v_mfma_f32_16x16x32_bf16 {vr(a,4)}, {vr(bfr2(p,b,kk),4)}, {vr(afr2(p,i,kk),4)}, {0 if zero and g % 2 == 0 else vr(a,4)}"
        k.auto(t); k.e(t)
        emit2(k, fill[g])
        if g == 1 and after: after(k)

A4, B4 = 16, 80
g2Aq, g2Bq = (1, 2, 13, 14), (4, 8)
def a4(st, b, q): return A4 + ((st * 2 + b) * 4 + q) * 4
def b4(j, q): return B4 + (j * 4 + q) * 4
def c4_pair(k, pair, carry, nxt=True, zero=False, at=(), mfma=True):
    fill = {g: [] for g in range(44)}
    for g, it in carry.items(): fill[g] += it
    np_ = 1 - pair
    order = [(0, 0), (0, 1), (0, 2), (0, 3), (1, 3), (1, 2), (1, 1), (1, 0)]
    if pair == 0 or nxt:
        g0 = 8 if pair == 0 else 0
        for n, (b, q) in enumerate(order):
            fill[g0 + n].append((f"ds_read_b128 {vr(a4(np_,b,q),4)}, v{g2Aq[np_ + 2 * (q >> 1)]} offset:{(b*2+(q&1))*1024}", "A"))
        fill[g0 + 8].append((f"v_add_u32 v{g2Aq[np_]}, s{g2D}, v{g2Aq[np_]}\nv_add_u32 v{g2Aq[np_+2]}, s39, v{g2Aq[np_+2]}", None))
    if pair == 1 and nxt:
        for j in range(4):
            for n, q in enumerate((3, 2, 1, 0)):
                for rd in range(2):
                    fill[8 * j + 5 + 2 * n + rd - (1 if n == 0 else 0) + (1 if n == 0 else 0)].append(
                        (f"ds_read_b64_tr_b16 {vr(b4(j,q)+2*rd,2)}, v{g2Bq[q>>1]+j} offset:{(32*(q&1)+16*rd)*256}", "B"))
    if pair == 0:
        for j in range(4): fill[18 + j].append((f"v_add_u32 v{g2Bq[0]+j}, s{g2D}, v{g2Bq[0]+j}\nv_add_u32 v{g2Bq[1]+j}, s39, v{g2Bq[1]+j}", None))
        fill[23].append((nxt_slot(sT, 40), None))
        fill[25].append((f"s_sub_u32 s{g2D}, s{sT}, s{g2Rd}\ns_mov_b32 s{g2Rd}, s{sT}", None))
        fill[27].append((nxt_slot(sT, g2Rd), None))
        fill[29].append((f"s_sub_u32 s39, s{sT}, s40\ns_mov_b32 s40, s{sT}", None))
    g = 0
    for j in range(4):
        for b, q in (order if j % 2 == 0 else [(1 - b_, q_) for b_, q_ in order]):
            if mfma:
                a = acc2(2 * pair + b, j)
                t = f"v_mfma_f32_16x16x32_bf16 {vr(a,4)}, {vr(b4(j,q),4)}, {vr(a4(pair,b,q),4)}, {0 if zero and g % 4 == 0 else vr(a,4)}"
                k.auto(t); k.e(t)
            emit2(k, fill[g])
            for gg, fn in at:
                if gg == g: fn(k)
            g += 1
    return {g - 32: fill[g] for g in range(32, 44) if fill[g]}

def g2_compute(k):
    g2_ids(k)
    k.e(f"s_lshr_b32 s{sU}, s{sW}, 1\ns_lshl_b32 s{sV}, s{sU}, 13\nv_lshlrev_b32 v{g2L16}, 4, v0\ns_lshl_b32 s{sT}, s{g2Half}, 12\ns_add_u32 s{sV}, s{sV}, s{sT}")
    k.e(f"v_add_u32 v{g2A2}, s{sV}, v{g2L16}\nv_xor_b32 v{g2A}, 4096, v{g2A2}")
    k.e(f"v_lshrrev_b32 v8, 2, v0\nv_and_b32 v9, 7, v8\nv_lshlrev_b32 v9, 1, v9\nv_bfe_u32 v10, v0, 1, 1\nv_xor_b32 v9, v9, v10")
    k.e(f"v_lshlrev_b32 v8, 8, v8\nv_and_b32 v10, 1, v0\nv_lshl_add_u32 v8, v10, 3, v8\nv_add_u32 v8, 16384, v8")
    k.e(f"s_and_b32 s{sV}, s{sW}, 1\ns_lshl_b32 s{sV}, s{sV}, 3")
    for b in range(4): k.e(f"s_add_u32 s{sT}, s{sV}, {2*b}\nv_xor_b32 v10, s{sT}, v9\nv_lshl_add_u32 v{g2B+b}, v10, 4, v8")
    k.e(f"s_mov_b32 s{g2Rd}, 0\ns_mov_b32 s{g2Loop}, 2")
    k.e("s_waitcnt lgkmcnt(0)\ns_barrier"); k.lgkm = []
    stamp(k, "g2go")
    if Opt.c4:
        assert Opt.pre5
        k.e(f"v_add_u32 v13, {SLOT}, v1\nv_add_u32 v14, {SLOT}, v2")
        for j in range(4): k.e(f"v_add_u32 v{8+j}, {SLOT}, v{4+j}")
        k.e(f"s_mov_b32 s{g2D}, {4*SLOT}\ns_mov_b32 s39, {SLOT}\ns_mov_b32 s{g2Rd}, {4*SLOT}\ns_mov_b32 s40, {2*SLOT}")
        carry = c4_pair(k, 1, {}, mfma=False)
    else:
        emit2(k, g2_reads(0, "R"))
        for t in g2_rot(): k.e(t)
    k.e(f"v_and_b32 v15, 15, v0\nv_lshlrev_b32 v{g2X}, 11, v15\nv_bfe_u32 v15, v0, 4, 1\nv_lshl_add_u32 v{g2X}, v15, 5, v{g2X}\nv_lshrrev_b32 v15, 5, v0\nv_lshl_add_u32 v{g2X}, v15, 4, v{g2X}")
    k.e(f"s_lshl_b32 s{sU}, s{sU}, 6\ns_lshl_b32 s{g2T2}, s{g2Mt}, 7\ns_add_u32 s{g2T2}, s{g2T2}, s{sU}\ns_lshl_b32 s{sU}, s{g2Half}, 5\ns_add_u32 s{g2T2}, s{g2T2}, s{sU}\ns_lshl_b32 s{g2T2}, s{g2T2}, 11")
    k.e(f"s_lshl_b32 s{sU}, s{g2Nt}, 8\ns_lshl_b32 s{sV}, s{sV}, 4\ns_add_u32 s{g2T2}, s{g2T2}, s{sU}\ns_add_u32 s{g2T2}, s{g2T2}, s{sV}")
    srd(k, g2Xs, pX, 0x400000)
    srd(k, g2Os, pOut, 0x400000)
    k.e(f"s_lshl_b32 s{sU}, s{g2Mt}, 3\ns_add_u32 s{sU}, s{sU}, s{g2Nt}\ns_lshl_b32 s{sU}, s{sU}, 3\ns_add_u32 s{sU}, s{sU}, s{sW}\ns_lshl_b32 s{sV}, s{g2Half}, 2")
    k.e(f"s_add_u32 s34, s{sU}, s{sV}\ns_xor_b32 s35, s34, 4")
    k.e(f"s_lshl_b32 s36, s34, 13\ns_add_u32 s36, s36, {hex(WS_P)}\ns_lshl_b32 s37, s35, 13\ns_add_u32 s37, s37, {hex(WS_P)}")
    k.e(f"s_lshl_b32 s34, s34, 7\ns_add_u32 s34, s34, {hex(WS_F+F_P)}\ns_lshl_b32 s35, s35, 7\ns_add_u32 s35, s35, {hex(WS_F+F_P)}")
    k.e(f"s_add_u32 s38, s{g2T2}, {16*2048}\ns_waitcnt vmcnt(0)"); k.vm = []
    if Opt.c4:
        def sstep(carry, zero=False, at=()):
            carry = c4_pair(k, 0, carry, zero=zero)
            k.e("s_waitcnt lgkmcnt(0)\ns_barrier"); k.lgkm = []
            return c4_pair(k, 1, carry, zero=zero, at=at)
        carry = sstep(carry, True, at=[(1, lambda k: wg_flag(k, F_O, 15))])
        lp = lab(k, "g2l")
        k.e(".p2align 6")
        k.label(lp)
        st0 = list(k.lgkm)
        c2 = sstep(carry)
        assert k.lgkm == st0
        k.e(f"s_add_u32 s{g2Loop}, s{g2Loop}, 2\ns_cmp_lg_u32 s{g2Loop}, 34\ns_cbranch_scc1 {lp}")
        r = Rec(); r.auto = lambda t: None
        for i in range(2):
            for pr in range(2): r.vmem(f"buffer_load_dwordx4 {vr(XR+(i*2+pr)*4,4)}, v{g2X}, {sr(g2Xs,4)}, s{(g2T2, 38)[i]} offen offset:{pr*64}", "X")
        def mf(rows, p):
            if p == 0: c4_pair(r, rows[0] // 2, c2 if rows[0] == 0 else {}, nxt=False)
    else:
        g2_step(k, 0, True, after=None if Opt.ov or Opt.pre4 else (lambda k: wg_flag(k, F_O, 8)), zero=True); g2_step(k, 1, True, bar=Opt.soft and not Opt.pre3)
        lp = lab(k, "g2l")
        k.e(".p2align 6")
        k.label(lp)
        E = sum(Opt.emb)
        oflag = lambda k: ool(k, f"s_cmp_eq_u32 s{g2Loop}, {(E + 1) & ~1}", lambda c: wg_flag(c, F_O, 8), "fo")
        if Opt.pre4: oflag = lambda k: ool(k, f"s_cmp_eq_u32 s{g2Loop}, 2", lambda c: wg_flag(c, F_O, 8), "fo")
        g2_step(k, 0, True, after=oflag if (Opt.ov and E % 2) or Opt.pre4 else None); g2_step(k, 1, True, after=oflag if Opt.ov and E % 2 == 0 else None)
        k.e(f"s_add_u32 s{g2Loop}, s{g2Loop}, 2\ns_cmp_lg_u32 s{g2Loop}, 34\ns_cbranch_scc1 {lp}")
        k.e("s_waitcnt lgkmcnt(0)\ns_barrier"); k.lgkm = []
        r = Rec()
        for text, tag in g2_reads(1, "R"): r.ds(text, tag)
        for i in range(2):
            for pr in range(2): r.vmem(f"buffer_load_dwordx4 {vr(XR+(i*2+pr)*4,4)}, v{g2X}, {sr(g2Xs,4)}, s{(g2T2, 38)[i]} offen offset:{pr*64}", "X")
        def mf(rows, p):
            for i in rows:
                for n, b in enumerate(range(4) if i % 2 == 0 else range(3, -1, -1)):
                    for kk in ((0, 1) if n % 2 == 0 else (1, 0)):
                        a = acc2(i, b)
                        r.e(f"v_mfma_f32_16x16x32_bf16 {vr(a,4)}, {vr(bfr2(p,b,kk),4)}, {vr(afr2(p,i,kk),4)}, {vr(a,4)}")
    mf((0, 1), 0); mf((0, 1), 1)
    SND = XR + 16
    slot = (lambda d: SND + 4 * (d // 3) + d % 3) if Opt.tagx else (lambda d: SND + d)
    if Opt.tagx:
        r.e("s_add_u32 s34, s36, 4096")
        for g in range(6): r.e(f"v_mov_b32 v{SND+4*g+3}, s{sNon}")
    sent = 0
    for n in range(4):
        a = acc2(n // 2, 2 * (n % 2))
        for q in range(4): r.e(f"v_permlane16_swap_b32 v{a+q}, v{a+4+q}")
        for d in range(4): r.e(f"v_cvt_pk_bf16_f32 v{slot(4*n+d)}, v{a+2*d}, v{a+2*d+1}")
        upto = ((4 * n + 4) // 3 if n < 3 else 6) if Opt.tagx else n + 1
        for g in range(sent, upto):
            r.vmem(f"buffer_store_dwordx4 {vr(SND+4*g,4)}, v{g2L16}, {sr(g2Hs,4)}, s{36 if g < 4 else 34} offen offset:{(g%4)*1024} sc1", "PS")
        sent = upto
    mf((2, 3), 0); mf((2, 3), 1)
    if Opt.c4: schedule(k, r, window=110, keep=True)
    else: schedule(k, r, window=Opt.twin, first=lambda o: o["tag"] == "PS")
    stamp(k, "g2loop")
    k.e("v_mov_b32 v8, 0")
    r = Rec()
    for n in range(4):
        a = acc2(2 + n // 2, 2 * (n % 2)); x = XR + 4 * n; t = FR0 + 8 * n
        for q in range(4): r.e(f"v_permlane16_swap_b32 v{a+q}, v{a+4+q}")
        for d in range(4): r.e(f"v_lshlrev_b32 v{t+2*d}, 16, v{x+d}\nv_and_b32 v{t+2*d+1}, 0xffff0000, v{x+d}")
        for d in range(4): r.e(f"v_pk_add_f32 {vr(a+2*d,2)}, {vr(a+2*d,2)}, {vr(t+2*d,2)}")
    PR = FR0 + 32
    if Opt.tagx:
        def loads(c):
            for g in range(6): c.e(f"buffer_load_dwordx4 {vr(PR+4*g,4)}, v{g2L16}, {sr(g2Hs,4)}, s{37 if g < 4 else 35} offen offset:{(g%4)*1024} sc1")
        def check(c):
            c.e(f"s_waitcnt vmcnt(0)\nv_xor_b32 v8, v{PR+3}, v{PR+7}\nv_xor_b32 v9, v{PR+11}, v{PR+15}\nv_xor_b32 v10, v{PR+19}, v{PR+23}")
            c.e(f"v_xor_b32 v11, s{sNon}, v{PR+3}\nv_or3_b32 v8, v8, v9, v10\nv_xor_b32 v9, s{sNon}, v{PR+11}\nv_xor_b32 v10, s{sNon}, v{PR+19}")
            c.e(f"v_or3_b32 v9, v9, v10, v11\nv_or_b32 v8, v8, v9\nv_cmp_ne_u32 vcc, 0, v8")
        k.e("s_add_u32 s35, s37, 4096")
        k.auto(f"v_mov_b32 v8, v{XR+15}")
        if Opt.ownfirst: schedule(k, r)
        loads(k)
        if not Opt.ownfirst: schedule(k, r)
        check(k)
        def retry(c):
            lp, ok = lab(c, "xr"), lab(c, "xo")
            c.e(f"s_mov_b32 s{sV}, 0")
            c.label(lp)
            loads(c); check(c)
            c.e(f"s_nop 1\ns_cbranch_vccz {ok}\ns_add_u32 s{sV}, s{sV}, 1\ns_cmp_lt_u32 s{sV}, 0x40000\ns_cbranch_scc1 {lp}")
            c.label(ok)
        ool(k, "s_cmp_lg_u64 vcc, 0", retry, "xt")
        k.vm = []
        stamp(k, "xchg")
        pslot = lambda d: PR + 4 * (d // 3) + d % 3
    else:
        if Opt.ownfirst: schedule(k, r)
        k.e("s_waitcnt vmcnt(0)"); k.vm = []
        flag_store(k, 9, 34)
        if not Opt.ownfirst: schedule(k, r)
        poll(k, 8, 9, 35, "pp")
        stamp(k, "xchg")
        for n in range(4): k.vmem(f"buffer_load_dwordx4 {vr(PR+4*n,4)}, v{g2L16}, {sr(g2Hs,4)}, s37 offen offset:{n*1024} sc1", ("P", n))
        pslot = lambda d: PR + d
    for n in range(4):
        a = acc2(2 + n // 2, 2 * (n % 2)); x = XR + 4 * n; t = FR0 + 8 * n
        k.need_vm({("P", n)})
        for d in range(4): k.e(f"v_lshlrev_b32 v{t+2*d}, 16, v{pslot(4*n+d)}\nv_and_b32 v{t+2*d+1}, 0xffff0000, v{pslot(4*n+d)}")
        for d in range(4): k.e(f"v_pk_add_f32 {vr(t+2*d,2)}, {vr(t+2*d,2)}, {vr(a+2*d,2)}")
        for d in range(4): k.e(f"v_cvt_pk_bf16_f32 v{x+d}, v{t+2*d}, v{t+2*d+1}")
        k.vmem(f"buffer_store_dwordx4 {vr(x,4)}, v{g2X}, {sr(g2Os,4)}, s{(g2T2, 38)[n // 2]} offen offset:{(n%2)*64}{Opt.osc}", "st")

QS = 49152
qA, qB, qX = 4, 8, 3
def q4_setup(k):
    k.e(f"s_and_b32 s{g2Half}, s2, 3\ns_bfe_u32 s{g2Mt}, s2, 0x10002\ns_lshl_b32 s{g2Mt}, s{g2Mt}, 2\ns_bfe_u32 s{sU}, s2, 0x20003\ns_add_u32 s{g2Mt}, s{g2Mt}, s{sU}\ns_lshr_b32 s{g2Nt}, s2, 5")
    k.e(f"s_lshl_b32 s{g2KA}, s{g2Mt}, 4\ns_lshl_b32 s{sV}, s{sW}, 1\ns_add_u32 s{g2KA}, s{g2KA}, s{sV}\ns_mul_i32 s{g2KA}, s{g2KA}, 144")
    k.e(f"s_mul_i32 s{sV}, s{g2Half}, 28\ns_add_u32 s{g2KA}, s{g2KA}, s{sV}\ns_lshl_b32 s{g2KA}, s{g2KA}, 10")
    k.e(f"s_mul_i32 s{g2KB}, s{g2Half}, {14*64*2048}")
    k.e(f"s_lshl_b32 s{g2MA}, s{sW}, 12\ns_lshl_b32 s{g2MB}, s{sW}, 10\ns_add_u32 s{g2MB}, s{g2MB}, 32768")
    k.e(f"v_lshrrev_b32 v{g2DB}, 4, v0\nv_and_b32 v{g2DB+1}, 15, v0\ns_and_b32 s{sV}, s{sW}, 1\ns_lshl_b32 s{sV}, s{sV}, 2")
    k.e(f"v_add_u32 v{g2DB+2}, s{sV}, v{g2DB}\nv_lshlrev_b32 v{g2DB+2}, 1, v{g2DB+2}\nv_xor_b32 v{g2DB+1}, v{g2DB+1}, v{g2DB+2}")
    k.e(f"v_lshlrev_b32 v{g2DB+1}, 4, v{g2DB+1}\nv_lshl_add_u32 v{g2DB}, v{g2DB}, 11, v{g2DB+1}")
    k.e(f"s_lshl_b32 s{sU}, s{sW}, 13\ns_lshl_b32 s{sV}, s{g2Nt}, 8\ns_add_u32 s{sU}, s{sU}, s{sV}\nv_add_u32 v{g2DB}, s{sU}, v{g2DB}")
    k.e(f"v_add_u32 v{g2DB+1}, {32*2048}, v{g2DB}\nv_lshlrev_b32 v{g2L16}, 4, v0")
    srd(k, g2Bs, pD, 3584 * 2048)

def q4_b_dma(base, tag):
    return [(f"s_add_u32 m0, s{g2MB}, {base}", None),
            (f"buffer_load_dwordx4 v{g2DB}, {sr(g2Bs,4)}, s{g2KB} offen{Opt.wsc} lds", tag),
            ("s_add_u32 m0, m0, 8192", None),
            (f"buffer_load_dwordx4 v{g2DB+1}, {sr(g2Bs,4)}, s{g2KB} offen{Opt.wsc} lds", tag),
            (f"s_add_u32 s{g2KB}, s{g2KB}, {64*2048}", None)]

def q4_dma(tag):
    return g2_a_dma(f"s{g2Wr}", tag) + q4_b_dma(f"s{g2Wr}", tag) + [
        (f"s_add_u32 s{g2Wr}, s{g2Wr}, {QS}\ns_cmp_eq_u32 s{g2Wr}, {3*QS}\ns_cselect_b32 s{g2Wr}, 0, s{g2Wr}", None)]

def q4_reads(p, tag):
    A = lambda x, kk: (f"ds_read_b128 {vr(afr2(p,x,kk),4)}, v{qA+x} offset:{kk*1024}", tag)
    B = lambda x, kk: [(f"ds_read_b64_tr_b16 {vr(bfr2(p,x,kk)+2*rd,2)}, v{qB+x} offset:{(32*kk+16*rd)*256}", tag) for rd in range(2)]
    it = [A(0, 0)] + B(0, 0) + [A(0, 1)] + B(0, 1) + B(1, 1) + B(1, 0) + B(2, 0) + B(2, 1) + B(3, 1) + B(3, 0)
    for x in range(1, 4): it += [A(x, 0), A(x, 1)]
    return it

def q4_rot():
    return [f"s_add_u32 s{g2Rd}, s{g2Rd}, {QS}\ns_mov_b32 s{g2D}, {QS}",
            f"s_cmp_eq_u32 s{g2Rd}, {3*QS}\ns_cselect_b32 s{g2Rd}, 0, s{g2Rd}\ns_cmov_b32 s{g2D}, {hex((-2*QS) & 0xffffffff)}"] + \
           [f"v_add_u32 v{r}, s{g2D}, v{r}" for r in list(range(qB, qB + 4)) + list(range(qA, qA + 4))]

def q4_step(k, s, dma=True, zero=False, at=(), pre=None):
    p = s & 1
    if pre: pre(k)
    k.need_vm({("D", s + 1)}, also_lgkm0=True)
    k.e("s_barrier")
    seq = []
    for i in range(4):
        for n, b in enumerate(range(4) if i % 2 == 0 else range(3, -1, -1)):
            kks = (0, 1) if n % 2 == 0 else (1, 0)
            seq += [(i, b, kks[0]), (i, b, kks[1])]
    fill = {g: [] for g in range(32)}
    rd = q4_reads(1 - p, "R")
    for x, it in enumerate(rd): fill[(x * Opt.q4rd) // len(rd)].append(it)
    rot = q4_rot()
    fill[14].append((rot[0], None)); fill[16].append((rot[1], None))
    for x, t in enumerate(rot[2:]): fill[min(31, max(Opt.q4rd - 5, 18) + 1 + x + (1 if x >= 4 else 0))].append((t, None))
    if dma:
        dm = q4_dma(("D", s + 3))
        for x, it in enumerate(dm): fill[2 + (x * 28) // len(dm)].append(it)
    for g, (i, b, kk) in enumerate(seq):
        a = acc2(i, b)
        k.e(f"v_mfma_f32_16x16x32_bf16 {vr(a,4)}, {vr(bfr2(p,b,kk),4)}, {vr(afr2(p,i,kk),4)}, {0 if zero and g % 2 == 0 else vr(a,4)}")
        emit2(k, fill[g])
        for gg, fn in at:
            if gg == g: fn(k)

def q4_gemm(k):
    vF, vFd = 13, 1
    k.vm = [("D", 0)] * 4 + [("O", 0)]
    k.e(f"s_lshr_b32 s{sU}, s{sW}, 1\ns_lshl_b32 s{sV}, s{sU}, 13\ns_xor_b32 s39, s{g2Half}, 3\nv_add_u32 v14, s{sV}, v{g2L16}")
    for i in range(4): k.e(f"s_xor_b32 s{sT}, s39, {i}\ns_lshl_b32 s{sT}, s{sT}, 11\nv_add_u32 v{qA+i}, s{sT}, v14")
    k.e(f"v_lshrrev_b32 v14, 2, v0\nv_and_b32 v15, 7, v14\nv_lshlrev_b32 v15, 1, v15\nv_bfe_u32 v10, v0, 1, 1\nv_xor_b32 v15, v15, v10")
    k.e(f"v_lshlrev_b32 v14, 8, v14\nv_and_b32 v10, 1, v0\nv_lshl_add_u32 v14, v10, 3, v14\nv_add_u32 v14, 32768, v14")
    k.e(f"s_and_b32 s{sV}, s{sW}, 1\ns_lshl_b32 s{sV}, s{sV}, 3")
    for b in range(4): k.e(f"s_add_u32 s{sT}, s{sV}, {2*b}\nv_xor_b32 v10, s{sT}, v15\nv_lshl_add_u32 v{qB+b}, v10, 4, v14")
    k.e(f"s_mov_b32 s{g2Rd}, 0\ns_mov_b32 s{g2Loop}, 2\ns_mov_b32 s{g2Wr}, {QS}\ns_setprio 0")
    k.need_vm({("D", 0)}, also_lgkm0=True)
    k.e("s_barrier")
    stamp(k, "g2go")
    emit2(k, q4_reads(0, "R"))
    emit2(k, q4_dma(("D", 1))); emit2(k, q4_dma(("D", 2)))
    for t in q4_rot(): k.e(t)
    k.e(f"v_and_b32 v14, 15, v0\nv_lshlrev_b32 v{qX}, 11, v14\nv_bfe_u32 v14, v0, 4, 1\nv_lshl_add_u32 v{qX}, v14, 5, v{qX}\nv_lshrrev_b32 v14, 5, v0\nv_lshl_add_u32 v{qX}, v14, 4, v{qX}")
    k.e(f"s_lshl_b32 s{sU}, s{sU}, 6\ns_lshl_b32 s{g2T2}, s{g2Mt}, 8\ns_add_u32 s{g2T2}, s{g2T2}, s{sU}\ns_lshl_b32 s{sU}, s{g2Half}, 4\ns_add_u32 s{g2T2}, s{g2T2}, s{sU}\ns_lshl_b32 s{g2T2}, s{g2T2}, 11")
    k.e(f"s_lshl_b32 s{sU}, s{g2Nt}, 8\ns_lshl_b32 s{sV}, s{sV}, 4\ns_add_u32 s{g2T2}, s{g2T2}, s{sU}\ns_add_u32 s{g2T2}, s{g2T2}, s{sV}")
    srd(k, g2Xs, pX, 0x400000)
    srd(k, g2Os, pOut, 0x400000)
    k.e(f"s_lshl_b32 s{sU}, s{g2Mt}, 3\ns_add_u32 s{sU}, s{sU}, s{g2Nt}\ns_lshl_b32 s{sU}, s{sU}, 5\ns_add_u32 s38, s{sU}, s{sW}")
    k.e(f"s_lshl_b32 s{sV}, s{g2Half}, 3\ns_add_u32 s34, s38, s{sV}\ns_mul_i32 s36, s34, 6144\ns_add_u32 s36, s36, {hex(WS_P)}")
    k.e(f"s_lshl_b32 s34, s34, 7\ns_add_u32 s34, s34, {hex(WS_F+F_P)}\ns_mov_b32 s33, {hex(WS_F+F_O)}")
    q4_step(k, 0, zero=True)
    q4_step(k, 1, at=[(1, lambda k: wg_flag(k, F_O, 14))])
    lp = lab(k, "g2l")
    k.e(".p2align 6")
    k.label(lp)
    st0 = ([], [t for t in k.vm])
    def oload(k): ool(k, f"s_cmp_eq_u32 s37, s{g2Loop}", lambda c: c.e(f"buffer_load_dword v{vFd}, v{vF}, {sr(sWS,4)}, s33 offen sc1"), "of")
    def ocheck(k):
        def body(c):
            ok = lab(c, "sok")
            c.e(f"s_waitcnt vmcnt(12)\nv_cmp_ne_u32 vcc, s{sNon}, v{vFd}\ns_nop 1\ns_cbranch_vccz {ok}")
            poll(c, vF, vFd, 33, "po")
            c.label(ok)
        ool(k, f"s_cmp_eq_u32 s40, s{g2Loop}", body, "oc")
    def switch(k):
        def body(c):
            c.e(f"s_mov_b32 s{g2Bs}, s{pWo}\ns_mov_b32 s{g2Bs+1}, s{pWo+1}\ns_mov_b32 s{g2Bs+2}, {1024*2048}\ns_lshl_b32 s{g2KB}, s{g2Half}, 19")
            c.e(f"s_mul_i32 s{sV}, s{g2Half}, {20*1024}\ns_sub_u32 s{sV}, {84*1024}, s{sV}\ns_add_u32 s{g2KA}, s{g2KA}, s{sV}")
        ool(k, f"s_cmp_eq_u32 s{g2Loop}, 10", body, "sw")
    q4_step(k, 2, at=[(31, oload)])
    q4_step(k, 3, at=[(0, switch)], pre=ocheck)
    assert [(t[0], t[1] - 2) for t in k.vm] == st0[1], (k.vm, st0)
    k.e(f"s_add_u32 s{g2Loop}, s{g2Loop}, 2\ns_cmp_lg_u32 s{g2Loop}, 14\ns_cbranch_scc1 {lp}")
    k.vm = [(t[0], t[1] + 10) for t in k.vm]
    q4_step(k, 14)
    q4_step(k, 15, dma=False)
    k.need_vm({("D", 17)}, also_lgkm0=True)
    k.e("s_barrier")
    r = Rec()
    for text, tag in q4_reads(1, "R"): r.ds(text, tag)
    for pr in range(2): r.vmem(f"buffer_load_dwordx4 {vr(XR+4*pr,4)}, v{qX}, {sr(g2Xs,4)}, s{g2T2} offen offset:{pr*64}", "X")
    def mf(rows, p):
        for i in rows:
            for n, b in enumerate(range(4) if i % 2 == 0 else range(3, -1, -1)):
                for kk in ((0, 1) if n % 2 == 0 else (1, 0)):
                    a = acc2(i, b)
                    r.e(f"v_mfma_f32_16x16x32_bf16 {vr(a,4)}, {vr(bfr2(p,b,kk),4)}, {vr(afr2(p,i,kk),4)}, {vr(a,4)}")
    SND = XR + 8
    mf((0, 1), 0)
    r.e("s_add_u32 s35, s36, 4096")
    for i in range(3):
        if i == 2: mf((2,), 0)
        mf((i,), 1)
        for pr in range(2):
            n = 2 * i + pr
            a = acc2(i, 2 * pr)
            for q in range(4): r.e(f"v_permlane16_swap_b32 v{a+q}, v{a+4+q}")
            for d in range(4): r.e(f"v_cvt_pk_bf16_f32 v{SND+4*n+d}, v{a+2*d}, v{a+2*d+1}")
            r.vmem(f"buffer_store_dwordx4 {vr(SND+4*n,4)}, v{g2L16}, {sr(g2Hs,4)}, s{36 if n < 4 else 35} offen offset:{(n%4)*1024} sc1", "PS")
    mf((3,), 0); mf((3,), 1)
    schedule(k, r, window=Opt.twin, first=lambda o: o["tag"] == "PS")
    stamp(k, "g2loop")
    k.e(f"v_min_u32 v14, 2, v0\nv_add_u32 v14, 1, v14\nv_xor_b32 v14, s{g2Half}, v14\nv_lshlrev_b32 v14, 10, v14\ns_lshl_b32 s35, s38, 7\ns_add_u32 s35, s35, {hex(WS_F+F_P)}")
    for j in range(1, 4):
        k.e(f"s_xor_b32 s{sU}, s{g2Half}, {j}\ns_lshl_b32 s{sU}, s{sU}, 3\ns_add_u32 s{sU}, s{sU}, s38\ns_mul_i32 s{sU}, s{sU}, 6144\ns_add_u32 s{28+j}, s{sU}, {hex(WS_P + (j ^ 3) * 2048)}")
    r = Rec()
    for pr in range(2):
        a = acc2(3, 2 * pr); x = XR + 4 * pr; t = FR0 + 8 * pr
        for q in range(4): r.e(f"v_permlane16_swap_b32 v{a+q}, v{a+4+q}")
        for d in range(4): r.e(f"v_lshlrev_b32 v{t+2*d}, 16, v{x+d}\nv_and_b32 v{t+2*d+1}, 0xffff0000, v{x+d}")
        for d in range(4): r.e(f"v_pk_add_f32 {vr(a+2*d,2)}, {vr(a+2*d,2)}, {vr(t+2*d,2)}")
    schedule(k, r)
    k.e("s_waitcnt vmcnt(0)"); k.vm = []
    flag_store(k, 15, 34)
    poll(k, 14, 15, 35, "pp")
    stamp(k, "xchg")
    PR = FR0 + 32
    for pr in range(2):
        for j in range(1, 4):
            k.vmem(f"buffer_load_dwordx4 {vr(PR+4*(3*pr+j-1),4)}, v{g2L16}, {sr(g2Hs,4)}, s{28+j} offen offset:{pr*1024} sc1", ("P", 3 * pr + j - 1))
    for pr in range(2):
        a = acc2(3, 2 * pr); x = XR + 4 * pr
        for j in range(3):
            q = PR + 4 * (3 * pr + j); t = FR0 + 8 * (j & 1)
            k.need_vm({("P", 3 * pr + j)})
            for d in range(4): k.e(f"v_lshlrev_b32 v{t+2*d}, 16, v{q+d}\nv_and_b32 v{t+2*d+1}, 0xffff0000, v{q+d}")
            for d in range(4): k.e(f"v_pk_add_f32 {vr(a+2*d,2)}, {vr(a+2*d,2)}, {vr(t+2*d,2)}")
        for d in range(4): k.e(f"v_cvt_pk_bf16_f32 v{x+d}, v{a+2*d}, v{a+2*d+1}")
        k.vmem(f"buffer_store_dwordx4 {vr(x,4)}, v{qX}, {sr(g2Os,4)}, s{g2T2} offen offset:{pr*64}{Opt.osc}", "st")

def q_ids(k):
    k.e(f"s_and_b32 s{g2Half}, s2, 3\ns_bfe_u32 s{g2Mt}, s2, 0x10002\ns_lshl_b32 s{g2Mt}, s{g2Mt}, 2\ns_bfe_u32 s{sU}, s2, 0x20003\ns_add_u32 s{g2Mt}, s{g2Mt}, s{sU}\ns_lshr_b32 s{g2Nt}, s2, 5")

def q5_setup(k):
    q_ids(k)
    k.e(f"s_and_b32 s{sU}, s{sW}, 3")
    k.e(f"s_lshl_b32 s{g2KA}, s{g2Mt}, 4\ns_lshl_b32 s{sV}, s{sU}, 2\ns_add_u32 s{g2KA}, s{g2KA}, s{sV}\ns_mul_i32 s{g2KA}, s{g2KA}, 144")
    k.e(f"s_mul_i32 s{sV}, s{g2Half}, 28\ns_add_u32 s{g2KA}, s{g2KA}, s{sV}\ns_lshl_b32 s{g2KA}, s{g2KA}, 10")
    k.e(f"s_mul_i32 s{g2KB}, s{g2Half}, {14*64*2048}")
    k.e(f"s_lshl_b32 s{g2MA}, s{sU}, 13\ns_lshl_b32 s{g2MB}, s{sU}, 10\ns_add_u32 s{g2MB}, s{g2MB}, 32768")
    k.e(f"v_lshrrev_b32 v{g2DB}, 4, v0\nv_and_b32 v{g2DB+1}, 15, v0\ns_and_b32 s{sV}, s{sU}, 1\ns_lshl_b32 s{sV}, s{sV}, 2")
    k.e(f"v_add_u32 v{g2DB+2}, s{sV}, v{g2DB}\nv_lshlrev_b32 v{g2DB+2}, 1, v{g2DB+2}\nv_xor_b32 v{g2DB+1}, v{g2DB+1}, v{g2DB+2}")
    k.e(f"v_lshlrev_b32 v{g2DB+1}, 4, v{g2DB+1}\nv_lshl_add_u32 v{g2DB}, v{g2DB}, 11, v{g2DB+1}")
    k.e(f"s_lshl_b32 s{sU}, s{sU}, 13\ns_lshl_b32 s{sV}, s{g2Nt}, 8\ns_add_u32 s{sU}, s{sU}, s{sV}\nv_add_u32 v{g2DB}, s{sU}, v{g2DB}")
    for i in range(1, 4): k.e(f"v_add_u32 v{g2DB+i}, {i*16*2048}, v{g2DB}")
    k.e(f"v_lshlrev_b32 v{g2L16}, 4, v0")
    srd(k, g2Bs, pD, 3584 * 2048)

def q5_a_dma(base, tag):
    h = Opt.hsc
    it = []
    for x in range(4):
        it.append((f"s_add_u32 m0, s{g2MA}, {base}" if x == 0 else f"s_add_u32 s{sT}, s{g2KA}, {x*144*1024}\ns_add_u32 m0, m0, 2048", None))
        for kk in range(2): it.append((f"buffer_load_dwordx4 v{g2L16}, {sr(g2Hs,4)}, s{sT if x else g2KA} offen offset:{kk*1024}{h} lds", tag))
    return it + [(f"s_add_u32 s{g2KA}, s{g2KA}, 2048", None)]

def q5_b_dma(base, tag):
    it = []
    for i in range(4):
        it.append((f"s_add_u32 m0, s{g2MB}, {base}" if i == 0 else "s_add_u32 m0, m0, 4096", None))
        it.append((f"buffer_load_dwordx4 v{g2DB+i}, {sr(g2Bs,4)}, s{g2KB} offen{Opt.wsc} lds", tag))
    return it + [(f"s_add_u32 s{g2KB}, s{g2KB}, {64*2048}", None)]

def q5_dma(k):
    for text, tag in q5_b_dma(f"s{g2Wr}", None) + q5_a_dma(f"s{g2Wr}", None): k.e(text)
    k.e(f"s_add_u32 s{g2Wr}, s{g2Wr}, {QS}\ns_cmp_eq_u32 s{g2Wr}, {3*QS}\ns_cselect_b32 s{g2Wr}, 0, s{g2Wr}")

def q5_loader(k):
    vF, vFd = 13, 1
    k.e(f"s_setprio 0\ns_waitcnt vmcnt({13 if Opt.kfree else 1}) lgkmcnt(0)\ns_barrier\ns_mov_b32 s{g2Wr}, {2*QS if Opt.kfree else QS}")
    q5_dma(k)
    if not Opt.kfree: q5_dma(k)
    k.e(f"s_mov_b32 s{g2Loop}, 0\ns_mov_b32 s{sU}, {hex(WS_F+F_O)}")
    lp = lab(k, "ll")
    k.label(lp)
    k.e("s_waitcnt vmcnt(12)\ns_barrier")
    def switch(c):
        ok = lab(c, "sok")
        c.e(f"s_waitcnt vmcnt(12)\nv_cmp_ne_u32 vcc, s{sNon}, v{vFd}\ns_nop 1\ns_cbranch_vccz {ok}")
        poll(c, vF, vFd, sU, "po")
        c.label(ok)
        c.e(f"s_mov_b32 s{g2Bs}, s{pWo}\ns_mov_b32 s{g2Bs+1}, s{pWo+1}\ns_mov_b32 s{g2Bs+2}, {1024*2048}\ns_lshl_b32 s{g2KB}, s{g2Half}, 19")
        c.e(f"s_mul_i32 s{sV}, s{g2Half}, {20*1024}\ns_sub_u32 s{sV}, {84*1024}, s{sV}\ns_add_u32 s{g2KA}, s{g2KA}, s{sV}")
    ool(k, f"s_cmp_eq_u32 s{g2Loop}, 11", switch, "sw")
    q5_dma(k)
    ool(k, f"s_cmp_eq_u32 s{g2Loop}, 9", lambda c: c.e(f"buffer_load_dword v{vFd}, v{vF}, {sr(sWS,4)}, s{sU} offen sc1"), "of")
    k.e(f"s_add_u32 s{g2Loop}, s{g2Loop}, 1\ns_cmp_lg_u32 s{g2Loop}, 15\ns_cbranch_scc1 {lp}")
    k.e("s_waitcnt vmcnt(12)\ns_barrier\ns_waitcnt vmcnt(0)\ns_barrier")
    k.e(f"s_and_b32 s39, s{sW}, 3\ns_lshl_b32 s{sU}, s{g2Mt}, 3\ns_add_u32 s{sU}, s{sU}, s{g2Nt}\ns_lshl_b32 s{sU}, s{sU}, 4\ns_add_u32 s38, s{sU}, s39\ns_mul_i32 s39, s39, 12288")
    k.e(f"v_min_u32 v14, 2, v0\nv_add_u32 v14, 1, v14\nv_xor_b32 v15, 3, v14\nv_xor_b32 v14, s{g2Half}, v14\nv_mul_u32_u24 v14, {4*384}, v14\nv_lshl_add_u32 v14, v15, 7, v14")
    k.e(f"s_mul_i32 s35, s38, 384\ns_add_u32 s35, s35, {hex(WS_F+F_P)}\ns_mov_b32 s36, 7\ns_mov_b32 s37, 0")
    lp, fin = lab(k, "rx"), lab(k, "rf")
    k.label(lp)
    k.e(f"buffer_load_dword v15, v14, {sr(sWS,4)}, s35 offen sc1\ns_waitcnt vmcnt(0)\nv_cmp_eq_u32 vcc, s{sNon}, v15\ns_and_b32 s34, vcc_lo, s36\ns_andn2_b32 s36, s36, s34")
    for j in (3, 2, 1):
        sk = lab(k, "rj")
        k.e(f"s_bitcmp1_b32 s34, {j-1}\ns_cbranch_scc0 {sk}")
        k.e(f"s_xor_b32 s{sU}, s{g2Half}, {j}\ns_lshl_b32 s{sU}, s{sU}, 2\ns_add_u32 s{sU}, s{sU}, s38\ns_mul_i32 s{sU}, s{sU}, 12288\ns_add_u32 s{sU}, s{sU}, {hex(WS_P + (j ^ 3) * 4096)}")
        k.e(f"s_add_u32 m0, s39, {(j-1)*4096}")
        for n in range(4): k.e(f"buffer_load_dwordx4 v{g2L16}, {sr(g2Hs,4)}, s{sU} offen offset:{n*1024} sc1 lds")
        k.label(sk)
    k.e(f"s_cmp_eq_u32 s36, 0\ns_cbranch_scc1 {fin}\ns_add_u32 s37, s37, 1\ns_cmp_lt_u32 s37, 0x80000\ns_cbranch_scc1 {lp}")
    k.label(fin)
    k.e("s_waitcnt vmcnt(0)\ns_barrier")

A5, B5, C5, X5, S5 = 16, 48, 80, 208, 224
def a5(st, b, kk): return A5 + ((st * 2 + b) * 2 + kk) * 4
def b5(j, kk): return B5 + (j * 2 + kk) * 4
def c5(i, j): return C5 + (i * 4 + j) * 4
def q5_pair(k, pair, carry, nxt=True, zero=False, at=(), mfma=True):
    fill = {g: [] for g in range(20)}
    for g, it in carry.items(): fill[g] += it
    np_ = (pair + 1) & 3
    if pair < 3 or nxt:
        g0 = 3 if pair == 0 else 0
        for n, (b, kk) in enumerate([(0, 0), (0, 1), (1, 1), (1, 0)]):
            fill[g0 + n].append((f"ds_read_b128 {vr(a5(np_&1,b,kk),4)}, v{qA+np_} offset:{(b*2+kk)*1024}", "A"))
        fill[g0 + 4].append((f"v_add_u32 v{qA+np_}, s{g2D}, v{qA+np_}", None))
    if pair == 3 and nxt:
        for j in range(4):
            for n, (kk, rd) in enumerate([(1, 0), (1, 1), (0, 0), (0, 1)]):
                fill[4 * j + 3 + n].append((f"ds_read_b64_tr_b16 {vr(b5(j,kk)+2*rd,2)}, v{qB+j} offset:{(32*kk+16*rd)*256}", "B"))
    if pair == 1:
        for j in range(4): fill[6 + j].append((f"v_add_u32 v{qB+j}, s{g2D}, v{qB+j}", None))
    if pair == 2:
        fill[8].append((f"s_add_u32 s{g2Rd}, s{g2Rd}, {QS}\ns_mov_b32 s{g2D}, {QS}", None))
        fill[10].append((f"s_cmp_eq_u32 s{g2Rd}, {3*QS}\ns_cselect_b32 s{g2Rd}, 0, s{g2Rd}\ns_cmov_b32 s{g2D}, {hex((-2*QS) & 0xffffffff)}", None))
    g = 0
    for j in range(4):
        bs = (0, 1) if j % 2 == 0 else (1, 0)
        for b, kk in ((bs[0], 0), (bs[0], 1), (bs[1], 1), (bs[1], 0)):
            if mfma:
                a = c5(2 * pair + b, j)
                t = f"v_mfma_f32_16x16x32_bf16 {vr(a,4)}, {vr(b5(j,kk),4)}, {vr(a5(pair&1,b,kk),4)}, {0 if zero and g % 2 == 0 else vr(a,4)}"
                k.auto(t); k.e(t)
            emit2(k, fill[g])
            for gg, fn in at:
                if gg == g: fn(k)
            g += 1
    return {g - 16: fill[g] for g in range(16, 20) if fill[g]}

def q5_step(k, carry, nxt=True, zero=False, at3=()):
    for pair in range(3): carry = q5_pair(k, pair, carry, nxt, zero)
    k.e("s_waitcnt lgkmcnt(0)\ns_barrier"); k.lgkm = []
    return q5_pair(k, 3, carry, nxt, zero, at3)

def q5_compute(k):
    q_ids(k)
    k.e(f"s_lshr_b32 s{sU}, s{sW}, 1\ns_lshl_b32 s{sV}, s{sU}, 14\ns_xor_b32 s39, s{g2Half}, 3\nv_lshlrev_b32 v{g2L16}, 4, v0\nv_add_u32 v14, s{sV}, v{g2L16}")
    for i in range(4): k.e(f"s_xor_b32 s{sT}, s39, {i}\ns_lshl_b32 s{sT}, s{sT}, 12\nv_add_u32 v{qA+i}, s{sT}, v14")
    k.e(f"v_lshrrev_b32 v14, 2, v0\nv_and_b32 v15, 7, v14\nv_lshlrev_b32 v15, 1, v15\nv_bfe_u32 v13, v0, 1, 1\nv_xor_b32 v15, v15, v13")
    k.e(f"v_lshlrev_b32 v14, 8, v14\nv_and_b32 v13, 1, v0\nv_lshl_add_u32 v14, v13, 3, v14\nv_add_u32 v14, 32768, v14")
    k.e(f"s_and_b32 s{sV}, s{sW}, 1\ns_lshl_b32 s{sV}, s{sV}, 3")
    for b in range(4): k.e(f"s_add_u32 s{sT}, s{sV}, {2*b}\nv_xor_b32 v13, s{sT}, v15\nv_lshl_add_u32 v{qB+b}, v13, 4, v14")
    k.e(f"s_mov_b32 s{g2Rd}, {QS}\ns_mov_b32 s{g2D}, {QS}\ns_mov_b32 s{g2Loop}, 1\ns_setprio 0")
    k.e("s_waitcnt lgkmcnt(0)\ns_barrier"); k.lgkm = []
    stamp(k, "g2go")
    carry = q5_pair(k, 3, {}, mfma=False)
    k.e(f"v_and_b32 v14, 15, v0\nv_lshlrev_b32 v{qX}, 11, v14\nv_bfe_u32 v14, v0, 4, 1\nv_lshl_add_u32 v{qX}, v14, 5, v{qX}\nv_lshrrev_b32 v14, 5, v0\nv_lshl_add_u32 v{qX}, v14, 4, v{qX}")
    k.e(f"s_lshl_b32 s{sU}, s{sU}, 7\ns_lshl_b32 s{g2T2}, s{g2Mt}, 8\ns_add_u32 s{g2T2}, s{g2T2}, s{sU}\ns_lshl_b32 s{sU}, s{g2Half}, 5\ns_add_u32 s{g2T2}, s{g2T2}, s{sU}\ns_lshl_b32 s{g2T2}, s{g2T2}, 11")
    k.e(f"s_lshl_b32 s{sU}, s{g2Nt}, 8\ns_lshl_b32 s{sV}, s{sV}, 4\ns_add_u32 s{g2T2}, s{g2T2}, s{sU}\ns_add_u32 s{g2T2}, s{g2T2}, s{sV}\ns_add_u32 s40, s{g2T2}, {16*2048}")
    srd(k, g2Xs, pX, 0x400000)
    srd(k, g2Os, pOut, 0x400000)
    k.e(f"s_lshl_b32 s{sU}, s{g2Mt}, 3\ns_add_u32 s{sU}, s{sU}, s{g2Nt}\ns_lshl_b32 s{sU}, s{sU}, 4\ns_add_u32 s38, s{sU}, s{sW}")
    k.e(f"s_lshl_b32 s{sV}, s{g2Half}, 2\ns_add_u32 s34, s38, s{sV}\ns_mul_i32 s36, s34, 12288\ns_add_u32 s36, s36, {hex(WS_P)}")
    k.e(f"s_mul_i32 s34, s34, 384\ns_add_u32 s34, s34, {hex(WS_F+F_P)}\ns_waitcnt vmcnt(0)"); k.vm = []
    carry = q5_step(k, carry, zero=True, at3=[(1, lambda k: wg_flag(k, F_O, 14))])
    lp = lab(k, "g2l")
    k.e(".p2align 6")
    k.label(lp)
    st0 = list(k.lgkm)
    c2 = q5_step(k, carry)
    assert k.lgkm == st0
    k.e(f"s_add_u32 s{g2Loop}, s{g2Loop}, 1\ns_cmp_lg_u32 s{g2Loop}, 16\ns_cbranch_scc1 {lp}")
    B6 = X5
    for g in sorted(c2): emit2(k, c2[g])
    for j in range(4): k.e(f"v_add_u32 v{qB+j}, s{g2D}, v{qB+j}")
    k.e(f"v_mov_b32 v15, s{sNon}\ns_barrier")
    r = Rec()
    ard = lambda st, p: [r.ds(f"ds_read_b128 {vr(a5(st,b,kk),4)}, v{qA+p} offset:{(b*2+kk)*1024}", "A") for b, kk in ((0, 0), (0, 1), (1, 1), (1, 0))]
    ard(1, 0)
    for j in range(4):
        for kk in range(2):
            for rd in range(2): r.ds(f"ds_read_b64_tr_b16 {vr(B6+(j*2+kk)*4+2*rd,2)}, v{qB+j} offset:{(32*kk+16*rd)*256}", "B")
    for p in range(4):
        for st in range(2):
            for j in range(4):
                bs = (0, 1) if j % 2 == 0 else (1, 0)
                for b, kk in ((bs[0], 0), (bs[0], 1), (bs[1], 1), (bs[1], 0)):
                    a = c5(2 * p + b, j)
                    r.e(f"v_mfma_f32_16x16x32_bf16 {vr(a,4)}, {vr((B5, B6)[st]+(j*2+kk)*4,4)}, {vr(a5(st,b,kk),4)}, {vr(a,4)}")
            if p < 3:
                ard(st, p + 1)
                if st == 0: r.e(f"v_add_u32 v{qA+p+1}, s{g2D}, v{qA+p+1}")
            if st == Opt.q5cut and p >= 2:
                schedule(k, r, window=90, keep=True); r = Rec()
                k.need_vm({("PS", p - 2)})
                k.vmem(f"buffer_store_dword v15, off, {sr(sWS,4)}, s34 offset:{128*(p-2)} sc1", "FG")
        if p == 3: break
        for n in range(4):
            a = c5(2 * p + n // 2, 2 * (n % 2))
            for q in range(4): r.e(f"v_permlane16_swap_b32 v{a+q}, v{a+4+q}")
            for d in range(4): r.e(f"v_cvt_pk_bf16_f32 v{a+d}, v{a+2*d}, v{a+2*d+1}")
            r.vmem(f"buffer_store_dwordx4 {vr(a,4)}, v{g2L16}, {sr(g2Hs,4)}, s36 offen offset:{n*1024} sc1", ("PS", p))
        r.e("s_add_u32 s36, s36, 4096")
        if p == 2:
            for i in range(2):
                for pr in range(2): r.vmem(f"buffer_load_dwordx4 {vr(C5+(i*2+pr)*8+4,4)}, v{qX}, {sr(g2Xs,4)}, s{(g2T2, 40)[i]} offen offset:{pr*64}", "X")
    XL = C5
    schedule(k, r, window=90, keep=True)
    stamp(k, "g2loop")
    k.need_vm({("PS", 2)})
    k.vmem(f"buffer_store_dword v15, off, {sr(sWS,4)}, s34 offset:256 sc1", "FG")
    r = Rec()
    for n in range(4):
        a = c5(6 + n // 2, 2 * (n % 2)); x = XL + 8 * n + 4; t = A5 + 8 * n
        for q in range(4): r.e(f"v_permlane16_swap_b32 v{a+q}, v{a+4+q}")
        for d in range(4): r.e(f"v_lshlrev_b32 v{t+2*d}, 16, v{x+d}\nv_and_b32 v{t+2*d+1}, 0xffff0000, v{x+d}")
        for d in range(4): r.e(f"v_pk_add_f32 {vr(a+2*d,2)}, {vr(a+2*d,2)}, {vr(t+2*d,2)}")
    schedule(k, r)
    k.e(f"s_mul_i32 s{sU}, s{sW}, 12288\nv_add_u32 v14, s{sU}, v{g2L16}\ns_barrier")
    stamp(k, "xchg")
    r = Rec()
    PR = B5
    for n in range(4):
        for j in range(3): r.ds(f"ds_read_b128 {vr(PR+4*(3*n+j),4)}, v14 offset:{j*4096 + n*1024}", "P")
    for n in range(4):
        a = c5(6 + n // 2, 2 * (n % 2))
        for j in range(3):
            q = PR + 4 * (3 * n + j); t = A5 + 8 * ((3 * n + j) & 3)
            for d in range(4): r.e(f"v_lshlrev_b32 v{t+2*d}, 16, v{q+d}\nv_and_b32 v{t+2*d+1}, 0xffff0000, v{q+d}")
            for d in range(4): r.e(f"v_pk_add_f32 {vr(a+2*d,2)}, {vr(a+2*d,2)}, {vr(t+2*d,2)}")
        for d in range(4): r.e(f"v_cvt_pk_bf16_f32 v{a+d}, v{a+2*d}, v{a+2*d+1}")
        r.vmem(f"buffer_store_dwordx4 {vr(a,4)}, v{qX}, {sr(g2Os,4)}, s{(g2T2, 40)[n // 2]} offen offset:{(n%2)*64}{Opt.osc}", "st")
    schedule(k, r, keep=True, window=60)

def raw_loads(c):
    c.e(f"s_lshl_b32 s{sRow}, s{sMb}, 5\ns_add_u32 s{sRow}, s{sRow}, s{sH}\ns_lshl_b32 s{sRow}, s{sRow}, 2\ns_add_u32 s{sRow}, s{sRow}, s{sW}\ns_lshl_b32 s{sRow}, s{sRow}, 12")
    c.e("v_lshlrev_b32 v40, 4, v0")
    for q in range(4): c.e(f"buffer_load_dwordx4 {vr(24+4*q,4)}, v40, {sr(sX,4)}, s{sRow} offen offset:{q*1024}")

def row_stats(c):
    c.e(f"s_waitcnt vmcnt({(0, 9, 5)[Opt.rawfirst]})")
    for x, y in zip(stats_list(24, 40), stats_list(32, 42 + 2)): c.e(x); c.e(y)
    c.e(f"v_mov_b32 v42, v44\nv_mov_b32 v43, v45\ns_lshr_b32 s{sRow}, s{sRow}, 8\ns_add_u32 s{sRow}, s{sRow}, {hex(WS_ST)}")
    c.e(f"buffer_store_dwordx4 v[40:43], off, {sr(sWS,4)}, s{sRow} sc1")

def swap23(k, d, s, t):
    k.e(f"v_lshrrev_b32 v{t}, 1, v{s}\nv_xor_b32 v{t}, v{t}, v{s}\nv_and_b32 v{t}, 4, v{t}\nv_mul_u32_u24 v{t}, 3, v{t}\nv_xor_b32 v{d}, v{s}, v{t}")

def qkv_voff(k, d, vL, t0, t1, t2):
    k.e(f"v_mul_u32_u24 v{t0}, 5462, v{vL}\nv_lshrrev_b32 v{t0}, 16, v{t0}")
    k.e(f"v_mul_u32_u24 v{t1}, 12, v{t0}\nv_sub_u32 v{t1}, v{vL}, v{t1}")
    k.e(f"v_lshrrev_b32 v{t2}, 1, v{t0}\nv_and_b32 v{t2}, 2, v{t2}\nv_xor_b32 v{t1}, v{t1}, v{t2}")
    swap23(k, d, t0, t2)
    k.e(f"v_mul_u32_u24 v{d}, 6144, v{d}")
    k.e(f"v_lshrrev_b32 v{t2}, 2, v{t1}\nv_lshl_add_u32 v{d}, v{t2}, 11, v{d}")
    k.e(f"v_and_b32 v{t1}, 3, v{t1}\nv_lshl_add_u32 v{d}, v{t1}, 4, v{d}\nv_add_u32 v{d}, s{sNbS}, v{d}")

def gen_fused(name):
    uid[0] = 0
    k = Kern(name)
    k.e(header(name))
    end = "L_end"
    k.label("L_pf0")
    k.e(f"s_cmp_ge_u32 s2, 256\ns_cbranch_scc1 {end}")
    if Opt.perm:
        for bit, mask in ((3, 5), (4, 3), (5, 6), (0, 24), (1, 40), (2, 48), (6, 21), (7, 42)):
            k.e(f"s_bitcmp1_b32 s2, {bit}\ns_cselect_b32 s3, {mask}, 0\ns_xor_b32 s2, s2, s3")
    if Opt.timing: k.e("s_memtime s[60:61]")
    k.e("s_load_dwordx4 s[4:7], s[0:1], 0\ns_load_dwordx8 s[48:55], s[0:1], 32\ns_load_dwordx4 s[56:59], s[0:1], 64")
    k.e(f"s_load_dwordx2 s[{pWo}:{pWo+1}], s[0:1], 16\ns_memrealtime s[86:87]")
    if Opt.code0:
        k.e("s_getpc_b64 s[88:89]")
        k.label("L_pc0")
        if Opt.code0 == 1:
            k.e("v_lshlrev_b32 v16, 6, v0\nv_min_u32 v16, L_end-L_pc0, v16\nv_add_u32 v17, 0x8000, v16\nv_min_u32 v17, L_end-L_pc0, v17")
            k.vmem("global_load_dword v16, v16, s[88:89]", ("CODE", 0))
            k.vmem("global_load_dword v17, v17, s[88:89]", ("CODE", 0))
        else:
            n = Opt.code0
            k.e(f"s_lshr_b32 s90, s2, 3\ns_and_b32 s90, s90, {1024 // n - 1}\ns_mul_i32 s90, s90, {n * 64}\nv_lshlrev_b32 v16, 6, v0\nv_add_u32 v16, s90, v16\nv_min_u32 v16, L_end-L_pc0, v16")
            k.e(f"v_cmp_gt_u32 vcc, {n}, v0\ns_and_saveexec_b64 s[90:91], vcc\ns_cbranch_execz L_nocode\nglobal_load_dword v16, v16, s[88:89]")
            k.label("L_nocode")
            k.e("s_mov_b64 exec, s[90:91]")
    k.e(f"v_lshrrev_b32 v9, 6, v0\nv_and_b32 v0, 63, v0\nv_readfirstlane_b32 s{sW}, v9")
    k.e(f"s_and_b32 s{sH}, s2, 7\ns_lshl_b32 s{sH}, s{sH}, 2\ns_bfe_u32 s{sT}, s2, 0x20003\ns_add_u32 s{sH}, s{sH}, s{sT}\ns_lshr_b32 s{sMb}, s2, 5")
    sRA, sRB = sFl1, sFl2
    k.e(f"s_and_b32 s{sT}, s{sH}, 1\ns_lshl_b32 s{sT}, s{sT}, 2\ns_xor_b32 s{sRA}, s{sW}, s{sT}")
    k.e(f"s_and_b32 s{sT}, s{sMb}, 1\ns_lshl_b32 s{sT}, s{sT}, 2\ns_xor_b32 s{sRB}, s{sW}, s{sT}")
    k.e(f"s_and_b32 s{sT}, s{sW}, 1\ns_lshl_b32 s{sT}, s{sT}, 2")
    k.e(f"v_lshrrev_b32 v11, 4, v0\nv_add_u32 v11, s{sT}, v11\nv_and_b32 v12, 7, v0\nv_xor_b32 v11, v11, v12\nv_lshlrev_b32 v11, 4, v11")
    k.e(f"v_lshrrev_b32 v12, 3, v0\nv_lshl_add_u32 v{vDA}, v12, 11, v11")
    k.e(f"s_lshl_b32 s{sKA}, s{sMb}, 19\ns_lshl_b32 s{sT}, s{sRA}, 14\ns_add_u32 s{sKA}, s{sKA}, s{sT}\ns_lshl_b32 s{sMA}, s{sRA}, 10")
    k.e(f"s_mov_b32 s{sX+2}, 0x400000\ns_mov_b32 s{sX+3}, 0x20000")
    if Opt.afirst:
        k.e(f"s_waitcnt lgkmcnt(0)\ns_mov_b32 s{sX}, s{pX}\ns_mov_b32 s{sX+1}, s{pX+1}")
        for w_ in range(Opt.afirst): emit_items(k, dma_a(0, w_))
    k.e(f"s_lshl_b32 s{sNbS}, s{sH}, 6\ns_mul_i32 s{sNbG}, s{sH}, 224")
    k.e(f"s_lshl_b32 s{sT}, s{sRB}, 6\nv_add_u32 v11, s{sT}, v0\nv_mul_u32_u24 v12, 4682, v11\nv_lshrrev_b32 v12, 16, v12")
    k.e(f"v_mul_u32_u24 v13, 14, v12\nv_sub_u32 v13, v11, v13")
    swap23(k, vDB0, 12, 14)
    k.e(f"v_mul_u32_u24 v{vDB0}, 7168, v{vDB0}\nv_lshl_add_u32 v{vDB0}, v13, 4, v{vDB0}\nv_add_u32 v{vDB0}, s{sNbG}, v{vDB0}")
    if Opt.r7ool: ool(k, f"s_cmp_eq_u32 s{sRB}, 7", lambda c: qkv_voff(c, vDB0, 0, 12, 13, 14), "r7")
    else: qkv_voff(k, 15, 0, 12, 13, 14)
    k.e(f"s_lshl_b32 s{sT}, s{sRB}, 10\ns_add_u32 s{sT}, s{sT}, {LDS_B}\ns_cmp_eq_u32 s{sRB}, 7\ns_cselect_b64 vcc, -1, 0")
    k.e(csel(sWa+2, 1024*6144, 1024*7168)); k.e(f"s_mov_b32 s{sWb+2}, s{sWa+2}\ns_mov_b32 s{sWa+3}, 0x20000\ns_mov_b32 s{sWb+3}, 0x20000")
    if not Opt.r7ool: k.e(f"v_cndmask_b32 v{vDB0}, v{vDB0}, v15, vcc")
    k.e(csel(sStep, 64*6144, 64*7168)); k.e(csel(sO[1], 16*6144, 32*7168))
    k.e(f"s_cselect_b32 s{sO[2]}, {32*6144}, 0"); k.e(csel(sO[3], 48*6144, 32*7168))
    k.e(f"s_cselect_b32 s{sM[0]}, {LDS_B+28672}, s{sT}")
    k.e(csel(sM[1], 3072, 7168)); k.e(csel(sM[2], 6144, 14336)); k.e(csel(sM[3], 9216, 14336+7168))
    k.e(f"s_mov_b32 s{sKB}, 0\ns_mov_b32 s{sKQ}, 0")
    k.e("s_waitcnt lgkmcnt(0)")
    stamp(k, "karg")
    k.e(f"s_cselect_b32 s{sWa}, s{pQKV}, s{pG}\ns_cselect_b32 s{sWa+1}, s{pQKV+1}, s{pG+1}")
    k.e(f"s_cselect_b32 s{sWb}, s{pQKV}, s{pU}\ns_cselect_b32 s{sWb+1}, s{pQKV+1}, s{pU+1}")
    k.e(f"s_mov_b32 s{sX}, s{pX}\ns_mov_b32 s{sX+1}, s{pX+1}")
    for d in (1, 2, 3): k.e(f"s_add_u32 s{sM[d]}, s{sM[0]}, s{sM[d]}")
    if Opt.krot:
        assert not Opt.quad
        k.e(f"s_and_b32 s{sU}, s2, 7\ns_mul_i32 s{sU}, s{sU}, {Opt.krot}\ns_and_b32 s{sU}, s{sU}, 15\ns_mul_i32 s{sKB}, s{sU}, s{sStep}\ns_mul_i32 s{sKQ}, s{sU}, {64*6144}")
        k.e(f"s_mov_b32 s{sV}, s{sKA}\ns_lshl_b32 s{sT}, s{sU}, 7\ns_add_u32 s{sKA}, s{sKA}, s{sT}")
    if Opt.pfpro >= 1:
        pf_setup(k)
        w_prefetch(k, late=False, xend=(Opt.xpfn == 1))
    if Opt.quad:
        k.e(f"s_lshr_b32 s{sT}, s{sW}, 2\ns_xor_b32 s{sT}, s{sT}, 1\ns_lshr_b32 s{sU}, s{sMb}, 1\ns_and_b32 s{sU}, s{sU}, s{sT}\ns_and_b32 s{sU}, s{sU}, {Opt.qb}")
        k.e(f"s_lshr_b32 s{sV}, s{sH}, 1\ns_and_b32 s{sV}, s{sV}, s{sT}\ns_and_b32 s{sV}, s{sV}, {Opt.qa}")
        k.e(f"s_mul_i32 s{sKB}, s{sU}, s{sStep}\ns_mul_i32 s{sKQ}, s{sU}, {64*6144}\ns_mul_i32 s{sU}, s{sU}, {BSLOT}")
        for d in range(4): k.e(f"s_add_u32 s{sM[d]}, s{sM[d]}, s{sU}")
        k.e(f"s_lshl_b32 s{sT}, s{sV}, 7\ns_add_u32 s{sKA}, s{sKA}, s{sT}\ns_lshl_b32 s{sV}, s{sV}, 15\ns_add_u32 s{sMA}, s{sMA}, s{sV}")
    if Opt.rawfirst == 1 and not (Opt.quad or Opt.loopstats):
        nr = lab(k, "nr")
        k.e(f"s_cmp_ge_u32 s{sW}, 4\ns_cbranch_scc1 {nr}")
        raw_loads(k)
        k.label(nr)
    for d in ((0, 2) if Opt.hackE else range(4)): emit_items(k, dma_b(0, d))
    if Opt.rawfirst == 2 and not (Opt.quad or Opt.loopstats):
        nr = lab(k, "nr")
        k.e(f"s_cmp_ge_u32 s{sW}, 4\ns_cbranch_scc1 {nr}")
        raw_loads(k)
        k.label(nr)
    if not Opt.afirst: emit_items(k, dma_a(0, 0)); emit_items(k, dma_a(0, 1))
    tab = 0
    for w, t in enumerate([2, 4, 5, 7, 8, 10, 11, 1]): tab |= t << (4 * w)
    k.e(f"s_lshl_b32 s{sT}, s{sRB}, 2\ns_lshr_b32 s{sT}, {hex(tab)}, s{sT}\ns_and_b32 s{sT}, s{sT}, 15")
    k.e(f"s_lshl_b32 s{sM[4]}, s{sT}, 10\ns_add_u32 s{sM[4]}, s{sM[4]}, {LDS_B+28672}\ns_lshl_b32 s{sT}, s{sT}, 6\nv_add_u32 v11, s{sT}, v0")
    srd(k, sWc, pQKV, 1024 * 6144)
    qkv_voff(k, vDB1, 11, 12, 13, 14)
    if Opt.quad: k.e(f"s_add_u32 s{sM[4]}, s{sM[4]}, s{sU}")
    emit_items(k, dma_b(0, 4))
    if Opt.hackE:
        for d in (1, 3): emit_items(k, [(a_, b_, ("Ahi", 0) if c_ else None) for a_, b_, c_ in dma_b(0, d)])
    if Opt.afirst < 4: emit_items(k, dma_a(0, 2)); emit_items(k, dma_a(0, 3))
    if Opt.a1:
        emit_items(k, advance())
        for w_ in range(Opt.a1): emit_items(k, dma_a(1, w_))
    if Opt.krot: k.e(f"s_mov_b32 s{sKs}, s{sU}\ns_mov_b32 s{sWrB}, s{sV}")
    if Opt.quad:
        k.e(f"s_sub_u32 s{sKB}, s{sStep}, s{sKB}\ns_sub_u32 s{sKQ}, {64*6144}, s{sKQ}\ns_lshl_b32 s{sRow}, s{sU}, 1\ns_sub_u32 s{sRow}, {BSLOT}, s{sRow}")
        for d in range(5): k.e(f"s_add_u32 s{sM[d]}, s{sM[d]}, s{sRow}")
        k.e(f"s_lshl_b32 s{sRow}, s{sV}, 1\ns_sub_u32 s{sRow}, 32768, s{sRow}\ns_add_u32 s{sMA}, s{sMA}, s{sRow}\ns_ashr_i32 s{sRow}, s{sRow}, 8\ns_add_u32 s{sKA}, s{sKA}, s{sRow}")
        for d in range(4): emit_items(k, dma_b(0, d))
        emit_items(k, dma_a(0, 0)); emit_items(k, dma_a(0, 1))
        emit_items(k, dma_b(0, 4))
        emit_items(k, dma_a(0, 2)); emit_items(k, dma_a(0, 3))
        k.e(f"s_mov_b32 s{sKB}, s{sStep}\ns_mov_b32 s{sKQ}, {64*6144}\ns_sub_u32 s{sU}, {BSLOT}, s{sU}")
        for d in range(5): k.e(f"s_sub_u32 s{sM[d]}, s{sM[d]}, s{sU}")
        k.e(f"s_lshr_b32 s{sRow}, s{sV}, 8\ns_add_u32 s{sKA}, s{sKA}, s{sRow}\ns_sub_u32 s{sV}, 32768, s{sV}\ns_sub_u32 s{sMA}, s{sMA}, s{sV}")
    stamp(k, "issued")
    if not Opt.rawfirst and not (Opt.quad or Opt.loopstats): ool(k, f"s_cmp_lt_u32 s{sW}, 4", raw_loads, "rl")
    if Opt.pfpro < 1: pf_setup(k)
    for n in range(max(Opt.pfpro, 1), Opt.pfpro + Opt.pfmid + (Opt.pfpro < 1)): w_prefetch(k, late=False, xend=True)
    srd(k, sWS, pWS, WS_BYTES)
    k.e(f"s_lshr_b32 s{sWr}, s{sW}, 2\ns_and_b32 s{sWc_}, s{sW}, 3")
    if Opt.dbgstart:
        sk = lab(k, "ds")
        k.e(f"s_cmp_ge_u32 s2, 8\ns_cbranch_scc1 {sk}\ns_lshl_b32 s{sT}, s2, 2\nv_mov_b32 v11, s{sT}\nv_mov_b32 v12, s86\nglobal_store_dword v11, v12, {sr(pDbg,2)}")
        k.label(sk)
    nn = lab(k, "nn")
    k.e(f"v_mov_b32 v{vNon}, 0\ns_or_b32 s{sT}, s2, s{sW}\ns_cmp_lg_u32 s{sT}, 0\ns_cbranch_scc1 {nn}")
    k.e(f"s_or_b32 s{sT}, s86, 1\nv_mov_b32 v11, s{sT}\nglobal_store_dword v{vNon}, v11, {sr(pDbg,2)} offset:128 sc1")
    k.label(nn)
    k.e("v_and_b32 v11, 15, v0\nv_lshrrev_b32 v12, 4, v0")
    k.e("v_lshrrev_b32 v13, 1, v11\nv_xor_b32 v13, v13, v12\nv_lshlrev_b32 v13, 4, v13")
    k.e(f"v_lshl_add_u32 v{vA0}, v11, 7, v13\ns_lshl_b32 s{sT}, s{sWr}, 14\nv_add_u32 v{vA0}, s{sT}, v{vA0}\nv_xor_b32 v{vA1}, 64, v{vA0}")
    k.e("v_lshrrev_b32 v13, 1, v12\nv_lshlrev_b32 v13, 4, v13\nv_and_b32 v14, 1, v12\nv_lshl_add_u32 v13, v14, 2, v13")
    k.e("v_bfe_u32 v15, v0, 2, 2\nv_add_u32 v13, v13, v15\nv_and_b32 v15, 3, v0\nv_lshlrev_b32 v15, 3, v15")
    k.e(f"v_mul_u32_u24 v{vGU}, 224, v13\nv_add_u32 v{vGU}, v{vGU}, v15")
    k.e(f"v_mul_u32_u24 v{vQe}, 192, v13\nv_add_u32 v{vQe}, v{vQe}, v15\nv_add_u32 v{vQe}, {LDS_B+28672}, v{vQe}\nv_lshlrev_b32 v14, 5, v14")
    k.e(f"s_mov_b32 s{sOne}, 0x3f803f80\ns_mov_b32 s{sStage}, 1")
    if Opt.timing:
        k.e(f"s_lshl_b32 s{sT}, s2, 3\ns_add_u32 s{sT}, s{sT}, s{sW}\ns_lshl_b32 s{sT}, s{sT}, 6\ns_add_u32 s{sT}, s{sT}, {hex(WS_T)}\nv_mov_b32 v11, s86")
        k.e(f"buffer_store_dword v11, off, {sr(sWS,4)}, s{sT} offset:60")
    k.e(f"s_lshl_b32 s{sCs}, s{sMb}, 1\ns_add_u32 s{sFl2}, s{sCs}, 2\ns_add_u32 s{sCsB}, s{sCs}, 1\ns_mov_b32 s{sT13}, 13")
    k.e(f"s_cmp_ge_u32 s{sMb}, 6\ns_cmov_b32 s{sCsB}, 99\ns_cmov_b32 s{sFl2}, 13\ns_cmp_eq_u32 s{sMb}, 7\ns_cmov_b32 s{sCs}, 99\ns_cmov_b32 s{sFl2}, 99")
    k.e(f"s_cmp_lg_u32 s{sWr}, 0\ns_cmov_b32 s{sCs}, 99\ns_cmov_b32 s{sCsB}, 99\ns_cmov_b32 s{sT13}, 99")
    k.e(f"s_mov_b32 s{sFl1}, 3")
    if Opt.quad or Opt.loopstats:
        k.e(f"s_lshl_b32 s{sRs}, s{sMb}, 1\ns_cmp_ge_u32 s{sMb}, 4\ns_cmov_b32 s{sRs}, 0\ns_add_u32 s{sFl1}, s{sRs}, 5\ns_add_u32 s{sRs}, s{sRs}, 2\ns_add_u32 s{sRs}, s{sRs}, s{sWr}\ns_add_u32 s{sRs+1}, s{sRs}, 1")
    k.e(f"s_cmp_lg_u32 s{sW}, 0\ns_cmov_b32 s{sFl1}, 99\ns_cmov_b32 s{sFl2}, 99")
    stamp(k, "setup")
    if not (Opt.quad or Opt.loopstats):
        nr = lab(k, "nr")
        k.e(f"s_cmp_ge_u32 s{sW}, 4\ns_cbranch_scc1 {nr}")
        row_stats(k)
        k.label(nr)
    stamp(k, "stats")
    k.e(f"s_and_b32 s{sT}, s{sH}, 1")
    v1, join = lab(k, "v1"), lab(k, "join")
    k.e(f"s_cmp_eq_u32 s{sWc_}, 3\ns_cbranch_scc1 {v1}")
    save = (list(k.lgkm), list(k.vm))
    for var in (0, 1):
        if var == 1:
            k.label(v1)
            k.lgkm, k.vm = list(save[0]), list(save[1])
        if var == 0:
            k.e(f"s_lshl_b32 s{sU}, s{sWc_}, 1\ns_add_u32 s{sU}, s{sU}, s{sT}")
            k.e(f"s_add_u32 s{sV}, s{sWc_}, 3\ns_cmp_eq_u32 s{sWc_}, 0\ns_cmov_b32 s{sV}, 1\ns_lshl_b32 s{sNbS}, s{sV}, 6\ns_lshl_b32 s{sV}, s{sV}, 5\nv_xor_b32 v14, s{sV}, v14\nv_add_u32 v{vQe}, v{vQe}, v14")
        else:
            k.e(f"s_cmp_eq_u32 s{sT}, 0\ns_cselect_b32 s{sU}, 6, 0")
            k.e(f"v_sub_u32 v{vQo}, v{vQe}, v14\nv_add_u32 v{vQe}, v{vQe}, v14")
        k.e(f"s_add_u32 s{sNbG}, s{sU}, 6\ns_lshl_b32 s{sNbG}, s{sNbG}, 6\ns_lshl_b32 s{sU}, s{sU}, 5\ns_add_u32 s{sU}, s{sU}, {LDS_B}\nv_add_u32 v{vGU}, s{sU}, v{vGU}")
        if Opt.gprio: ool(k, f"s_cmp_{'ge' if Opt.gprio == 1 else 'lt'}_u32 s{sW}, 4", lambda c: c.e("s_setprio 1"), "gp")
        gen_main(k, var)
        if Opt.gprio: k.e("s_setprio 0")
        if Opt.dummy:
            dl = lab(k, "dummy")
            k.e(f"s_mov_b32 s{sU}, {Opt.dummy}")
            for r in range(12, 24): k.e(f"v_mov_b32 v{r}, 0")
            k.label(dl)
            for n in range(40):
                t = 12 + 4 * ((n // 2) % 3)
                k.e(f"v_mfma_f32_16x16x32_bf16 {vr(t,4)}, {vr(bfr((n//2)%5,n%2),4)}, {vr(AF0+4*(n%8),4)}, {vr(t,4)}")
            k.e(f"s_sub_u32 s{sU}, s{sU}, 1\ns_cmp_lg_u32 s{sU}, 0\ns_cbranch_scc1 {dl}\ns_nop 7")
        stamp(k, "loop")
        if Opt.idle:
            il = lab(k, "idle")
            k.e(f"s_mov_b32 s{sU}, {Opt.idle}")
            if Opt.idlex is not None: k.e(f"s_and_b32 s{sV}, s2, 7\ns_lshr_b32 s{sV}, {Opt.idlex}, s{sV}\ns_bitcmp1_b32 s{sV}, 0\ns_cselect_b32 s{sU}, s{sU}, 1")
            k.label(il)
            k.e(f"s_nop 15\ns_nop 15\ns_sub_u32 s{sU}, s{sU}, 1\ns_cmp_lg_u32 s{sU}, 0\ns_cbranch_scc1 {il}")
        phase_b(k, var)
        phase_c(k)
        if Opt.hhook < 0:
            k.e("s_waitcnt vmcnt(0) lgkmcnt(0)\ns_barrier"); k.vm = []; k.lgkm = []
            wg_flag(k, F_H, vT)
        else:
            n = len(k.vm) - 1 - k.vm.index("NKV")
            ool(k, f"s_cmp_lt_u32 s{sW}, 4", lambda c: c.e(f"s_waitcnt vmcnt({n})"), "nw")
            barrier(k, set())
        k.e(f"s_branch {join}")
        flush_cold(k)
    k.label(join)
    k.lgkm, k.vm = [], []
    if Opt.warmattn:
        k.e("s_mov_b32 s95, 0")
        k.label("L_attn_entry")
    phase_c2(k)
    if Opt.warmattn: k.e("s_cmp_eq_u32 s95, 1\ns_cbranch_scc1 L_attn_back")
    if Opt.q4:
        k.e(f"s_mov_b32 s37, 8\ns_mov_b32 s40, 10\ns_cmp_lg_u32 s{sW}, 0\ns_cmov_b32 s37, 99\ns_cmov_b32 s40, 99")
        q4_gemm(k)
    else:
        ld, done = lab(k, "ld"), lab(k, "done")
        k.e(f"s_cmp_ge_u32 s{sW}, 4\ns_cbranch_scc1 {ld}")
        save = (list(k.lgkm), k.nl, dict(k.regtag))
        (q5_compute if Opt.q5 else g2_compute)(k)
        k.e(f"s_branch {done}")
        k.label(ld)
        k.vm = []
        k.lgkm, k.nl, k.regtag = save
        (q5_loader if Opt.q5 else g2_loader_ov if Opt.ov else g2_loader)(k)
        k.label(done)
    if Opt.dbgstart:
        k.e(f"s_cmp_ge_u32 s2, 8\ns_cbranch_scc1 {end}\ns_cmp_lg_u32 s{sW}, 0\ns_cbranch_scc1 {end}\ns_waitcnt vmcnt(0)\ns_memrealtime s[98:99]\ns_waitcnt lgkmcnt(0)")
        k.e(f"s_lshl_b32 s{sT}, s2, 2\nv_mov_b32 v11, s{sT}\nv_mov_b32 v12, s98\nglobal_store_dword v11, v12, {sr(pDbg,2)} offset:32")
    if Opt.timing:
        k.e("s_waitcnt vmcnt(0)")
        stamp(k, "end")
        k.e("s_memrealtime s[98:99]\ns_waitcnt lgkmcnt(0)")
        for n in range(1, len(Opt.stamps) + 1):
            if Opt.stamps[n-1].endswith("@"): k.e(f"s_sub_u32 s{60+2*n}, s98, s{60+2*n}\nv_mov_b32 v{24+n}, s{60+2*n}")
            else: k.e(f"s_sub_u32 s{60+2*n}, s{60+2*n}, s60\nv_mov_b32 v{24+n}, s{60+2*n}")
        k.e(f"v_mov_b32 v24, 0\nv_mov_b32 v36, s98")
        k.e(f"s_lshl_b32 s{sT}, s2, 3\ns_add_u32 s{sT}, s{sT}, s{sW}\ns_lshl_b32 s{sT}, s{sT}, 6\ns_add_u32 s{sT}, s{sT}, {hex(WS_T)}")
        for q in range(3): k.e(f"buffer_store_dwordx4 v[{24+4*q}:{27+4*q}], off, {sr(sWS,4)}, s{sT} offset:{16*q}")
        k.e(f"buffer_store_dword v36, off, {sr(sWS,4)}, s{sT} offset:48")
        if Opt.dbg:
            k.e(f"s_cmp_lg_u32 s2, 37\ns_cbranch_scc1 {end}\ns_cmp_lg_u32 s{sW}, 0\ns_cbranch_scc1 {end}")
            k.e(f"buffer_load_dword v37, off, {sr(sWS,4)}, s{sT} offset:60 sc1\ns_waitcnt vmcnt(0)\nv_sub_u32 v24, v36, v37\nv_mov_b32 v40, 0")
            for q in range(3): k.e(f"global_store_dwordx4 v40, v[{24+4*q}:{27+4*q}], {sr(pDbg,2)} offset:{16+16*q}")
    k.e("s_endpgm")
    flush_cold(k)
    k.label(end)
    k.e("s_endpgm")
    return k.text(), descriptor(name, 256, 102, 256), f"; @launch grid=(256,1,1) block=(512,1,1) lds={LDS_BYTES}"
```

```python
from hazard import I, required
from asmlib import Kern

class Rec(Kern):
    def __init__(self):
        super().__init__("rec")
        self.ops = []; self.pend_l = set(); self.pend_v = set()
    def _add(self, text, kind, tag):
        self.ops.append(dict(text=text, kind=kind, tag=tag, nl=self.pend_l, nv=self.pend_v))
        self.pend_l = set(); self.pend_v = set()
    def e(self, s):
        for ln in s.split("\n"):
            ln = ln.strip()
            if ln:
                assert not ln.startswith(("s_cbranch", "s_branch", "s_barrier", "s_waitcnt")) and not ln.endswith(":"), ln
                self._add(ln, "e", None)
    def label(self, s): raise AssertionError("label in scheduled segment")
    def ds(self, text, tag): self._add(text, "ds", tag)
    def vmem(self, text, tag): self._add(text, "vm", tag)
    def need_lgkm(self, tags): self.pend_l = self.pend_l | set(tags)
    def need_vm(self, tags, also_lgkm0=False): self.pend_v = self.pend_v | set(tags)

def cost(i):
    if i.mfma: return 8
    if i.trans: return 8
    if i.salu: return 2
    return 4

def lat(p, c):
    if p.mfma: return (16 if (c.mfma and p.w == c.srcC) else 16 + 4 * required(p, c))
    if p.ds: return LDS_LAT
    if p.vmem: return 600
    if p.trans: return 16
    if p.salu: return 4
    return 8 + 4 * required(p, c)
LDS_LAT = 150

def schedule(k, rec, window=10**9, ext=None, first=None, keep=False):
    ops = rec.ops
    n = len(ops)
    ins = [I(o["text"]) for o in ops]
    preds = [[] for _ in range(n)]
    lastw = {}; readers = {}
    last_cls = {}
    tagprod = {}
    for x, (o, i) in enumerate(zip(ops, ins)):
        for r in i.r:
            if r in lastw: preds[x].append((lastw[r], lat(ins[lastw[r]], i)))
        for r in i.w:
            if r in lastw: preds[x].append((lastw[r], max(cost(ins[lastw[r]]), 4 * required(ins[lastw[r]], i) + (16 if ins[lastw[r]].mfma else 0))))
            for y in readers.get(r, []):
                if y != x: preds[x].append((y, max(cost(ins[y]), 4 * required(ins[y], i))))
        cls = "ds" if i.ds else "vm" if i.vmem else "s" if i.salu else None
        if cls:
            if cls in last_cls: preds[x].append((last_cls[cls], 2))
            last_cls[cls] = x
        for r in i.r: readers.setdefault(r, []).append(x)
        for r in i.w: lastw[r] = x; readers[r] = []
    succs = [[] for _ in range(n)]
    for x in range(n):
        for y, l in preds[x]: succs[y].append((x, l))
    prio = [0] * n
    for x in range(n - 1, -1, -1):
        prio[x] = cost(ins[x]) + max([prio[y] + l for y, l in succs[x]] or [0])
    if first:
        for x in range(n - 1, -1, -1):
            if first(ops[x]) or any(prio[y] >= 10**6 for y, _ in succs[x]): prio[x] += 10**6
    done = [None] * n
    left = [len(set(y for y, _ in preds[x])) for x in range(n)]
    ready = [x for x in range(n) if left[x] == 0]
    t = 0; mf_free = 0; order = []
    start = [max([(ext or {}).get(tg, 0) for tg in (ops[x]["nl"] | ops[x]["nv"])] or [0]) for x in range(n)]
    for x in range(n):
        for r in ins[x].r:
            if r in k.regtag and not any(r in ins[y].w for y, _ in preds[x]):
                start[x] = max(start[x], (ext or {}).get(k.regtag[r][1], 0))
    low = 0
    while ready:
        while low < n and done[low] is not None: low += 1
        def avail(x):
            a = max([done[y] + l for y, l in preds[x]] + [start[x]])
            if ins[x].mfma: a = max(a, mf_free)
            return a
        cand = [x for x in ready if x < low + window] or ready
        now = [x for x in cand if avail(x) <= t]
        if now:
            lastds = bool(order) and ins[order[-1]].ds
            x = max(now, key=lambda x: (ins[x].mfma or (ins[x].ds and not lastds), not ins[x].ds, prio[x] >= 10**6, -x if keep or (ins[x].mfma and first) else prio[x], -x))
        else:
            x = min(cand, key=lambda x: (avail(x), -prio[x]))
            t = avail(x)
        done[x] = t
        if ins[x].mfma: mf_free = t + 16
        t += cost(ins[x])
        order.append(x); ready.remove(x)
        for y in set(y for y, _ in succs[x]):
            left[y] -= 1
            if left[y] == 0: ready.append(y)
    assert len(order) == n
    for x in order:
        o = ops[x]
        k.auto(o["text"])
        if o["kind"] == "e": k.e(o["text"])
        elif o["kind"] == "ds": k.ds(o["text"], o["tag"])
        else: k.vmem(o["text"], o["tag"])
    return t
```

```python
import sys
sys.path.insert(0, "gen")
from buildf import make
DOC = """; Kernarg layout (80 bytes, pointers only, base s[0:1]):
;
"""
path = "parallel_sum__sliding_block__glu_gated_geglu__prompt.s"
make(path)
t = open(path).read().split("\n", 1)[1]
open(path, "w").write(DOC + t)
```
